```python
import torch

def _softmax(x, axis=-1):
    return torch.softmax(x, dim=axis)

def _gelu(x):
    return torch.nn.functional.gelu(x, approximate='tanh')

def _silu(x):
    return torch.nn.functional.silu(x)

def _sigmoid(x):
    return torch.sigmoid(x)

def _layernorm(x, axis=-1, eps=1e-05):
    m = x.mean(dim=axis, keepdim=True)
    v = x.var(dim=axis, keepdim=True, unbiased=False)
    return (x - m) / torch.sqrt(v + eps)

def _scatter_add(tgt, idx, src, axis=0):
    return tgt.clone().index_add_(axis, idx, src)

def _segment_sum(src, seg, n):
    out = torch.zeros((n,) + src.shape[1:], dtype=src.dtype)
    return out.index_add_(0, seg, src)

def _pad(x, pw):
    flat = tuple((v for pair in reversed(pw) for v in pair))
    return torch.nn.functional.pad(x, flat)
kernel_name = 'adaLN_cond__ssm_conv_s4d__mixer_channel_mlp__prompt'

def setup_inputs():

    _w = lambda a: (lambda t: t.to(torch.bfloat16) if t.is_floating_point() else t)(torch.as_tensor(a))

    def _A_setup():
        Bsz, L, D, N = (1, 2048, 576, 128)
        return {'u': _w((lambda *s: torch.randn(*s, dtype=torch.bfloat16) * 0.05)(Bsz, L, D)), 'log_A_real': _w((lambda *s: torch.randn(*s, dtype=torch.bfloat16) * 3.2)(D, N) * 0.5), 'A_imag': _w((lambda *s: torch.randn(*s, dtype=torch.bfloat16) * 0.05)(D, N) * 3.14), 'C_real': _w((lambda *s: torch.randn(*s, dtype=torch.bfloat16) * 0.2)(D, N) / N ** 0.5), 'C_imag': _w((lambda *s: torch.randn(*s, dtype=torch.bfloat16) * 0.2)(D, N) / N ** 0.5), 'log_dt': _w((lambda *s: torch.randn(*s, dtype=torch.bfloat16) * 0.05)(D) * 0.5 - 4.0), 'D_skip': _w((lambda *s: torch.randn(*s, dtype=torch.bfloat16) * 0.05)(D))}
    _A_in = _A_setup()

    def _B_setup():
        B, S, D, F = (1, 2048, 576, 4608)
        return {'x': _w((lambda *s: torch.randn(*s, dtype=torch.bfloat16) * 0.05)(B, S, D)), 'w1': _w((lambda *s: torch.randn(*s, dtype=torch.bfloat16) * 3.2)(D, F) * D ** (-0.5)), 'b1': _w((lambda *s: torch.randn(*s, dtype=torch.bfloat16) * 1.6)(F)), 'w2': _w((lambda *s: torch.randn(*s, dtype=torch.bfloat16) * 1.6)(F, D) * F ** (-0.5)), 'b2': _w((lambda *s: torch.randn(*s, dtype=torch.bfloat16) * 1.6)(D))}
    _B_in = _B_setup()
    return {'A_u': _A_in['u'], 'A_log_A_real': _A_in['log_A_real'], 'A_A_imag': _A_in['A_imag'], 'A_C_real': _A_in['C_real'], 'A_C_imag': _A_in['C_imag'], 'A_log_dt': _A_in['log_dt'], 'A_D_skip': _A_in['D_skip'], 'B_x': _B_in['x'], 'B_w1': _B_in['w1'], 'B_b1': _B_in['b1'], 'B_w2': _B_in['w2'], 'B_b2': _B_in['b2'], 'c': _w((lambda *s: torch.randn(*s, dtype=torch.bfloat16) * 0.2)(1, 576) * 8.0), 'w_mod': _w((lambda *s: torch.randn(*s, dtype=torch.bfloat16) * 0.2)(576, 6 * 576) * 576 ** (-0.5) * 8.0)}

def reference(A_u, A_log_A_real, A_A_imag, A_C_real, A_C_imag, A_log_dt, A_D_skip, B_x, B_w1, B_b1, B_w2, B_b2, c, w_mod):

    def _A_ref(u, log_A_real, A_imag, C_real, C_imag, log_dt, D_skip):
        L = u.shape[1]
        dt = torch.exp(log_dt)
        A = -torch.exp(log_A_real) + 1j * A_imag
        C = (C_real + 1j * C_imag) * dt[:, None]
        pos = (lambda x, dt: x.to(dt))(torch.arange(L), log_dt.dtype)
        P = torch.exp((A * dt[:, None])[:, :, None] * pos[None, None, :])
        K = 2.0 * torch.einsum('dn,dnl->dl', C, P).real
        L2 = 2 * L
        u_t = (lambda x, *d: x.permute(*d))(u, 0, 2, 1)
        Kf = (lambda x, *a, **k: torch.fft.rfft(x.float(), *a, **k))(K, L2)
        Uf = (lambda x, *a, **k: torch.fft.rfft(x.float(), *a, **k))(u_t, L2)
        y = (lambda x, *a, **k: torch.fft.irfft(x, *a, **k).to(torch.bfloat16))(Uf * Kf[None, :, :], L2)[:, :, :L]
        y = (lambda x, *d: x.permute(*d))(y, 0, 2, 1)
        return y + u * D_skip[None, None, :]

    def _B_ref(x, w1, b1, w2, b2):
        y = _layernorm(x, axis=-1)
        h = _gelu(torch.einsum('bsd,df->bsf', y, w1) + b1)
        return torch.einsum('bsf,fd->bsd', h, w2) + b2
    x = A_u
    mod = (_silu(c) @ w_mod).reshape(c.shape[0], 6, 1, -1)
    sa, ca, ga, sb, cb, gb = (mod[:, 0].clone(), mod[:, 1].clone(), mod[:, 2].clone(), mod[:, 3].clone(), mod[:, 4].clone(), mod[:, 5].clone())
    h = _layernorm(x, axis=-1) * (1 + ca) + sa
    x = x + ga * _A_ref(h, A_log_A_real, A_A_imag, A_C_real, A_C_imag, A_log_dt, A_D_skip)
    h = _layernorm(x, axis=-1) * (1 + cb) + sb
    x = x + gb * _B_ref(h, B_w1, B_b1, B_w2, B_b2)
    return x
```

```python
import re

class Tok:
    __slots__ = ('kind', 'seq')
    def __init__(self, kind, seq): self.kind = kind; self.seq = seq

class Kern:
    def __init__(self, name, nvgpr, nsgpr=96, accum=None):
        self.name = name; self.nvgpr = nvgpr; self.nsgpr = nsgpr
        self.accum = accum if accum is not None else min(256, (nvgpr + 3) // 4 * 4)
        self.lines = []
        self.cnt = {'lg': 0, 'vm': 0}
        self.done = {'lg': 0, 'vm': 0}
    def I(self, s):
        for l in s.strip('\n').split('\n'):
            l = l.strip()
            if l: self.lines.append(('    ' + l) if not l.endswith(':') else l)
    def C(self, s): self.lines.append('    ; ' + s)
    def label(self, s): self.lines.append(s + ':')
    def ds(self, s):
        self.I(s); self.cnt['lg'] += 1; return Tok('lg', self.cnt['lg'])
    def vm(self, s):
        self.I(s); self.cnt['vm'] += 1; return Tok('vm', self.cnt['vm'])
    def wait(self, *toks):
        need = {}
        for t in toks:
            if t is None: continue
            if t.seq > self.done[t.kind]:
                need[t.kind] = max(need.get(t.kind, 0), t.seq)
        parts = []
        for kind, seq in need.items():
            n = self.cnt[kind] - seq
            mx = 15 if kind == 'lg' else 63
            n = min(n, mx)
            parts.append(('lgkmcnt(%d)' if kind == 'lg' else 'vmcnt(%d)') % n)
            self.done[kind] = self.cnt[kind] - n
        if parts: self.I('s_waitcnt ' + ' '.join(parts))
    def waitall(self, lg=True, vm=True):
        parts = []
        if vm: parts.append('vmcnt(0)'); self.done['vm'] = self.cnt['vm']
        if lg: parts.append('lgkmcnt(0)'); self.done['lg'] = self.cnt['lg']
        self.I('s_waitcnt ' + ' '.join(parts))
    def raw_wait(self, vm=None, lg=None):
        parts = []
        if vm is not None:
            parts.append('vmcnt(%d)' % vm); self.done['vm'] = max(self.done['vm'], self.cnt['vm'] - vm)
        if lg is not None:
            parts.append('lgkmcnt(%d)' % lg); self.done['lg'] = max(self.done['lg'], self.cnt['lg'] - lg)
        self.I('s_waitcnt ' + ' '.join(parts))
    def nop(self, n):
        while n > 0:
            k = min(n, 16); self.I('s_nop %d' % (k - 1)); n -= k
    def text(self):
        body = '\n'.join(self.lines)
        return f'''.text
.globl {self.name}
.p2align 8
.type {self.name},@function
{self.name}:
{body}
.section .rodata,"a"
.p2align 6
.amdhsa_kernel {self.name}
  .amdhsa_next_free_vgpr {self.nvgpr}
  .amdhsa_next_free_sgpr {self.nsgpr}
  .amdhsa_accum_offset {self.accum}
  .amdhsa_group_segment_fixed_size 0
  .amdhsa_kernarg_size 136
  .amdhsa_user_sgpr_count 2
  .amdhsa_user_sgpr_kernarg_segment_ptr 1
  .amdhsa_system_sgpr_workgroup_id_x 1
  .amdhsa_float_denorm_mode_32 3
.end_amdhsa_kernel
'''

_REG = re.compile(r'\b([vsa])(\d+)\b|\b([vsa])\[(\d+):(\d+)\]|\b(vcc|exec|m0|scc)\b')
def regs(op):
    out = set()
    for m in _REG.finditer(op):
        if m.group(1): out.add((m.group(1), int(m.group(2))))
        elif m.group(3):
            for i in range(int(m.group(4)), int(m.group(5)) + 1): out.add((m.group(3), i))
        elif m.group(6): out.add((m.group(6), 0))
    return out
TRANS = ('v_exp_f32', 'v_log_f32', 'v_rcp_f32', 'v_rsq_f32', 'v_sqrt_f32', 'v_sin_f32', 'v_cos_f32')
def parse(line):
    l = line.split(';')[0].strip()
    if not l or l.endswith(':') or l.startswith('.'): return None
    parts = l.split(None, 1)
    mn = parts[0]; rest = parts[1] if len(parts) > 1 else ''
    ops = [o.strip() for o in re.split(r',(?![^\[]*\])', rest)] if rest else []
    d = dict(mn=mn, ops=ops, w=set(), r=set(), text=l)
    base = re.sub(r'_(e32|e64|dpp|sdwa)$', '', mn)
    d['base'] = base
    if mn.startswith('v_mfma'):
        d['cls'] = 'mfma'; d['w'] = regs(ops[0]); d['A'] = regs(ops[1]); d['B'] = regs(ops[2]); d['Cc'] = regs(ops[3])
        d['r'] = d['A'] | d['B'] | d['Cc']
        d['passes'] = 8 if '32x32x16' in mn else 4
    elif mn.startswith('v_'):
        d['cls'] = 'valu'
        if base.startswith('v_cmp'):
            d['w'] = regs(ops[0]); d['r'] = set().union(*[regs(o) for o in ops[1:]])
            if base.startswith('v_cmpx'): d['w'] |= {('exec', 0)}
        elif base in ('v_swap_b32', 'v_permlane32_swap_b32', 'v_permlane16_swap_b32'):
            d['w'] = regs(ops[0]) | regs(ops[1]); d['r'] = set(d['w'])
        elif base in ('v_add_co_u32', 'v_sub_co_u32', 'v_addc_co_u32', 'v_subb_co_u32'):
            d['w'] = regs(ops[0]) | regs(ops[1]); d['r'] = set().union(*[regs(o) for o in ops[2:]])
        else:
            d['w'] = regs(ops[0]); d['r'] = set().union(*[regs(o) for o in ops[1:]]) if len(ops) > 1 else set()
            if base in ('v_fmac_f32', 'v_dot2c_f32_bf16', 'v_pk_fmac_f16') or 'dpp' in mn or base.endswith('d16') : d['r'] |= d['w']
            if base == 'v_cndmask_b32' and len(ops) == 3: d['r'] |= {('vcc', 0)}
        d['trans'] = base in TRANS
        d['dpp'] = ('dpp' in mn) or any('row_' in o or 'quad_perm' in o for o in ops)
        d['lane'] = base in ('v_readlane_b32', 'v_readfirstlane_b32')
        d['perm'] = base.startswith('v_permlane')
    elif mn.startswith('ds_'):
        d['cls'] = 'ds'
        if 'read' in mn or 'bpermute' in mn or 'swizzle' in mn:
            d['w'] = regs(ops[0]); d['r'] = set().union(*[regs(o) for o in ops[1:]])
            if 'd16' in mn: d['r'] |= d['w']
        else:
            d['r'] = set().union(*[regs(o) for o in ops])
    elif mn.startswith('buffer_') or mn.startswith('global_'):
        d['cls'] = 'vmem'
        allr = set().union(*[regs(o) for o in ops]) if ops else set()
        if 'lds' in l.split() :
            d['r'] = allr | {('m0', 0)}; d['dma'] = True
        elif 'load' in mn:
            d['w'] = regs(ops[0]); d['r'] = set().union(*[regs(o) for o in ops[1:]])
        else:
            d['r'] = allr
            d['wide'] = ('x4' in mn or 'x3' in mn); d['data'] = regs(ops[0]) if mn.startswith('buffer_') else regs(ops[1])
    elif mn.startswith('s_'):
        d['cls'] = 'salu'
        if mn in ('s_nop',): d['nop'] = int(ops[0]) + 1
        elif mn.startswith('s_cmp') or mn.startswith('s_bitcmp'): d['r'] = set().union(*[regs(o) for o in ops])
        elif mn in ('s_waitcnt', 's_barrier', 's_endpgm', 's_branch', 's_setprio', 's_sleep') or mn.startswith('s_cbranch'): pass
        elif mn == 's_set_gpr_idx_on': d['w'] = {('m0', 0)}; d['r'] = regs(ops[0])
        elif mn == 's_set_gpr_idx_off': pass
        else:
            d['w'] = regs(ops[0]) if ops else set(); d['r'] = set().union(*[regs(o) for o in ops[1:]]) if len(ops) > 1 else set()
            if 'saveexec' in mn: d['w'] |= {('exec', 0)}
    else:
        d['cls'] = 'other'
    return d

def hazards(lines, name=''):
    ins = [p for p in (parse(l) for l in lines) if p]
    errs = []
    def isv(r): return r[0] in ('v', 'a')
    for i, c in enumerate(ins):
        dist = 0
        j = i - 1
        while j >= 0 and dist < 20:
            p = ins[j]
            def need(n, why, regsx):
                if dist < n: errs.append(f'{name}: need {n} wait states, have {dist}: [{p["text"]}] -> [{c["text"]}] ({why} {sorted(regsx)[:3]})')
            pw = p['w']
            if p['cls'] == 'valu':
                vw = {r for r in pw if isv(r)}; sw = {r for r in pw if not isv(r)}
                if c['cls'] == 'mfma' and vw & c['r']: need(2, 'valu->mfma', vw & c['r'])
                if c['cls'] == 'valu':
                    if p.get('trans') and (vw & c['r']): need(1, 'trans->valu', vw & c['r'])
                    if c.get('dpp') and (vw & c['r']): need(2, 'valu->dpp', vw & c['r'])
                    if c.get('perm') and (vw & c['r']): need(2, 'valu->permlane', vw & c['r'])
                    if c.get('lane') and (vw & c['r']): need(1, 'valu->readlane', vw & c['r'])
                    if sw & c['r']: need(2, 'valu sgpr->valu', sw & c['r'])
                    if ('exec', 0) in pw and c.get('dpp'): need(5, 'exec->dpp', {('exec', 0)})
                if c['cls'] == 'mfma' and ('exec', 0) in pw: need(4, 'valu exec->mfma', {('exec', 0)})
                if c['cls'] == 'vmem' and (sw & c['r']): need(5, 'valu sgpr->vmem', sw & c['r'])
                if c['cls'] == 'salu' and (sw & c['r']): need(1, 'valu sgpr->salu(padded)', sw & c['r'])
                if p.get('trans') and c['cls'] in ('ds', 'vmem') and (vw & c['r']): need(1, 'trans->mem', vw & c['r'])
            if p['cls'] == 'mfma':
                n = {4: 8, 8: 12}[p['passes']]
                if c['cls'] == 'valu' and (pw & (c['r'] | c['w'])): need(n, 'mfma->valu', pw & (c['r'] | c['w']))
                if c['cls'] in ('ds', 'vmem') and (pw & (c['r'] | c['w'])): need(n, 'mfma->mem', pw & (c['r'] | c['w']))
                if c['cls'] == 'mfma':
                    if pw & (c['A'] | c['B']): need(n, 'mfma->mfma AB', pw & (c['A'] | c['B']))
                    if (pw & c['Cc']) and pw != c['Cc']: need({4: 6, 8: 10}[p['passes']], 'mfma->mfma C partial', pw & c['Cc'])
                if c['cls'] == 'valu' and (p['Cc'] & c['w']): need({4: 3, 8: 7}[p['passes']], 'mfma srcC WAR', p['Cc'] & c['w'])
            if p['cls'] == 'vmem' and p.get('wide') and c['cls'] == 'valu' and (p['data'] & c['w']): need(2, 'wide store WAR', p['data'] & c['w'])
            if p['cls'] == 'salu' and ('m0', 0) in pw and c.get('dma'): need(1, 'm0->dma', {('m0', 0)})
            dist += p.get('nop', 1)
            j -= 1
    return errs
```

```python
from asmlib import Kern, hazards
from layout import *
def vr(a, n): return f'v[{a}:{a+n-1}]'
def build():
    k = Kern('comb_kernel', 64, 48)
    I = k.I
    I('s_cmp_ge_u32 s2, 576\ns_cbranch_scc1 L_comb_end')
    I('s_load_dwordx2 s[20:21], s[0:1], 88\ns_load_dwordx2 s[22:23], s[0:1], 112\ns_load_dwordx2 s[26:27], s[0:1], 128')
    I('s_and_b32 s33, s2, 1\ns_lshr_b32 s34, s2, 1')
    I('s_mul_i32 s35, s34, 7282\ns_lshr_b32 s35, s35, 16')
    I('s_mul_i32 s36, s35, 9\ns_sub_u32 s36, s34, s36')
    I('v_and_b32 v1, 63, v0\nv_lshrrev_b32 v2, 6, v0')
    I('v_and_b32 v3, 15, v1\nv_lshrrev_b32 v4, 4, v1')
    I(f's_mul_i32 s37, s35, {8*73728}\ns_lshl_b32 s38, s36, 13\ns_add_u32 s37, s37, s38\ns_lshl_b32 s38, s33, 12\ns_add_u32 s37, s37, s38\ns_add_u32 s37, s37, {OFF_PART}')
    I('v_lshlrev_b32 v5, 4, v0')
    I('s_lshl_b32 s38, s36, 6\nv_lshlrev_b32 v6, 4, v2\nv_lshlrev_b32 v7, 2, v4\nv_add_u32 v6, v6, v7\nv_add_u32 v6, s38, v6')
    I('s_lshl_b32 s38, s35, 6\ns_lshl_b32 s39, s33, 5\ns_add_u32 s38, s38, s39\nv_add_u32 v7, s38, v3')
    I('v_mul_u32_u24 v7, 1152, v7\nv_lshlrev_b32 v8, 1, v6\nv_add_u32 v7, v7, v8')
    I('v_lshlrev_b32 v9, 2, v6')
    I('s_waitcnt lgkmcnt(0)')
    I(f's_mov_b32 s4, s26\ns_mov_b32 s5, s27\ns_mov_b32 s6, {WS_BYTES}\ns_mov_b32 s7, 0x20000')
    I('s_mov_b32 s8, s20\ns_mov_b32 s9, s21\ns_mov_b32 s10, 1152\ns_mov_b32 s11, 0x20000')
    I('s_mov_b32 s12, s22\ns_mov_b32 s13, s23\ns_mov_b32 s14, 2359296\ns_mov_b32 s15, 0x20000')
    toks = []
    for p in range(8):
        I(f's_add_u32 s38, s37, {p*73728}')
        toks.append(k.vm(f'buffer_load_dwordx4 {vr(16+4*p,4)}, v5, s[4:7], s38 offen nt'))
    I(f's_mov_b32 s38, {OFF_X1R}')
    k.vm('buffer_load_dwordx2 v[48:49], v7, s[4:7], s38 offen')
    I(f's_mov_b32 s39, {OFF_X1R + 16*1152}')
    k.vm('buffer_load_dwordx2 v[50:51], v7, s[4:7], s39 offen')
    I(f's_mov_b32 s40, {OFF_MODF + 3*2304}')
    k.vm('buffer_load_dwordx4 v[52:55], v9, s[4:7], s40 offen')
    last = k.vm('buffer_load_dwordx2 v[56:57], v8, s[8:11], 0 offen')
    acc = [10, 11, 12, 13, 58, 59, 60, 61]
    for p in range(8):
        k.wait(toks[p])
        b = 16 + 4*p
        for d in range(4):
            lo, hi = acc[2*d], acc[2*d+1]
            if p == 0:
                I(f'v_lshlrev_b32 v{lo}, 16, v{b+d}\nv_and_b32 v{hi}, 0xffff0000, v{b+d}')
            else:
                I(f'v_lshlrev_b32 v14, 16, v{b+d}\nv_and_b32 v15, 0xffff0000, v{b+d}\nv_add_f32 v{lo}, v{lo}, v14\nv_add_f32 v{hi}, v{hi}, v15')
    k.wait(last)
    I('v_lshlrev_b32 v16, 16, v56\nv_and_b32 v17, 0xffff0000, v56\nv_lshlrev_b32 v18, 16, v57\nv_and_b32 v19, 0xffff0000, v57')
    for h in range(2):
        x = 48 + 2*h
        I(f'v_lshlrev_b32 v20, 16, v{x}\nv_and_b32 v21, 0xffff0000, v{x}\nv_lshlrev_b32 v22, 16, v{x+1}\nv_and_b32 v23, 0xffff0000, v{x+1}')
        for r in range(4):
            a = acc[4*h + r]
            I(f'v_add_f32 v{a}, v{a}, v{16+r}\nv_fma_f32 v{a}, v{a}, v{52+r}, v{20+r}')
        I(f'v_cvt_pk_bf16_f32 v{24+2*h}, v{acc[4*h]}, v{acc[4*h+1]}\nv_cvt_pk_bf16_f32 v{25+2*h}, v{acc[4*h+2]}, v{acc[4*h+3]}')
    I('buffer_store_dwordx2 v[24:25], v7, s[12:15], 0 offen')
    I(f's_mov_b32 s38, {16*1152}')
    I('buffer_store_dwordx2 v[26:27], v7, s[12:15], s38 offen')
    I('s_waitcnt vmcnt(0)')
    k.label('L_comb_end')
    I('s_endpgm')
    for e in hazards(k.lines, 'comb'): print('HAZARD', e)
    return k, 0
if __name__ == '__main__':
    k, _ = build(); print(len(k.lines))
```

```python
from asmlib import Kern, hazards
from layout import *
import struct
def vr(a, n): return f'v[{a}:{a+n-1}]'
KC = 4416
L_H = 20480
L_U = L_H + 48 * 160
LDS_BYTES = L_U + 32 * 160
XT_PITCH = 4096

def build(stamps=False):
    k = Kern('conv_kernel', 128, 64)
    I = k.I
    I('s_cmp_ge_u32 s2, 576\ns_cbranch_scc1 L_conv_end')
    I('s_load_dwordx2 s[20:21], s[0:1], 48\ns_load_dwordx2 s[26:27], s[0:1], 128')
    I('v_and_b32 v1, 63, v0\nv_lshrrev_b32 v2, 6, v0\nv_and_b32 v3, 15, v1\nv_lshrrev_b32 v4, 4, v1')
    I('v_readfirstlane_b32 s33, v2')
    I('v_lshlrev_b32 v5, 4, v0')
    I('s_waitcnt lgkmcnt(0)')
    I(f's_mov_b32 s4, s26\ns_mov_b32 s5, s27\ns_mov_b32 s6, {WS_BYTES}\ns_mov_b32 s7, 0x20000')
    I('s_and_b32 s34, s2, 0xfffffffe\ns_lshl_b32 s34, s34, 1\ns_load_dword s35, s[20:21], s34')
    I(f's_mul_i32 s36, s2, 4096\ns_add_u32 s37, s36, {OFF_NT}\ns_add_u32 s36, s36, {OFF_UT}')
    tn = k.vm('buffer_load_dwordx4 v[16:19], v5, s[4:7], s37 offen')
    I(f's_mul_i32 s38, s2, {KG_PITCH}\ns_add_u32 s38, s38, {OFF_KG}')
    k.vm('buffer_load_dwordx4 v[24:27], v5, s[4:7], s38 offen')
    tkk = k.vm('buffer_load_dwordx2 v[28:29], v5, s[4:7], s38 offen offset:16')
    tu = k.vm('buffer_load_dwordx4 v[20:23], v5, s[4:7], s36 offen')
    I(f'v_mul_u32_u24 v6, 2304, v1\ns_lshl_b32 s39, s2, 2\ns_add_u32 s39, s39, {OFF_MODP}')
    tm = None
    for p in range(9):
        I(f's_add_u32 s40, s39, {p*13824}')
        tm = k.vm(f'buffer_load_dword v{32+p}, v6, s[4:7], s40 offen')
    for r in range(4): I(f'v_mov_b32 v{44+r}, 0')
    I(f'v_cmp_gt_u32 vcc, 160, v0\nv_add_u32 v7, {L_H}, v5\ns_nop 0\ns_and_saveexec_b64 s[42:43], vcc')
    k.ds('ds_write_b128 v7, v[44:47]')
    I('s_mov_b64 exec, s[42:43]')
    I(f'v_lshrrev_b32 v7, 3, v0\nv_mul_u32_u24 v7, {KC}, v7\nv_and_b32 v8, 7, v0\nv_lshlrev_b32 v8, 4, v8\nv_add_u32 v7, v7, v8\nv_add_u32 v7, 4096, v7')
    I('v_cmp_gt_u32 vcc, 32, v0\ns_nop 1\ns_and_saveexec_b64 s[42:43], vcc')
    k.ds('ds_write_b128 v7, v[44:47]')
    I('s_mov_b64 exec, s[42:43]')
    k.wait(tkk)
    W = [24, 25, 26, 27, 28, 29]
    k.ds('ds_write_b128 v5, v[24:27]')
    for j in range(4): I(f'v_alignbit_b32 v{48+j}, v{W[j+1]}, v{W[j]}, 16')
    k.ds(f'ds_write_b128 v5, v[48:51] offset:{KC}')
    for j in range(4): I(f'v_mov_b32 v{52+j}, v{W[j+1]}')
    k.ds(f'ds_write_b128 v5, v[52:55] offset:{2*KC}')
    for j in range(4): I(f'v_alignbit_b32 v{56+j}, v{W[j+2]}, v{W[j+1]}, 16')
    k.ds(f'ds_write_b128 v5, v[56:59] offset:{3*KC}')
    k.wait(tm)
    for p in range(1, 9): I(f'v_add_f32 v32, v32, v{32+p}')
    I('v_cvt_pk_bf16_f32 v32, v32, v32\nv_and_b32 v32, 0xffff0000, v32')
    I('v_add_f32 v33, 1.0, v32\nv_cvt_pk_bf16_f32 v33, v33, v33\nv_and_b32 v33, 0xffff0000, v33')
    I('v_cmp_eq_u32 vcc, 1, v1\nv_cmp_eq_u32 s[42:43], 4, v1\ns_nop 1\ns_or_b64 vcc, vcc, s[42:43]\ns_nop 1')
    I('v_cndmask_b32 v32, v32, v33, vcc\ns_nop 1')
    I('v_readlane_b32 s44, v32, 0\nv_readlane_b32 s45, v32, 1\nv_readlane_b32 s46, v32, 2')
    I('s_cmp_eq_u32 s33, 0\ns_cbranch_scc0 L_conv_nomod')
    I('v_sub_u32 v34, 8, v1\nv_cmp_gt_u32 vcc, 3, v1\ns_nop 1\nv_cndmask_b32 v34, v34, v1, vcc')
    I(f'v_mul_u32_u24 v34, 2304, v34\ns_lshl_b32 s40, s2, 2\ns_add_u32 s40, s40, {OFF_MODF}')
    I('v_cmp_gt_u32 vcc, 6, v1\ns_nop 1\ns_and_saveexec_b64 s[42:43], vcc')
    I('buffer_store_dword v32, v34, s[4:7], s40 offen')
    I('s_mov_b64 exec, s[42:43]')
    k.label('L_conv_nomod')
    k.wait(tn)
    for j in range(4):
        I(f'v_lshlrev_b32 v36, 16, v{16+j}\nv_and_b32 v37, 0xffff0000, v{16+j}')
        I('v_mul_f32 v36, s45, v36\nv_mul_f32 v37, s45, v37\nv_cvt_pk_bf16_f32 v38, v36, v37')
        I('v_lshlrev_b32 v36, 16, v38\nv_and_b32 v37, 0xffff0000, v38')
        I(f'v_add_f32 v36, s44, v36\nv_add_f32 v37, s44, v37\nv_cvt_pk_bf16_f32 v{16+j}, v36, v37')
    I('v_lshrrev_b32 v7, 3, v0\nv_mul_u32_u24 v7, 160, v7\nv_and_b32 v8, 7, v0\nv_lshlrev_b32 v8, 4, v8\nv_add_u32 v7, v7, v8')
    k.ds(f'ds_write_b128 v7, v[16:19] offset:{L_H + 16*160}')
    k.wait(tu)
    k.ds(f'ds_write_b128 v7, v[20:23] offset:{L_U}')
    VA, VB = 8, 9
    I('v_sub_u32 v10, 3, v3\nv_and_b32 v10, 3, v10')
    I(f'v_mul_u32_u24 v11, {KC}, v10\nv_lshlrev_b32 v12, 3, v4\nv_sub_u32 v12, v12, v3\nv_sub_u32 v12, v12, v10\nv_add_u32 v12, 2047, v12\nv_lshlrev_b32 v12, 1, v12\nv_add_u32 v14, v11, v12')
    I(f'v_mul_u32_u24 v11, 160, v3\nv_lshlrev_b32 v12, 4, v4\nv_add_u32 v11, v11, v12\nv_add_u32 v15, {L_H + 16*160}, v11')
    I('s_mov_b32 s48, 0\ns_mov_b32 s49, 0\ns_mov_b32 s50, 0\ns_mov_b32 s51, 6')
    I('s_cmp_eq_u32 s33, 0\ns_cselect_b32 s49, 6, s49\ns_cselect_b32 s51, 0, s51')
    I('s_cmp_eq_u32 s33, 1\ns_cselect_b32 s48, 12, s48\ns_cselect_b32 s49, 2, s49\ns_cselect_b32 s51, 4, s51')
    I('s_cmp_eq_u32 s33, 2\ns_cselect_b32 s50, 8, s50')
    I('s_cmp_eq_u32 s33, 3\ns_cselect_b32 s50, 20, s50')
    ACC = (64, 80); AF = 96
    BF = 48
    for r in range(32): I(f'v_mov_b32 v{64+r}, 0')
    k.waitall()
    I('s_barrier')
    def a_read(slot, o):
        off = 32 * (3 - o)
        k.ds(f'ds_read_b64 {vr(AF+4*slot,2)}, v{VA} offset:{off}')
        return k.ds(f'ds_read_b64 {vr(AF+4*slot+2,2)}, v{VA} offset:{off+8}')
    def b_read(buf, s):
        return k.ds(f'ds_read_b128 {vr(BF+8*buf+4*s,4)}, v{VB} offset:{64*s}')
    def segment(name, acc, j, s_d0, s_n):
        I(f's_cmp_eq_u32 s{s_n}, 0\ns_cbranch_scc1 L_{name}_skip')
        I(f's_lshl_b32 s52, s{s_d0}, 7\ns_add_u32 s52, s52, 96\nv_subrev_u32 v{VA}, s52, v14')
        I(f's_mul_i32 s52, s{s_d0}, 160\ns_sub_u32 s52, {j*16*160}, s52\nv_add_u32 v{VB}, s52, v15')
        tok = {}
        for o in (-2, -1):
            slot = o % 8
            k.ds(f'ds_read_b64 {vr(AF+4*slot,2)}, v{VA} offset:{32*(3-o)}')
            tok[slot] = k.ds(f'ds_read_b64 {vr(AF+4*slot+2,2)}, v{VA} offset:{32*(3-o)+8}')
        for o in range(4): tok[o] = a_read(o, o)
        btok = {0: None, 1: None}
        b_read(0, 0); btok[0] = b_read(0, 1)
        state = dict(tok=tok, btok=btok)
        def unit(par):
            sl = lambda o: (4 * par + o) % 8
            I(f'v_subrev_u32 v{VA}, 128, v{VA}\nv_subrev_u32 v{VB}, 160, v{VB}')
            nb = 1 - par
            b_read(nb, 0); state['btok'][nb] = b_read(nb, 1)
            for o in (0, 1): state['tok'][sl(4 + o)] = a_read(sl(4 + o), o)
            bb = BF + 8 * par
            k.wait(state['btok'][par], *[state['tok'][sl(o)] for o in (-2, -1, 0, 1)])
            for i in range(4): I(f'v_mfma_f32_16x16x32_bf16 {vr(acc+4*i,4)}, {vr(AF+4*sl(i-2),4)}, {vr(bb+4,4)}, {vr(acc+4*i,4)}')
            k.wait(*[state['tok'][sl(o)] for o in (2, 3)])
            for i in range(2): I(f'v_mfma_f32_16x16x32_bf16 {vr(acc+4*i,4)}, {vr(AF+4*sl(i),4)}, {vr(bb,4)}, {vr(acc+4*i,4)}')
            for o in (2, 3): state['tok'][sl(4 + o)] = a_read(sl(4 + o), o)
            for i in range(2, 4): I(f'v_mfma_f32_16x16x32_bf16 {vr(acc+4*i,4)}, {vr(AF+4*sl(i),4)}, {vr(bb,4)}, {vr(acc+4*i,4)}')
        def body():
            unit(0); unit(1)
        save = len(k.lines)
        body(); del k.lines[save:]
        body(); second = k.lines[save:]; del k.lines[save:]
        k.label(f'L_{name}_loop')
        st = len(k.lines)
        body()
        assert k.lines[st:] == second
        for e in hazards(second + second, name): print('HAZARD', e)
        I(f's_sub_u32 s{s_n}, s{s_n}, 1\ns_cmp_lg_u32 s{s_n}, 0\ns_cbranch_scc1 L_{name}_loop')
        k.waitall(vm=False)
        k.label(f'L_{name}_skip')
    segment('segA', ACC[0], 0, 48, 49)
    segment('segB', ACC[1], 1, 50, 51)
    I('s_barrier')
    I('v_lshlrev_b32 v10, 4, v1')
    I('s_cmp_lt_u32 s33, 2\ns_cbranch_scc0 L_conv_noA')
    I('s_lshl_b32 s52, s33, 12\nv_add_u32 v11, s52, v10\ns_nop 4')
    for i in range(4): I(f'ds_write_b128 v11, {vr(ACC[0]+4*i,4)} offset:{i*1024}')
    k.label('L_conv_noA')
    I('s_cmp_gt_u32 s33, 0\ns_cbranch_scc0 L_conv_noB')
    I('s_add_u32 s52, s33, 1\ns_lshl_b32 s52, s52, 12\nv_add_u32 v11, s52, v10\ns_nop 4')
    for i in range(4): I(f'ds_write_b128 v11, {vr(ACC[1]+4*i,4)} offset:{i*1024}')
    k.label('L_conv_noB')
    I('s_waitcnt lgkmcnt(0)\ns_barrier')
    I('s_lshl_b32 s52, s33, 10\nv_add_u32 v11, s52, v10')
    rt = [k.ds(f'ds_read_b128 {vr(64+4*s,4)}, v11 offset:{s*4096}') for s in range(5)]
    I('v_mul_u32_u24 v12, 160, v3\nv_lshlrev_b32 v13, 3, v4\nv_add_u32 v12, v12, v13\ns_lshl_b32 s52, s33, 5\nv_add_u32 v12, s52, v12')
    th = [k.ds(f'ds_read_b64 {vr(88+2*j,2)}, v12 offset:{L_H + 16*160 + j*16*160}') for j in range(2)]
    tu2 = [k.ds(f'ds_read_b64 {vr(92+2*j,2)}, v12 offset:{L_U + j*16*160}') for j in range(2)]
    I('s_waitcnt lgkmcnt(0)')
    k.done['lg'] = k.cnt['lg']
    I('s_bitcmp1_b32 s2, 0\ns_cselect_b32 s53, 0, 16\ns_lshl_b32 s35, s35, s53\ns_and_b32 s35, s35, 0xffff0000')
    for r in range(4):
        I(f'v_add_f32 v{64+r}, v{64+r}, v{68+r}')
        I(f'v_add_f32 v{72+r}, v{72+r}, v{76+r}\nv_add_f32 v{72+r}, v{72+r}, v{80+r}')
    I(f'v_lshlrev_b32 v13, 7, v3\nv_lshlrev_b32 v12, 3, v4\nv_add_u32 v13, v13, v12\ns_lshl_b32 s52, s33, 5\nv_add_u32 v13, s52, v13')
    I(f's_mul_i32 s52, s2, {XT_PITCH}\ns_add_u32 s52, s52, {OFF_X1T}')
    for j in range(2):
        y = 64 + 8 * j
        for d in range(2):
            hreg, ureg = 88 + 2*j + d, 92 + 2*j + d
            y0, y1 = y + 2*d, y + 2*d + 1
            I(f'v_cvt_pk_bf16_f32 v16, v{y0}, v{y1}')
            I(f'v_lshlrev_b32 v17, 16, v{hreg}\nv_and_b32 v18, 0xffff0000, v{hreg}')
            I('v_mul_f32 v17, s35, v17\nv_mul_f32 v18, s35, v18\nv_cvt_pk_bf16_f32 v19, v17, v18')
            I('v_lshlrev_b32 v17, 16, v16\nv_and_b32 v18, 0xffff0000, v16\nv_lshlrev_b32 v20, 16, v19\nv_and_b32 v21, 0xffff0000, v19')
            I('v_add_f32 v17, v17, v20\nv_add_f32 v18, v18, v21\nv_cvt_pk_bf16_f32 v16, v17, v18')
            I('v_lshlrev_b32 v17, 16, v16\nv_and_b32 v18, 0xffff0000, v16')
            I('v_mul_f32 v17, s46, v17\nv_mul_f32 v18, s46, v18\nv_cvt_pk_bf16_f32 v16, v17, v18')
            I('v_lshlrev_b32 v17, 16, v16\nv_and_b32 v18, 0xffff0000, v16')
            I(f'v_lshlrev_b32 v20, 16, v{ureg}\nv_and_b32 v21, 0xffff0000, v{ureg}')
            I(f'v_add_f32 v17, v17, v20\nv_add_f32 v18, v18, v21\nv_cvt_pk_bf16_f32 v{24+2*j+d}, v17, v18')
        I(f'buffer_store_dwordx2 {vr(24+2*j,2)}, v13, s[4:7], s52 offen offset:{j*2048}')
    I('s_waitcnt vmcnt(0)')
    k.label('L_conv_end')
    I('s_endpgm')
    for e in hazards(k.lines, 'conv'): print('HAZARD', e)
    return k, LDS_BYTES
if __name__ == '__main__':
    k, lds = build(); print(len(k.lines), lds)
```

```python
from asmlib import Kern, hazards
from layout import *
import math

SLOT = 24576
PAR_G2 = 6 * SLOT
PAR_B1 = PAR_G2 + 4608
STATS1 = PAR_G2 + 6912
STATS2 = STATS1 + 1024
LDS_BYTES = STATS2 + 1024

V_TID, V_LANE = 0, 1
V_T0 = 2
V_DMA, V_DMA2 = 3, 4
V_RD = (5, 6, 7)
V_BIAS, V_ST, V_C1, V_C2, V_FR, V_HW = 8, 9, 10, 11, 12, 13
V_TL, V_Q = 14, 15
V_TMP = 16
V_G = 24
V_B4 = 36
V_PK = 40
V_A = 44
V_ACC = (56, 64)
V_H = 76
V_BF = 112
S_WS, S_W1, S_W2, S_CUR, S_B1 = 4, 8, 12, 16, 28
S_W, S_M, S_P, S_IT, S_OFF, S_D, S_G2, S_B, S_WK, S_T, S_ST, S_STN, S_IDX = 33, 34, 35, 36, 37, 38, 39, 40, 41, 42, 43, 44, 45

def vr(a, n): return f'v[{a}:{a+n-1}]'
def sr(a, n): return f's[{a}:{a+n-1}]'

def build(store_flags='', prefetch=True, stamps=False, no_gelu=False, no_dma=False, no_bar=False, no_mfma=False, no_tr=False, prio=False):
    k = Kern('mlp_kernel', 256, 96)
    I = k.I
    nst = [0]
    def stamp():
        if stamps:
            I(f's_memrealtime s[{64+2*nst[0]}:{65+2*nst[0]}]')
            I(f's_memtime s[{80+2*nst[0]}:{81+2*nst[0]}]'); nst[0] += 1
    I('s_cmp_ge_u32 s2, 256\ns_cbranch_scc1 L_mlp_end')
    I('s_load_dwordx2 s[20:21], s[0:1], 64\ns_load_dwordx2 s[22:23], s[0:1], 72\ns_load_dwordx2 s[24:25], s[0:1], 80\ns_load_dwordx2 s[26:27], s[0:1], 128')
    stamp()
    I(f'v_and_b32 v{V_LANE}, 63, v0\nv_lshrrev_b32 v{V_T0}, 6, v0')
    I(f's_lshr_b32 s{S_M}, s2, 3\ns_and_b32 s{S_P}, s2, 7')
    I(f'v_readfirstlane_b32 s{S_W}, v{V_T0}')
    I(f'v_and_b32 v{V_TL}, 15, v{V_LANE}\nv_lshrrev_b32 v{V_Q}, 4, v{V_LANE}')
    t = V_TMP
    I(f'v_lshrrev_b32 v{t}, 3, v{V_LANE}')
    I(f'v_and_b32 v{t+1}, 7, v{V_LANE}')
    I(f'v_and_b32 v{t+2}, 2, v{t}')
    I(f's_and_b32 s46, s{S_W}, 1\ns_lshl_b32 s46, s46, 2')
    I(f'v_or_b32 v{t+2}, s46, v{t+2}')
    I(f'v_xor_b32 v{t+1}, v{t+1}, v{t+2}')
    I(f'v_lshlrev_b32 v{t+1}, 4, v{t+1}')
    I(f's_lshl_b32 s47, s{S_W}, 3')
    I(f'v_add_u32 v{t}, s47, v{t}')
    I(f'v_lshlrev_b32 v{t+3}, 12, v{t}\nv_add_u32 v{V_T0}, v{t+3}, v{t+1}')
    I(f'v_mul_u32_u24 v{t+3}, 9216, v{t}\nv_add_u32 v{V_DMA}, v{t+3}, v{t+1}')
    I(f'v_mul_u32_u24 v{t+3}, 1152, v{t}\nv_add_u32 v{V_DMA2}, v{t+3}, v{t+1}')
    I(f's_lshl_b32 s{S_WK}, s{S_W}, 10')
    I('s_waitcnt lgkmcnt(0)')
    for base, ptr, size in ((S_WS, 26, WS_BYTES), (S_W1, 20, 5308416), (S_W2, 24, 5308416), (S_CUR, 20, 5308416), (S_B1, 22, 9216)):
        I(f's_mov_b32 s{base}, s{ptr}\ns_mov_b32 s{base+1}, s{ptr+1}\ns_mov_b32 s{base+2}, {size}\ns_mov_b32 s{base+3}, 0x20000')
    I(f's_lshl_b32 s46, s{S_M}, 7\ns_add_u32 s46, s46, {OFF_X1T}')
    xt = None
    for b in range(9):
        I(f's_add_u32 m0, s{S_WK}, {b*8192}')
        I(f's_add_u32 s47, s46, {b*64*4096}')
        xt = k.vm(f'buffer_load_dwordx4 v{V_T0}, {sr(S_WS,4)}, s47 offen nt lds')
    I(f'v_lshlrev_b32 v{t}, 4, v0')
    I(f's_mov_b32 s46, {OFF_MODF + 4*2304}')
    pa = k.vm(f'buffer_load_dwordx4 {vr(V_G,4)}, v{t}, {sr(S_WS,4)}, s46 offen')
    I(f'v_subrev_u32 v{t+1}, 288, v0\nv_lshlrev_b32 v{t+1}, 3, v{t+1}')
    I(f's_mul_i32 s46, s{S_P}, 1152')
    I(f'v_cmp_gt_u32 vcc, 288, v0')
    I(f'v_add_u32 v{t+1}, s46, v{t+1}\ns_nop 0')
    I(f'v_cndmask_b32 v{t+1}, v{t+1}, -16, vcc')
    pb = k.vm(f'buffer_load_dwordx2 {vr(V_G+4,2)}, v{t+1}, {sr(S_B1,4)}, 0 offen')
    if prefetch:
        I(f'v_mul_u32_u24 v{t+2}, 7282, v0\nv_lshrrev_b32 v{t+2}, 16, v{t+2}')
        I(f'v_mul_u32_u24 v{t+3}, 9, v{t+2}\nv_sub_u32 v{t+3}, v0, v{t+3}')
        I(f's_mul_i32 s46, s{S_M}, 18\nv_add_u32 v{t+2}, s46, v{t+2}')
        I(f'v_mul_u32_u24 v{t+2}, 9216, v{t+2}\nv_lshlrev_b32 v{t+3}, 7, v{t+3}')
        I(f'v_add_u32 v{t+2}, v{t+2}, v{t+3}')
        I(f's_mul_i32 s46, s{S_P}, 1152\nv_add_u32 v{t+2}, s46, v{t+2}')
        I(f'v_cmp_gt_u32 vcc, 162, v0\ns_nop 1\nv_cndmask_b32 v{t+2}, -16, v{t+2}, vcc')
        k.vm(f'buffer_load_dword v{V_H-4}, v{t+2}, {sr(S_W1,4)}, 0 offen')
        I(f'v_subrev_u32 v{t+3}, 162, v0\nv_lshlrev_b32 v{t+2}, 7, v{t+3}')
        I(f's_mul_i32 s46, s{S_P}, 663552\ns_mul_i32 s47, s{S_M}, {162*128}\ns_add_u32 s46, s46, s47')
        I(f'v_add_u32 v{t+2}, s46, v{t+2}')
        I(f'v_cmp_gt_u32 vcc, 162, v{t+3}\ns_nop 1\nv_cndmask_b32 v{t+2}, -16, v{t+2}, vcc')
        k.vm(f'buffer_load_dword v{V_H-3}, v{t+2}, {sr(S_W2,4)}, 0 offen')
    D1, D2 = 192 * 9216, 192 * 1152
    I(f's_mul_i32 s{S_OFF}, s{S_P}, 1152\ns_mov_b32 s{S_D}, {D1}\ns_mov_b32 s{S_G2}, {(128 - 2*D1) & 0xffffffff}\ns_mov_b32 s{S_B}, {64*9216}')
    def dma_block(slot, b):
        if b == 0: I(f's_mov_b32 s{S_T}, s{S_OFF}')
        else: I(f's_add_u32 s{S_T}, s{S_T}, s{S_B}')
        I(f's_add_u32 m0, s{S_WK}, {slot*SLOT + b*8192}')
        if b == 2: I(f's_add_u32 s{S_OFF}, s{S_OFF}, s{S_G2 if dma_block.kc == 2 else S_D}')
        else: I('s_nop 0')
        return k.vm(f'buffer_load_dwordx4 v{V_DMA}, {sr(S_CUR,4)}, s{S_T} offen lds')
    def dma_chunk(slot, kc):
        dma_block.kc = kc
        tok = None
        for b in range(3): tok = dma_block(slot, b)
        return tok
    c0 = dma_chunk(3, 0); c1 = dma_chunk(4, 1); c2 = dma_chunk(5, 2)
    I(f'v_lshrrev_b32 v{t}, 2, v{V_TL}')
    I(f'v_and_b32 v{t+1}, 3, v{V_LANE}')
    I(f'v_lshlrev_b32 v{t+2}, 3, v{V_Q}\nv_add_u32 v{t+2}, v{t+2}, v{t}\nv_lshlrev_b32 v{t+2}, 7, v{t+2}')
    I(f'v_and_b32 v{t+3}, 2, v{t}')
    I(f'v_and_b32 v{t+4}, 1, v{V_Q}\nv_lshlrev_b32 v{t+4}, 2, v{t+4}\nv_or_b32 v{t+3}, v{t+3}, v{t+4}')
    I(f's_and_b32 s46, s{S_W}, 3\ns_lshl_b32 s46, s46, 1')
    I(f'v_lshrrev_b32 v{t+4}, 1, v{t+1}\nv_add_u32 v{t+4}, s46, v{t+4}\nv_xor_b32 v{t+4}, v{t+4}, v{t+3}\nv_lshlrev_b32 v{t+4}, 4, v{t+4}')
    I(f'v_and_b32 v{t+1}, 1, v{t+1}\nv_lshlrev_b32 v{t+1}, 3, v{t+1}')
    I(f'v_add_u32 v{t+2}, v{t+2}, v{t+4}\nv_add_u32 v{V_RD[0]}, v{t+2}, v{t+1}')
    I(f'v_add_u32 v{V_RD[1]}, {2*SLOT}, v{V_RD[0]}\nv_add_u32 v{V_RD[2]}, {4*SLOT}, v{V_RD[0]}')
    k.wait(pb)
    I(f'v_lshlrev_b32 v{V_G+8}, 16, v{V_G+4}\nv_and_b32 v{V_G+9}, 0xffff0000, v{V_G+4}\nv_lshlrev_b32 v{V_G+10}, 16, v{V_G+5}\nv_and_b32 v{V_G+11}, 0xffff0000, v{V_G+5}')
    I(f'v_cmp_gt_u32 vcc, 288, v0\ns_nop 1')
    for r in range(4): I(f'v_cndmask_b32 v{V_G+r}, v{V_G+8+r}, v{V_G+r}, vcc')
    I(f'v_lshlrev_b32 v{t}, 4, v0\nv_add_u32 v{t}, {PAR_G2}, v{t}')
    I(f'v_cmp_gt_u32 vcc, 432, v0\ns_nop 1\ns_and_saveexec_b64 s[50:51], vcc')
    k.ds(f'ds_write_b128 v{t}, {vr(V_G,4)}')
    I('s_mov_b64 exec, s[50:51]')
    c1v = -2.0 * math.sqrt(2.0 / math.pi) * math.log2(math.e); c2v = c1v * 0.044715
    import struct
    f2u = lambda x: struct.unpack('<I', struct.pack('<f', x))[0]
    I(f'v_mov_b32 v{V_C1}, {f2u(c1v):#x}\nv_mov_b32 v{V_C2}, {f2u(c2v):#x}')
    I(f's_and_b32 s46, s{S_W}, 3\ns_lshr_b32 s47, s{S_W}, 2')
    I(f's_lshl_b32 s48, s46, 6\ns_add_u32 s48, s48, {PAR_B1}')
    I(f'v_lshlrev_b32 v{V_BIAS}, 4, v{V_Q}\nv_add_u32 v{V_BIAS}, s48, v{V_BIAS}')
    I(f's_mul_i32 s48, s47, 36864\nv_lshlrev_b32 v{V_FR}, 4, v{V_LANE}\nv_add_u32 v{V_FR}, s48, v{V_FR}')
    I(f's_lshr_b32 s48, s46, 1\ns_lshl_b32 s48, s48, 10\ns_mul_i32 s49, s47, 36864\ns_add_u32 s48, s48, s49')
    I(f's_and_b32 s49, s46, 1\ns_lshl_b32 s49, s49, 9\ns_add_u32 s48, s48, s49\ns_add_u32 s48, s48, {3*SLOT}')
    I(f'v_lshrrev_b32 v{t}, 1, v{V_Q}\nv_lshlrev_b32 v{t}, 8, v{t}\nv_lshlrev_b32 v{t+1}, 4, v{V_TL}\nv_add_u32 v{t}, v{t}, v{t+1}')
    I(f'v_and_b32 v{t+1}, 1, v{V_Q}\nv_lshlrev_b32 v{t+1}, 3, v{t+1}\nv_add_u32 v{t}, v{t}, v{t+1}\nv_add_u32 v{V_HW}, s48, v{t}')
    I(f'v_lshlrev_b32 v{V_ST}, 4, v{V_LANE}\nv_add_u32 v{V_ST}, s{S_WK}, v{V_ST}')
    I(f's_mul_i32 s{S_STN}, s2, 73728\ns_add_u32 s{S_STN}, s{S_STN}, {OFF_PART}\ns_mov_b32 s{S_ST}, 0x7ff00000')
    X, H2, PG = V_BF, V_BF + 36, V_BF + 108
    ONES, A1, A2 = V_A, V_ACC[0], V_ACC[0] + 4
    for r in range(4): I(f'v_mov_b32 v{ONES+r}, 0x3f803f80')
    I(f's_mul_i32 s48, s47, {9*4096}\nv_add_u32 v{t}, s48, v{V_RD[0]}')
    I(f'v_and_b32 v{t+1}, 3, v{V_TL}')
    I(f'v_cmp_eq_u32 s[52:53], 1, v{t+1}\nv_cmp_eq_u32 s[54:55], 2, v{t+1}\nv_cmp_eq_u32 s[56:57], 3, v{t+1}')
    I(f'v_lshrrev_b32 v{t+1}, 2, v{V_TL}\nv_cmp_eq_u32 s[58:59], v{t+1}, v{V_Q}')
    I(f's_lshl_b32 s48, s46, 8\nv_lshlrev_b32 v{t+2}, 4, v{V_TL}\nv_add_u32 v{t+2}, s48, v{t+2}\nv_add_u32 v{t+2}, {STATS1}, v{t+2}')
    I(f's_lshl_b32 s48, s47, 3\nv_add_u32 v{t+3}, s48, v{t+2}')
    k.wait(xt)
    k.waitall(vm=False)
    I('s_barrier')
    stamp()
    toks = []
    for u in range(9):
        k.ds(f'ds_read_b64_tr_b16 {vr(X+4*u,2)}, v{t} offset:{u*4096}')
        toks.append(k.ds(f'ds_read_b64_tr_b16 {vr(X+4*u+2,2)}, v{t} offset:{u*4096+512}'))
    def stats(src, area_off):
        for u in range(9):
            if src == X and area_off == 0: k.wait(toks[u])
            I(f'v_mfma_f32_16x16x32_bf16 {vr(A1,4)}, {vr(ONES,4)}, {vr(src+4*u,4)}, {"0" if u == 0 else vr(A1,4)}')
            I(f'v_mfma_f32_16x16x32_bf16 {vr(A2,4)}, {vr(src+4*u,4)}, {vr(src+4*u,4)}, {"0" if u == 0 else vr(A2,4)}')
    stats(X, 0)
    I(f's_cmp_eq_u32 s{S_W}, s{S_P}\ns_cbranch_scc0 L_mlp_nox1')
    I(f's_lshl_b32 s48, s{S_M}, 6\ns_lshl_b32 s49, s46, 4\ns_add_u32 s48, s48, s49')
    I(f'v_add_u32 v{t+4}, s48, v{V_TL}\nv_mul_u32_u24 v{t+4}, 1152, v{t+4}\nv_lshlrev_b32 v{t+5}, 4, v{V_Q}\nv_add_u32 v{t+4}, v{t+4}, v{t+5}')
    I(f's_mul_i32 s48, s47, 576\ns_add_u32 s48, s48, {OFF_X1R}')
    for u in range(9):
        I(f'buffer_store_dwordx4 {vr(X+4*u,4)}, v{t+4}, {sr(S_WS,4)}, s48 offen offset:{u*64}')
    k.label('L_mlp_nox1')
    def finish_stats(area):
        k.nop(8)
        I(f'v_cndmask_b32 v{V_G}, v{A2}, v{A2+1}, s[52:53]\nv_cndmask_b32 v{V_G}, v{V_G}, v{A2+2}, s[54:55]\nv_cndmask_b32 v{V_G+1}, v{V_G}, v{A2+3}, s[56:57]')
        I(f'v_mov_b32 v{V_G}, v{A1}')
        I('s_mov_b64 s[50:51], exec\ns_mov_b64 exec, s[58:59]')
        k.ds(f'ds_write_b64 v{t+3}, {vr(V_G,2)} offset:{area}')
        I('s_mov_b64 exec, s[50:51]')
        k.waitall(vm=False)
        I('s_barrier')
        tk = k.ds(f'ds_read_b128 {vr(V_G+4,4)}, v{t+2} offset:{area}')
        return tk
    def stats_to_rm(tk):
        k.wait(tk)
        inv = f2u(1.0 / 576.0)
        I(f'v_add_f32 v{V_G}, v{V_G+4}, v{V_G+6}\nv_add_f32 v{V_G+1}, v{V_G+5}, v{V_G+7}')
        I(f'v_mul_f32 v{V_G}, {inv:#x}, v{V_G}\nv_mul_f32 v{V_G+1}, {inv:#x}, v{V_G+1}')
        I(f'v_fma_f32 v{V_G+1}, -v{V_G}, v{V_G}, v{V_G+1}')
        I(f'v_max_f32 v{V_G+1}, 0, v{V_G+1}\nv_add_f32 v{V_G+1}, {f2u(1e-5):#x}, v{V_G+1}')
        I(f'v_rsq_f32 v{V_G+2}, v{V_G+1}\ns_nop 0')
        I(f'v_mul_f32 v{V_G+3}, v{V_G}, v{V_G+2}\nv_sub_f32 v{V_G+3}, 0, v{V_G+3}')
    tk = finish_stats(0)
    I(f's_mul_i32 s48, s47, {9*128}\ns_add_u32 s48, s48, {PAR_G2}\nv_lshlrev_b32 v{t+4}, 5, v{V_Q}\nv_add_u32 v{t+4}, s48, v{t+4}')
    def par_reads(u):
        b = PG + (u & 1) * 16
        k.ds(f'ds_read_b128 {vr(b,4)}, v{t+4} offset:{u*128}')
        k.ds(f'ds_read_b128 {vr(b+4,4)}, v{t+4} offset:{u*128+16}')
        k.ds(f'ds_read_b128 {vr(b+8,4)}, v{t+4} offset:{2304+u*128}')
        return k.ds(f'ds_read_b128 {vr(b+12,4)}, v{t+4} offset:{2304+u*128+16}')
    ptk = [par_reads(0)]
    stats_to_rm(tk)
    R, NMR = V_G + 2, V_G + 3
    for u in range(9):
        if u + 1 < 9: ptk.append(par_reads(u + 1))
        b = PG + (u & 1) * 16
        for d in range(4):
            I(f'v_lshlrev_b32 v{H2+8*u+2*d}, 16, v{X+4*u+d}\nv_and_b32 v{H2+8*u+2*d+1}, 0xffff0000, v{X+4*u+d}')
        for e in range(8): I(f'v_fma_f32 v{H2+8*u+e}, v{H2+8*u+e}, v{R}, v{NMR}')
        k.wait(ptk[u])
        for e in range(8): I(f'v_fma_f32 v{H2+8*u+e}, v{H2+8*u+e}, v{b+e}, v{b+8+e}')
        for d in range(4): I(f'v_cvt_pk_bf16_f32 v{X+4*u+d}, v{H2+8*u+2*d}, v{H2+8*u+2*d+1}')
    I('s_nop 1')
    stats(X, 1024)
    tk = finish_stats(1024)
    stats_to_rm(tk)
    I(f's_mul_i32 s48, s46, 18432\ns_mul_i32 s49, s47, 9216\ns_add_u32 s48, s48, s49\nv_lshlrev_b32 v{t+4}, 4, v{V_LANE}\nv_add_u32 v{t+4}, s48, v{t+4}')
    for u in range(9):
        for e in range(8): I(f'v_fma_f32 v{H2+8*u+e}, v{H2+8*u+e}, v{R}, v{NMR}')
        for d in range(4): I(f'v_cvt_pk_bf16_f32 v{X+4*u+d}, v{H2+8*u+2*d}, v{H2+8*u+2*d+1}')
        k.ds(f'ds_write_b128 v{t+4}, {vr(X+4*u,4)} offset:{u*1024}')
    k.waitall(vm=False)
    I('s_barrier')
    def load_bfrags(base_off):
        tk = None
        for n in range(36):
            tk = k.ds(f'ds_read_b128 {vr(V_BF+4*n,4)}, v{V_FR} offset:{base_off + n*1024}') if base_off + n*1024 < 65536 else None
        return tk
    load_bfrags(0)
    btk = k.ds(f'ds_read_b128 {vr(V_B4,4)}, v{V_BIAS}')
    I(f'v_add_u32 v{V_BIAS}, 256, v{V_BIAS}')
    k.wait(c0)
    k.waitall(vm=False)
    I('s_barrier')
    dma_chunk(0, 0); dma_chunk(1, 1)
    stamp()

    atok = {}
    def a_reads(n, slot, u):
        buf = V_A + 4 * (n % 3)
        if no_tr and n >= 0 and a_reads.primed:
            return
        off = (slot & 1) * SLOT + u * 4096
        k.ds(f'ds_read_b64_tr_b16 {vr(buf,2)}, v{V_RD[slot>>1]} offset:{off}')
        atok[n % 3] = k.ds(f'ds_read_b64_tr_b16 {vr(buf+2,2)}, v{V_RD[slot>>1]} offset:{off+512}')
    a_reads.primed = False
    def gelu_ops(acc, dst):
        ops = []
        for h in range(2):
            x = [acc + 4*h + r for r in range(4)]; g = [V_G + 4*h + r for r in range(4)]
            ops += [f'v_mul_f32 v{g[r]}, v{x[r]}, v{x[r]}' for r in range(4)]
            ops += [f'v_fma_f32 v{g[r]}, v{g[r]}, v{V_C2}, v{V_C1}' for r in range(4)]
            ops += [f'v_mul_f32 v{g[r]}, v{x[r]}, v{g[r]}' for r in range(4)]
            ops += [f'v_exp_f32 v{g[r]}, v{g[r]}' for r in range(4)]
            ops += [f'v_add_f32 v{g[r]}, 1.0, v{g[r]}' for r in range(4)]
            ops += [f'v_rcp_f32 v{g[r]}, v{g[r]}' for r in range(4)]
            ops += [f'v_mul_f32 v{g[r]}, v{x[r]}, v{g[r]}' for r in range(4)]
            ops += dst(h, g)
        return ops
    def group(phase, par, slots, issue, extra, last=False, vmw=(9, 9, 9), pre=None):
        acc = V_ACC[par]
        extra = list(extra)
        if no_gelu and phase == 1: extra = []
        nfill = len(extra)
        done = 0
        for kc in range(3):
            if vmw[kc] is not None:
                k.raw_wait(vm=vmw[kc])
                if not no_bar: I('s_barrier')
            if pre and kc in pre: pre[kc]()
            for u in range(6):
                n = kc * 6 + u
                k.wait(atok[n % 3])
                for h in range(2):
                    if n == 0: c = vr(V_B4, 4) if phase == 1 else '0'
                    else: c = vr(acc + 4*h, 4)
                    if not no_mfma: I(f'v_mfma_f32_16x16x32_bf16 {vr(acc+4*h,4)}, {vr(V_A+4*(n%3),4)}, {vr(V_BF+(h*18+n)*4,4)}, {c}')
                nn = n + 2
                if nn < 18: a_reads(nn, slots[nn // 6], nn % 6)
                elif not last: a_reads(nn, slots[3], nn - 18)
                if issue[kc] is not None and u in (0, 2, 4) and not no_dma:
                    dma_block.kc = issue[kc][1]
                    dma_block(issue[kc][0], u // 2)
                if phase == 1 and n == 8:
                    group.btk = k.ds(f'ds_read_b128 {vr(V_B4,4)}, v{V_BIAS}')
                    I(f'v_add_u32 v{V_BIAS}, 256, v{V_BIAS}')
                if n >= 1:
                    want = nfill * n // 17 if n < 17 else nfill
                    while done < want:
                        I(extra[done]); done += 1
                if phase == 1 and n == 17: k.wait(group.btk)
    group.btk = btk
    def h_dst_indexed(delta):
        def f(h, g):
            return [f'v_cvt_pk_bf16_f32 v{V_PK}, v{g[0]}, v{g[1]}', f'v_cvt_pk_bf16_f32 v{V_PK+1}, v{g[2]}, v{g[3]}',
                    f's_set_gpr_idx_on s{S_IDX}, gpr_idx(DST)', f'v_mov_b32 v{V_H+delta+2*h}, v{V_PK}', f'v_mov_b32 v{V_H+delta+2*h+1}, v{V_PK+1}', 's_set_gpr_idx_off']
        return f
    def h_dst_static(G):
        def f(h, g):
            return [f'v_cvt_pk_bf16_f32 v{V_H+4*G+2*h}, v{g[0]}, v{g[1]}', f'v_cvt_pk_bf16_f32 v{V_H+4*G+2*h+1}, v{g[2]}, v{g[3]}']
        return f
    def merge_idx(ops):
        out = []; i = 0
        while i < len(ops):
            if ops[i].startswith('s_set_gpr_idx_on'):
                out.append('\n'.join(ops[i:i+4])); i += 4
            else:
                out.append(ops[i]); i += 1
        return out
    def switch_src(to):
        def f():
            lab = f'L_sw_{to}'
            I(f's_cmp_eq_u32 s{S_IT}, 3\ns_cbranch_scc0 {lab}')
            if to == 'w2':
                I(f's_mov_b32 s{S_CUR}, s{S_W2}\ns_mov_b32 s{S_CUR+1}, s{S_W2+1}')
                I(f'v_mov_b32 v{V_DMA}, v{V_DMA2}')
                I(f's_mul_i32 s{S_OFF}, s{S_P}, 663552\ns_mov_b32 s{S_D}, {D2}\ns_mov_b32 s{S_G2}, {(128 - 2*D2) & 0xffffffff}\ns_mov_b32 s{S_B}, {64*1152}')
            else:
                I(f's_mov_b32 s{S_OFF}, 0x7ff00000\ns_mov_b32 s{S_D}, 0\ns_mov_b32 s{S_G2}, 0\ns_mov_b32 s{S_B}, 0')
            k.label(lab)
        return f
    a_reads(0, 3, 0); a_reads(1, 3, 1)
    k.wait(btk)
    I(f's_mov_b32 s{S_IT}, 0\ns_mov_b32 s{S_IDX}, 0')
    def body1():
        group(1, 0, (3, 4, 5, 0), ((2, 2), (3, 0), (4, 1)), merge_idx(gelu_ops(V_ACC[1], h_dst_indexed(-4))))
        group(1, 1, (0, 1, 2, 3), ((5, 2), (0, 0), (1, 1)), merge_idx(gelu_ops(V_ACC[0], h_dst_indexed(0))), pre={1: switch_src('w2')})
    def loop(label, body, n):
        save = len(k.lines)
        body(); first = k.lines[save:]; del k.lines[save:]
        body(); second = k.lines[save:]; del k.lines[save:]
        start = len(k.lines)
        k.label(label)
        body()
        third = k.lines[start+1:]
        assert second == third, 'loop body not a fixed point'
        strip = lambda L: [x for x in L]
        def split(L):
            body_, waits = [], {}
            for x in L:
                if x.startswith('    s_waitcnt'): waits.setdefault(len(body_), []).append(x.strip())
                else: body_.append(x)
            return body_, waits
        fb, fw = split(first); sb_, sw_ = split(second)
        assert fb == sb_, 'loop body differs between entry and steady state'
        import re as _re
        def cnts(ws):
            d = {}
            for w_ in ws:
                for nm, v in _re.findall(r'(vmcnt|lgkmcnt)\((\d+)\)', w_): d[nm] = min(d.get(nm, 99), int(v))
            return d
        for pos, ws in fw.items():
            a = cnts(ws); b = cnts(sw_.get(pos, []))
            for nm, v in a.items():
                assert nm in b and b[nm] <= v, ('steady-state wait too lax for loop entry', label, pos, ws, sw_.get(pos))
        errs = hazards(third + third, label)
        for e in errs: print('HAZARD', e)
        I(f's_add_u32 s{S_IDX}, s{S_IDX}, 8\ns_add_u32 s{S_IT}, s{S_IT}, 1\ns_cmp_lt_u32 s{S_IT}, {n}\ns_cbranch_scc1 {label}')
    loop('L_p1', body1, 4)
    stamp()
    group(1, 0, (3, 4, 5, 0), ((2, 2), None, None), gelu_ops(V_ACC[1], h_dst_static(7)), vmw=(9, 9, 6))
    k.nop(8)
    for op in gelu_ops(V_ACC[0], h_dst_static(8)): I(op)
    k.raw_wait(vm=3)
    I('s_barrier')
    for G in range(9):
        for h in range(2):
            k.ds(f'ds_write_b64 v{V_HW}, {vr(V_H+4*G+2*h,2)} offset:{G*2048 + h*18432}')
    k.waitall(vm=False)
    I('s_barrier')
    I(f'v_add_u32 v{V_FR}, {3*SLOT}, v{V_FR}')
    load_bfrags(0)
    k.waitall(vm=False)
    I('s_barrier')
    dma_chunk(3, 0); dma_chunk(4, 1)
    stamp()
    def store_ops(acc):
        ops = [f'v_cvt_pk_bf16_f32 v{V_PK+2*h+d}, v{acc+4*h+2*d}, v{acc+4*h+2*d+1}' for h in range(2) for d in range(2)]
        ops.append(f'buffer_store_dwordx4 {vr(V_PK,4)}, v{V_ST}, {sr(S_WS,4)}, s{S_ST} offen {store_flags}\ns_mov_b32 s{S_ST}, s{S_STN}\ns_add_u32 s{S_STN}, s{S_STN}, 8192')
        return ops
    I(f's_mov_b32 s{S_IT}, 0')
    def body2():
        group(2, 0, (0, 1, 2, 3), ((5, 2), (0, 0), (1, 1)), store_ops(V_ACC[1]), vmw=(9, 9, 9))
        group(2, 1, (3, 4, 5, 0), ((2, 2), (3, 0), (4, 1)), store_ops(V_ACC[0]), vmw=(9, 9, 9), pre={1: switch_src('oob')})
    loop('L_p2', body2, 4)
    group(2, 0, (0, 1, 2, 3), (None, None, None), store_ops(V_ACC[1]), last=True, vmw=(9, 6, None))
    k.nop(8)
    for op in store_ops(V_ACC[0]): I(op)
    stamp()
    I('s_waitcnt vmcnt(0)')
    stamp()
    if stamps:
        I('s_waitcnt lgkmcnt(0)')
        I(f's_lshl_b32 s46, s2, 6\ns_add_u32 s46, s46, {OFF_DBG}')
        for i in range(nst[0]):
            I(f'v_mov_b32 v2, s{64+2*i}\nv_mov_b32 v3, 0')
            I(f'buffer_store_dword v2, v3, {sr(S_WS,4)}, s46 offen offset:{4*i}')
            I(f'v_mov_b32 v2, s{80+2*i}')
            I(f'buffer_store_dword v2, v3, {sr(S_WS,4)}, s46 offen offset:{32+4*i}')
        I('s_waitcnt vmcnt(0)')
    k.label('L_mlp_end')
    I('s_endpgm')
    errs = hazards(k.lines, 'mlp')
    for e in errs: print('HAZARD', e)
    return k, LDS_BYTES

if __name__ == '__main__':
    k, lds = build()
    print(len(k.lines), 'lines; lds', lds)
```

```python
from asmlib import Kern, hazards
from layout import *
import struct, math
def vr(a, n): return f'v[{a}:{a+n-1}]'
f2u = lambda x: struct.unpack('<I', struct.pack('<f', x))[0]
N_LN, N_MOD, N_KG = 64, 243, 144
GRID = N_LN + N_MOD + N_KG
TP = 1184
T_BYTES = 32 * TP + 384
KW = 2 * 16 * 528
LDS_BYTES = max(2 * T_BYTES, 4 * KW)

def build():
    k = Kern('prep_kernel', 128, 64)
    I = k.I
    I(f's_cmp_ge_u32 s2, {GRID}\ns_cbranch_scc1 L_prep_end')
    I('s_load_dwordx2 s[26:27], s[0:1], 128')
    I('v_and_b32 v1, 63, v0\nv_lshrrev_b32 v2, 6, v0')
    I('s_nop 0\nv_readfirstlane_b32 s33, v2')
    I(f's_cmp_ge_u32 s2, {N_LN + N_MOD}\ns_cbranch_scc1 L_kgen')
    I(f's_cmp_ge_u32 s2, {N_LN}\ns_cbranch_scc1 L_mod')
    I('s_load_dwordx2 s[20:21], s[0:1], 0')
    I('v_lshrrev_b32 v3, 3, v0\nv_and_b32 v4, 7, v0')
    I('s_lshl_b32 s34, s2, 5\nv_add_u32 v5, s34, v3\nv_mul_u32_u24 v5, 1152, v5\nv_lshlrev_b32 v6, 4, v4\nv_add_u32 v5, v5, v6')
    I('s_waitcnt lgkmcnt(0)')
    I(f's_mov_b32 s4, s26\ns_mov_b32 s5, s27\ns_mov_b32 s6, {WS_BYTES}\ns_mov_b32 s7, 0x20000')
    I('s_mov_b32 s8, s20\ns_mov_b32 s9, s21\ns_mov_b32 s10, 2359296\ns_mov_b32 s11, 0x20000')
    U, X = 16, 52
    tk = [k.vm(f'buffer_load_dwordx4 {vr(U+4*m,4)}, v5, s[8:11], 0 offen offset:{m*128}') for m in range(9)]
    I(f'v_mul_u32_u24 v7, {TP}, v3\nv_lshrrev_b32 v8, 3, v3\nv_lshlrev_b32 v8, 7, v8\nv_add_u32 v7, v7, v8\nv_add_u32 v7, v7, v6')
    I('v_mov_b32 v10, 0\nv_mov_b32 v11, 0')
    for m in range(9):
        k.wait(tk[m])
        k.ds(f'ds_write_b128 v7, {vr(U+4*m,4)} offset:{m*128}')
        for d in range(4):
            I(f'v_lshlrev_b32 v{X+8*m+2*d}, 16, v{U+4*m+d}\nv_and_b32 v{X+8*m+2*d+1}, 0xffff0000, v{U+4*m+d}')
        for d in range(4): I(f'v_pk_add_f32 v[10:11], v[10:11], {vr(X+8*m+2*d,2)}')
    def red8(reg):
        I(f's_nop 1\nv_add_f32_dpp v{reg}, v{reg}, v{reg} quad_perm:[1,0,3,2] row_mask:0xf bank_mask:0xf')
        I(f's_nop 1\nv_add_f32_dpp v{reg}, v{reg}, v{reg} quad_perm:[2,3,0,1] row_mask:0xf bank_mask:0xf')
        I(f's_nop 1\nv_add_f32_dpp v{reg}, v{reg}, v{reg} row_half_mirror row_mask:0xf bank_mask:0xf')
    I('v_add_f32 v10, v10, v11')
    red8(10)
    I(f'v_mul_f32 v10, {f2u(-1.0/576):#x}, v10\nv_mov_b32 v11, v10\nv_mov_b32 v12, 0\nv_mov_b32 v13, 0')
    for e in range(36): I(f'v_pk_add_f32 {vr(X+2*e,2)}, {vr(X+2*e,2)}, v[10:11]')
    for e in range(36): I(f'v_pk_fma_f32 v[12:13], {vr(X+2*e,2)}, {vr(X+2*e,2)}, v[12:13]')
    I('v_add_f32 v12, v12, v13')
    red8(12)
    I(f'v_mul_f32 v12, {f2u(1.0/576):#x}, v12\nv_add_f32 v12, {f2u(1e-5):#x}, v12\nv_rsq_f32 v12, v12\ns_nop 0\nv_mov_b32 v13, v12')
    for e in range(36):
        I(f'v_pk_mul_f32 {vr(X+2*e,2)}, {vr(X+2*e,2)}, v[12:13]')
        I(f'v_cvt_pk_bf16_f32 v{U+e}, v{X+2*e}, v{X+2*e+1}')
    for m in range(9): k.ds(f'ds_write_b128 v7, {vr(U+4*m,4)} offset:{T_BYTES + m*128}')
    k.waitall(vm=False)
    I('s_barrier')
    I('v_lshrrev_b32 v3, 4, v1\nv_and_b32 v4, 15, v1\nv_lshrrev_b32 v5, 2, v4\nv_and_b32 v6, 3, v1')
    I(f'v_lshlrev_b32 v7, 3, v3\nv_add_u32 v7, v7, v5\nv_mul_u32_u24 v7, {TP}, v7\nv_lshlrev_b32 v8, 7, v3\nv_add_u32 v7, v7, v8')
    I('v_lshlrev_b32 v8, 3, v6\nv_add_u32 v7, v7, v8\ns_mul_i32 s35, s33, 288\nv_add_u32 v7, s35, v7')
    I('s_mul_i32 s35, s33, 144\nv_add_u32 v8, s35, v4\nv_lshlrev_b32 v8, 12, v8\nv_lshlrev_b32 v9, 4, v3\nv_add_u32 v8, v8, v9\ns_lshl_b32 s35, s2, 6\nv_add_u32 v8, s35, v8')
    for arr, off in ((0, OFF_UT), (1, OFF_NT)):
        tks = []
        rb = 16 if arr == 0 else 52
        for i in range(9):
            k.ds(f'ds_read_b64_tr_b16 {vr(rb+4*i,2)}, v7 offset:{arr*T_BYTES + i*32}')
            tks.append(k.ds(f'ds_read_b64_tr_b16 {vr(rb+4*i+2,2)}, v7 offset:{arr*T_BYTES + i*32 + 4*TP}'))
        for i in range(9):
            k.wait(tks[i])
            I(f's_mov_b32 s36, {off + i*16*4096}')
            k.vm(f'buffer_store_dwordx4 {vr(rb+4*i,4)}, v8, s[4:7], s36 offen')
    I('s_branch L_prep_fin')
    k.label('L_mod')
    I('s_load_dwordx2 s[20:21], s[0:1], 96\ns_load_dwordx2 s[22:23], s[0:1], 104')
    I(f's_sub_u32 s34, s2, {N_LN}\ns_mul_i32 s35, s34, 2428\ns_lshr_b32 s35, s35, 16\ns_mul_i32 s36, s35, 27\ns_sub_u32 s36, s34, s36')
    I('v_and_b32 v3, 15, v0\nv_lshrrev_b32 v4, 4, v0')
    I('s_lshl_b32 s37, s35, 6\nv_add_u32 v5, s37, v4')
    I('v_mul_u32_u24 v6, 6912, v5\nv_lshlrev_b32 v7, 4, v3\nv_add_u32 v6, v6, v7\ns_lshl_b32 s37, s36, 8\nv_add_u32 v6, s37, v6')
    I('v_lshlrev_b32 v5, 1, v5')
    I('s_waitcnt lgkmcnt(0)')
    I(f's_mov_b32 s4, s26\ns_mov_b32 s5, s27\ns_mov_b32 s6, {WS_BYTES}\ns_mov_b32 s7, 0x20000')
    I('s_mov_b32 s8, s20\ns_mov_b32 s9, s21\ns_mov_b32 s10, 1152\ns_mov_b32 s11, 0x20000')
    I('s_mov_b32 s12, s22\ns_mov_b32 s13, s23\ns_mov_b32 s14, 3981312\ns_mov_b32 s15, 0x20000')
    tw = []
    for i in range(4):
        I(f's_mov_b32 s38, {i*16*6912}')
        tw.append(k.vm(f'buffer_load_dwordx4 {vr(16+4*i,4)}, v6, s[12:15], s38 offen'))
    tc = None
    for i in range(4): tc = k.vm(f'buffer_load_ushort v{32+i}, v5, s[8:11], 0 offen offset:{i*32}')
    k.wait(tc)
    for i in range(4): I(f'v_lshlrev_b32 v{32+i}, 16, v{32+i}')
    for i in range(4): I(f'v_mul_f32 v{36+i}, {f2u(-math.log2(math.e)):#x}, v{32+i}')
    for i in range(4): I(f'v_exp_f32 v{36+i}, v{36+i}')
    for i in range(4): I(f'v_add_f32 v{36+i}, 1.0, v{36+i}')
    for i in range(4): I(f'v_rcp_f32 v{36+i}, v{36+i}')
    for i in range(4): I(f'v_mul_f32 v{32+i}, v{32+i}, v{36+i}')
    for i in range(4): I(f'v_cvt_pk_bf16_f32 v{32+i}, v{32+i}, v{32+i}\nv_and_b32 v{32+i}, 0xffff0000, v{32+i}')
    for e in range(8): I(f'v_mov_b32 v{40+e}, 0')
    for i in range(4):
        for d in range(4):
            I(f'v_lshlrev_b32 v48, 16, v{16+4*i+d}\nv_and_b32 v49, 0xffff0000, v{16+4*i+d}')
            I(f'v_fmac_f32 v{40+2*d}, v48, v{32+i}\nv_fmac_f32 v{40+2*d+1}, v49, v{32+i}')
    I('v_lshlrev_b32 v6, 9, v4\nv_lshlrev_b32 v7, 5, v3\nv_add_u32 v6, v6, v7')
    I('ds_write_b128 v6, v[40:43]\nds_write_b128 v6, v[44:47] offset:16')
    I('s_waitcnt lgkmcnt(0)\ns_barrier')
    I('v_cmp_gt_u32 vcc, 128, v0\nv_lshlrev_b32 v6, 2, v0\ns_nop 0\ns_and_saveexec_b64 s[42:43], vcc\ns_cbranch_execz L_prep_fin')
    for g in range(16): I(f'ds_read_b32 v{16+g}, v6 offset:{g*512}')
    I('s_waitcnt lgkmcnt(0)')
    for g in range(1, 16): I(f'v_add_f32 v16, v16, v{16+g}')
    I(f's_mul_i32 s37, s35, 13824\ns_lshl_b32 s38, s36, 9\ns_add_u32 s37, s37, s38\ns_add_u32 s37, s37, {OFF_MODP}')
    I('buffer_store_dword v16, v6, s[4:7], s37 offen')
    I('s_branch L_prep_fin')
    k.label('L_kgen')
    I('s_load_dwordx2 s[8:9], s[0:1], 8\ns_load_dwordx2 s[12:13], s[0:1], 16\ns_load_dwordx2 s[16:17], s[0:1], 24\ns_load_dwordx2 s[20:21], s[0:1], 32\ns_load_dwordx2 s[24:25], s[0:1], 40')
    I(f's_sub_u32 s34, s2, {N_LN + N_MOD}\ns_lshl_b32 s34, s34, 2\ns_add_u32 s34, s34, s33')
    I('v_lshlrev_b32 v3, 1, v1\ns_lshl_b32 s35, s34, 8\nv_add_u32 v3, s35, v3')
    I('s_and_b32 s36, s34, 0xfffffffe\ns_lshl_b32 s36, s36, 1')
    I('s_waitcnt lgkmcnt(0)')
    I('s_load_dword s37, s[24:25], s36')
    I(f's_mov_b32 s4, s26\ns_mov_b32 s5, s27\ns_mov_b32 s6, {WS_BYTES}\ns_mov_b32 s7, 0x20000')
    for b in (8, 12, 16, 20):
        I(f's_mov_b32 s{b+2}, 147456\ns_mov_b32 s{b+3}, 0x20000')
    k.cnt['vm'] = k.done['vm'] = 0; k.cnt['lg'] = k.done['lg'] = 0
    last = None
    for a, b in enumerate((8, 12, 16, 20)):
        for md in range(2):
            last = k.vm(f'buffer_load_ushort v{16+2*a+md}, v3, s[{b}:{b+3}], 0 offen offset:{md*128}')
    I('s_waitcnt lgkmcnt(0)')
    I('s_bitcmp1_b32 s34, 0\ns_cselect_b32 s38, 0, 16\ns_lshl_b32 s37, s37, s38\ns_and_b32 s37, s37, 0xffff0000')
    L2E = f2u(math.log2(math.e))
    I(f'v_mov_b32 v4, s37\nv_mul_f32 v4, {L2E:#x}, v4\nv_exp_f32 v4, v4\ns_nop 0\nv_cvt_pk_bf16_f32 v4, v4, v4\nv_and_b32 v4, 0xffff0000, v4')
    FB = 0; GB = 16 * 528
    I(f's_mul_i32 s39, s33, {KW}\nv_lshlrev_b32 v5, 2, v1\nv_add_u32 v5, s39, v5')
    k.wait(last)
    for r in range(16, 24): I(f'v_lshlrev_b32 v{r}, 16, v{r}')
    def R(md, name):
        b = 24 + 26 * md
        return b + dict(AR=0, AI=1, C=2, Z=4, Z8=18, Z128=20, U=22, F=24)[name]
    T0 = 76
    def direct(dst, md, p):
        I(f'v_mul_f32 v{T0}, {f2u(float(p)):#x}, v{R(md,"AR")}\nv_mul_f32 v{T0+1}, {f2u(float(p)):#x}, v{R(md,"AI")}')
        I(f'v_exp_f32 v{T0}, v{T0}\nv_fract_f32 v{T0+1}, v{T0+1}\ns_nop 0\nv_cos_f32 v{T0+2}, v{T0+1}\nv_sin_f32 v{T0+3}, v{T0+1}\ns_nop 0')
        I(f'v_mul_f32 v{dst}, v{T0}, v{T0+2}\nv_mul_f32 v{dst+1}, v{T0}, v{T0+3}')
    def cmul(dst, a, b):
        I(f'v_pk_mul_f32 {vr(dst,2)}, {vr(a,2)}, {vr(b,2)} op_sel:[0,0] op_sel_hi:[1,0]')
        I(f'v_pk_fma_f32 {vr(dst,2)}, {vr(a,2)}, {vr(b,2)}, {vr(dst,2)} op_sel:[1,1,0] op_sel_hi:[0,1,1] neg_lo:[1,0,0]')
    def put(base, row, md, src, neg):
        I(f'v_cvt_pk_bf16_f32 v{T0+4+md}, v{src}, {"-" if neg else ""}v{src+1}')
        k.ds(f'ds_write_b32 v5, v{T0+4+md} offset:{base + row*528 + md*256}')
    for md in range(2):
        la, ai, cr, ci = 16 + md, 18 + md, 20 + md, 22 + md
        I(f'v_mul_f32 v{la}, {L2E:#x}, v{la}\nv_exp_f32 v{la}, v{la}\ns_nop 0\nv_cvt_pk_bf16_f32 v{la}, v{la}, v{la}\nv_and_b32 v{la}, 0xffff0000, v{la}')
        I(f'v_mul_f32 v{la}, v{la}, v4\nv_mul_f32 v{R(md,"AR")}, {f2u(-math.log2(math.e)):#x}, v{la}')
        I(f'v_mul_f32 v{ai}, v{ai}, v4\nv_mul_f32 v{R(md,"AI")}, {f2u(1.0/(2*math.pi)):#x}, v{ai}')
        I(f'v_mul_f32 v{cr}, v{cr}, v4\nv_mul_f32 v{ci}, v{ci}, v4\nv_add_f32 v{R(md,"C")}, v{cr}, v{cr}\nv_add_f32 v{R(md,"C")+1}, v{ci}, v{ci}')
        direct(R(md, 'Z'), md, 1); direct(R(md, 'Z8'), md, 8); direct(R(md, 'Z128'), md, 128)
    for md in range(2):
        I(f'v_mov_b32 v{R(md,"F")}, 1.0\nv_mov_b32 v{R(md,"F")+1}, 0')
        put(FB, 0, md, R(md, 'F'), False)
        put(FB, 1, md, R(md, 'Z8'), False)
    cur = {md: R(md, 'Z8') for md in range(2)}
    for beta in range(2, 16):
        for md in range(2):
            dst = R(md, 'F') if cur[md] != R(md, 'F') else T0 + 6 + 2 * md
            cmul(dst, cur[md], R(md, 'Z8')); cur[md] = dst
            put(FB, beta, md, dst, False)
    for e in range(2, 8):
        for md in range(2): cmul(R(md, 'Z') + 2*(e-1), R(md, 'Z') + 2*(e-2), R(md, 'Z'))
    I(f'v_and_b32 v6, 15, v1\nv_lshrrev_b32 v7, 4, v1\nv_mul_u32_u24 v8, 528, v6\nv_lshlrev_b32 v9, 4, v7\nv_add_u32 v8, v8, v9\nv_add_u32 v8, s39, v8')
    BFR = 88
    k.waitall(vm=False)
    bt = [k.ds(f'ds_read_b128 {vr(BFR+4*s,4)}, v8 offset:{FB + s*64}') for s in range(8)]
    ACC = 12
    Ucur = {md: R(md, 'C') for md in range(2)}
    alpha = [0]
    def next_U():
        for md in range(2):
            dst = R(md, 'U') if Ucur[md] != R(md, 'U') else R(md, 'F')
            cmul(dst, Ucur[md], R(md, 'Z128')); Ucur[md] = dst
        alpha[0] += 1
    def row_out(row, eps):
        for md in range(2):
            if eps == 0: put(GB, row, md, Ucur[md], True)
            else:
                t = T0 + 6 + 2 * md
                cmul(t, Ucur[md], R(md, 'Z') + 2*(eps-1)); put(GB, row, md, t, True)
    tiles = [[(0, e) for e in range(8)] + [(1, e) for e in range(8)],
             [(a, e) for a in (2, 3) for e in (0, 2, 4, 6)] + [(a, e) for a in (4, 5, 6, 7) for e in (0, 4)],
             [(a, 0) for a in range(8, 17)]]
    for ti, rows in enumerate(tiles):
        for row, (a, e) in enumerate(rows):
            while alpha[0] < a: next_U()
            row_out(row, e)
        k.waitall(vm=False)
        tks = {0: k.ds(f'ds_read_b128 v[120:123], v8 offset:{GB}')}
        for s in range(8):
            if s + 1 < 8: tks[s+1] = k.ds(f'ds_read_b128 {vr((120, 124)[(s+1) & 1],4)}, v8 offset:{GB + (s+1)*64}')
            k.wait(tks[s])
            I(f'v_mfma_f32_16x16x32_bf16 {vr(ACC+4*ti,4)}, {vr((120, 124)[s & 1],4)}, {vr(BFR+4*s,4)}, {"0" if s == 0 else vr(ACC+4*ti,4)}')
    k.nop(8)
    TB = GB
    I(f'v_lshlrev_b32 v9, 4, v6\nv_add_u32 v9, s39, v9')
    I('v_lshrrev_b32 v10, 1, v7\nv_lshlrev_b32 v10, 8, v10\nv_and_b32 v11, 1, v7\nv_lshlrev_b32 v11, 3, v11\nv_add_u32 v10, v10, v11\nv_add_u32 v10, v10, v9')
    def tput(addr, r, acc, off):
        I(f'v_cvt_pk_bf16_f32 v{T0+r}, v{acc}, v{acc}')
        k.ds(f'ds_write_b16 v{addr}, v{T0+r} offset:{TB + off}')
    for r in range(4): tput(10, r, ACC + r, 2*r)
    I('v_cmp_gt_u32 vcc, 2, v7\nv_lshlrev_b32 v10, 8, v7\nv_add_u32 v10, 512, v10\nv_lshlrev_b32 v11, 9, v7')
    I('v_cndmask_b32 v10, v11, v10, vcc\nv_add_u32 v10, v10, v9')
    for r in range(4):
        lo, hi = 4*r, 256*(r >> 1) + 8*(r & 1)
        I(f'v_mov_b32 v11, {hi}\nv_cndmask_b32 v11, v11, {lo}, vcc' if lo <= 64 else '')
        I('v_add_u32 v11, v11, v10')
        tput(11, r, ACC + 4 + r, 0)
    for r in range(4):
        I(f'v_lshlrev_b32 v10, 2, v7\nv_add_u32 v10, {8 + r}, v10\nv_min_u32 v10, 17, v10\nv_lshlrev_b32 v10, 8, v10\nv_add_u32 v10, v10, v9')
        tput(10, r, ACC + 8 + r, 0)
    k.waitall(vm=False)
    I(f'v_lshlrev_b32 v10, 4, v1\nv_add_u32 v10, s39, v10')
    I(f's_mul_i32 s40, s34, {KG_PITCH}\ns_add_u32 s40, s40, {OFF_KG}')
    I('v_sub_u32 v11, 255, v1\nv_lshlrev_b32 v11, 4, v11')
    I('v_cmp_gt_u32 vcc, 32, v1\nv_and_b32 v12, 1, v1\nv_lshlrev_b32 v12, 4, v12')
    PAT = {1: [0,0,2,4,4,4,6,8], 2: [0,0,0,4,4,4,8,8], 3: [0,0,0,0,None,8,8,8]}
    for it in range(4):
        for e in range(8):
            reg = 32 + 8*it + e
            if it == 0:
                dl = 2 * (PAT[1][e] - e)
                if dl:
                    I(f'v_mov_b32 v13, {dl}\nv_cndmask_b32 v13, v13, 0, vcc\nv_add_u32 v13, v13, v10'); a = 13
                else: a = 10
                k.ds(f'ds_read_u16 v{reg}, v{a} offset:{TB + 2*e}')
            elif it == 1:
                k.ds(f'ds_read_u16 v{reg}, v10 offset:{TB + 1024 + 2*PAT[2][e]}')
            else:
                if PAT[3][e] is None:
                    I('v_add_u32 v13, v12, v10')
                    k.ds(f'ds_read_u16 v{reg}, v13 offset:{TB + it*1024}')
                else:
                    k.ds(f'ds_read_u16 v{reg}, v10 offset:{TB + it*1024 + 2*PAT[3][e]}')
    k.waitall(vm=False)
    for it in range(4):
        for j in range(4):
            I(f'v_lshl_or_b32 v{16+4*it+j}, v{32+8*it+6-2*j}, 16, v{32+8*it+7-2*j}')
    for it in range(4):
        I(f's_sub_u32 s41, s40, {it*1024}')
        I(f'buffer_store_dwordx4 {vr(16+4*it,4)}, v11, s[4:7], s41 offen')
    I('s_nop 1')
    for r in range(4): I(f'v_mov_b32 v{32+r}, 0')
    I('v_lshlrev_b32 v12, 4, v1\nv_cmp_gt_u32 vcc, 16, v1\ns_nop 1\ns_and_saveexec_b64 s[42:43], vcc')
    I('s_add_u32 s41, s40, 4096\nbuffer_store_dwordx4 v[32:35], v12, s[4:7], s41 offen')
    k.label('L_prep_fin')
    I('s_waitcnt vmcnt(0)')
    k.label('L_prep_end')
    I('s_endpgm')
    for e in hazards(k.lines, 'prep'): print('HAZARD', e)
    return k, LDS_BYTES
if __name__ == '__main__':
    k, lds = build(); print(len(k.lines), lds)
```

```python
OFF_UT   = 0x0000000
OFF_NT   = 0x0240000
OFF_KG   = 0x0480000
KG_PITCH = 4352
OFF_MODP = 0x0700000
OFF_MODF = 0x0720000
OFF_X1T  = 0x0740000
OFF_X1R  = 0x0980000
OFF_PART = 0x0C00000
OFF_FLAG = 0x0BC0000
OFF_DBG  = 0x3000000
WS_BYTES = 0x10000000
```

```python
import sys, importlib
HEAD = open('adaLN_cond__ssm_conv_s4d__mixer_channel_mlp__prompt.s.ref').read().split('; Override')[0]
FINAL = 'adaLN_cond__ssm_conv_s4d__mixer_channel_mlp__prompt.s'
def make(path, kernels):
    out = [HEAD.rstrip('\n')]
    for k, g, b, lds in kernels:
        out.append(f'; @launch kernel={k.name} grid=({g},1,1) block=({b},1,1) lds={lds}')
    out.append('.amdgcn_target "amdgcn-amd-amdhsa--gfx950"')
    seen = set()
    for k, g, b, lds in kernels:
        if k.name in seen: continue
        seen.add(k.name); out.append(k.text())
    open(path, 'w').write('\n'.join(out))
def full(path, mlp_kw={}, conv_kw={}, prep_kw={}, comb_kw={}):
    import k_mlp, k_comb, k_conv, k_prep
    p, pl = k_prep.build(**prep_kw); cv, cl = k_conv.build(**conv_kw); m, ml = k_mlp.build(**mlp_kw); c, _ = k_comb.build(**comb_kw)
    make(path, [(p, k_prep.GRID, 256, pl), (cv, 576, 256, cl), (m, 256, 512, ml), (c, 576, 256, 0)])
if __name__ == '__main__':
    full('t_full.s', mlp_kw=dict(stamps=True))
    full(FINAL)
```

```python
import re

class Tok:
    __slots__ = ('kind', 'seq')
    def __init__(self, kind, seq): self.kind = kind; self.seq = seq

class Kern:
    def __init__(self, name, nvgpr, nsgpr=96, accum=None):
        self.name = name; self.nvgpr = nvgpr; self.nsgpr = nsgpr
        self.accum = accum if accum is not None else min(256, (nvgpr + 3) // 4 * 4)
        self.lines = []
        self.cnt = {'lg': 0, 'vm': 0}
        self.done = {'lg': 0, 'vm': 0}
    def I(self, s):
        for l in s.strip('\n').split('\n'):
            l = l.strip()
            if l: self.lines.append(('    ' + l) if not l.endswith(':') else l)
    def C(self, s): self.lines.append('    ; ' + s)
    def label(self, s): self.lines.append(s + ':')
    def ds(self, s):
        self.I(s); self.cnt['lg'] += 1; return Tok('lg', self.cnt['lg'])
    def vm(self, s):
        self.I(s); self.cnt['vm'] += 1; return Tok('vm', self.cnt['vm'])
    def wait(self, *toks):
        need = {}
        for t in toks:
            if t is None: continue
            if t.seq > self.done[t.kind]:
                need[t.kind] = max(need.get(t.kind, 0), t.seq)
        parts = []
        for kind, seq in need.items():
            n = self.cnt[kind] - seq
            mx = 15 if kind == 'lg' else 63
            n = min(n, mx)
            parts.append(('lgkmcnt(%d)' if kind == 'lg' else 'vmcnt(%d)') % n)
            self.done[kind] = self.cnt[kind] - n
        if parts: self.I('s_waitcnt ' + ' '.join(parts))
    def waitall(self, lg=True, vm=True):
        parts = []
        if vm: parts.append('vmcnt(0)'); self.done['vm'] = self.cnt['vm']
        if lg: parts.append('lgkmcnt(0)'); self.done['lg'] = self.cnt['lg']
        self.I('s_waitcnt ' + ' '.join(parts))
    def raw_wait(self, vm=None, lg=None):
        parts = []
        if vm is not None:
            parts.append('vmcnt(%d)' % vm); self.done['vm'] = max(self.done['vm'], self.cnt['vm'] - vm)
        if lg is not None:
            parts.append('lgkmcnt(%d)' % lg); self.done['lg'] = max(self.done['lg'], self.cnt['lg'] - lg)
        self.I('s_waitcnt ' + ' '.join(parts))
    def stamp_init(self, on, sbase=64, off=0):
        self.st_on = on; self.st_base = sbase; self.st_n = 0; self.st_off = off
    def stamp(self):
        if getattr(self, 'st_on', False):
            self.I(f's_memrealtime s[{self.st_base+2*self.st_n}:{self.st_base+2*self.st_n+1}]'); self.st_n += 1
    def stamp_store(self, srd, nmax=None, tmp='v2', tmp2='v3', st='s60', idreg='s2'):
        if getattr(self, 'st_on', False):
            self.I('s_waitcnt lgkmcnt(0)')
            self.I(f's_cmp_eq_u32 s33, 0\ns_cbranch_scc0 L_nost_{self.name}')
            self.I(f's_lshl_b32 {st}, {idreg}, 6\ns_add_u32 {st}, {st}, {self.st_off}')
            self.I('s_mov_b64 exec, 1')
            for i in range(nmax or self.st_n):
                self.I(f'v_mov_b32 {tmp}, s{self.st_base+2*i}\nv_mov_b32 {tmp2}, 0')
                self.I(f'buffer_store_dword {tmp}, {tmp2}, {srd}, {st} offen offset:{4*i}')
            self.I('s_waitcnt vmcnt(0)')
            self.label(f'L_nost_{self.name}')
    def nop(self, n):
        while n > 0:
            k = min(n, 16); self.I('s_nop %d' % (k - 1)); n -= k
    def text(self):
        body = '\n'.join(self.lines)
        return f'''.text
.globl {self.name}
.p2align 8
.type {self.name},@function
{self.name}:
{body}
.section .rodata,"a"
.p2align 6
.amdhsa_kernel {self.name}
  .amdhsa_next_free_vgpr {self.nvgpr}
  .amdhsa_next_free_sgpr {self.nsgpr}
  .amdhsa_accum_offset {self.accum}
  .amdhsa_group_segment_fixed_size 0
  .amdhsa_kernarg_size 136
  .amdhsa_user_sgpr_count 2
  .amdhsa_user_sgpr_kernarg_segment_ptr 1
  .amdhsa_system_sgpr_workgroup_id_x 1
  .amdhsa_float_denorm_mode_32 3
.end_amdhsa_kernel
'''

_REG = re.compile(r'\b([vsa])(\d+)\b|\b([vsa])\[(\d+):(\d+)\]|\b(vcc|exec|m0|scc)\b')
def regs(op):
    out = set()
    for m in _REG.finditer(op):
        if m.group(1): out.add((m.group(1), int(m.group(2))))
        elif m.group(3):
            for i in range(int(m.group(4)), int(m.group(5)) + 1): out.add((m.group(3), i))
        elif m.group(6): out.add((m.group(6), 0))
    return out
TRANS = ('v_exp_f32', 'v_log_f32', 'v_rcp_f32', 'v_rsq_f32', 'v_sqrt_f32', 'v_sin_f32', 'v_cos_f32')
def parse(line):
    l = line.split(';')[0].strip()
    if not l or l.endswith(':') or l.startswith('.'): return None
    parts = l.split(None, 1)
    mn = parts[0]; rest = parts[1] if len(parts) > 1 else ''
    ops = [o.strip() for o in re.split(r',(?![^\[]*\])', rest)] if rest else []
    d = dict(mn=mn, ops=ops, w=set(), r=set(), text=l)
    base = re.sub(r'_(e32|e64|dpp|sdwa)$', '', mn)
    d['base'] = base
    if mn.startswith('v_mfma'):
        d['cls'] = 'mfma'; d['w'] = regs(ops[0]); d['A'] = regs(ops[1]); d['B'] = regs(ops[2]); d['Cc'] = regs(ops[3])
        d['r'] = d['A'] | d['B'] | d['Cc']
        d['passes'] = 8 if '32x32x16' in mn else 4
    elif mn.startswith('v_'):
        d['cls'] = 'valu'
        if base.startswith('v_cmp'):
            d['w'] = regs(ops[0]); d['r'] = set().union(*[regs(o) for o in ops[1:]])
            if base.startswith('v_cmpx'): d['w'] |= {('exec', 0)}
        elif base in ('v_swap_b32', 'v_permlane32_swap_b32', 'v_permlane16_swap_b32'):
            d['w'] = regs(ops[0]) | regs(ops[1]); d['r'] = set(d['w'])
        elif base in ('v_add_co_u32', 'v_sub_co_u32', 'v_addc_co_u32', 'v_subb_co_u32'):
            d['w'] = regs(ops[0]) | regs(ops[1]); d['r'] = set().union(*[regs(o) for o in ops[2:]])
        else:
            d['w'] = regs(ops[0]); d['r'] = set().union(*[regs(o) for o in ops[1:]]) if len(ops) > 1 else set()
            if base in ('v_fmac_f32', 'v_dot2c_f32_bf16', 'v_pk_fmac_f16') or 'dpp' in mn or base.endswith('d16') : d['r'] |= d['w']
            if base == 'v_cndmask_b32' and len(ops) == 3: d['r'] |= {('vcc', 0)}
        d['trans'] = base in TRANS
        d['dpp'] = ('dpp' in mn) or any('row_' in o or 'quad_perm' in o for o in ops)
        d['lane'] = base in ('v_readlane_b32', 'v_readfirstlane_b32')
        d['perm'] = base.startswith('v_permlane')
    elif mn.startswith('ds_'):
        d['cls'] = 'ds'
        if 'read' in mn or 'bpermute' in mn or 'swizzle' in mn:
            d['w'] = regs(ops[0]); d['r'] = set().union(*[regs(o) for o in ops[1:]])
            if 'd16' in mn: d['r'] |= d['w']
        else:
            d['r'] = set().union(*[regs(o) for o in ops])
    elif mn.startswith('buffer_') or mn.startswith('global_'):
        d['cls'] = 'vmem'
        allr = set().union(*[regs(o) for o in ops]) if ops else set()
        if 'lds' in l.split() :
            d['r'] = allr | {('m0', 0)}; d['dma'] = True
        elif 'load' in mn:
            d['w'] = regs(ops[0]); d['r'] = set().union(*[regs(o) for o in ops[1:]])
        else:
            d['r'] = allr
            d['wide'] = ('x4' in mn or 'x3' in mn); d['data'] = regs(ops[0]) if mn.startswith('buffer_') else regs(ops[1])
    elif mn.startswith('s_'):
        d['cls'] = 'salu'
        if mn in ('s_nop',): d['nop'] = int(ops[0]) + 1
        elif mn.startswith('s_cmp') or mn.startswith('s_bitcmp'): d['r'] = set().union(*[regs(o) for o in ops])
        elif mn in ('s_waitcnt', 's_barrier', 's_endpgm', 's_branch', 's_setprio', 's_sleep') or mn.startswith('s_cbranch'): pass
        elif mn == 's_set_gpr_idx_on': d['w'] = {('m0', 0)}; d['r'] = regs(ops[0])
        elif mn == 's_set_gpr_idx_off': pass
        else:
            d['w'] = regs(ops[0]) if ops else set(); d['r'] = set().union(*[regs(o) for o in ops[1:]]) if len(ops) > 1 else set()
            if 'saveexec' in mn: d['w'] |= {('exec', 0)}
    else:
        d['cls'] = 'other'
    return d

def hazards(lines, name=''):
    ins = [p for p in (parse(l) for l in lines) if p]
    errs = []
    def isv(r): return r[0] in ('v', 'a')
    for i, c in enumerate(ins):
        dist = 0
        j = i - 1
        while j >= 0 and dist < 20:
            p = ins[j]
            def need(n, why, regsx):
                if dist < n: errs.append(f'{name}: need {n} wait states, have {dist}: [{p["text"]}] -> [{c["text"]}] ({why} {sorted(regsx)[:3]})')
            pw = p['w']
            if p['cls'] == 'valu':
                vw = {r for r in pw if isv(r)}; sw = {r for r in pw if not isv(r)}
                if c['cls'] == 'mfma' and vw & c['r']: need(2, 'valu->mfma', vw & c['r'])
                if c['cls'] == 'valu':
                    if p.get('trans') and (vw & c['r']): need(1, 'trans->valu', vw & c['r'])
                    if c.get('dpp') and (vw & c['r']): need(2, 'valu->dpp', vw & c['r'])
                    if c.get('perm') and (vw & c['r']): need(2, 'valu->permlane', vw & c['r'])
                    if c.get('lane') and (vw & c['r']): need(1, 'valu->readlane', vw & c['r'])
                    if sw & c['r']: need(2, 'valu sgpr->valu', sw & c['r'])
                    if ('exec', 0) in pw and c.get('dpp'): need(5, 'exec->dpp', {('exec', 0)})
                if c['cls'] == 'mfma' and ('exec', 0) in pw: need(4, 'valu exec->mfma', {('exec', 0)})
                if c['cls'] == 'vmem' and (sw & c['r']): need(5, 'valu sgpr->vmem', sw & c['r'])
                if c['cls'] == 'salu' and (sw & c['r']): need(1, 'valu sgpr->salu(padded)', sw & c['r'])
                if p.get('trans') and c['cls'] in ('ds', 'vmem') and (vw & c['r']): need(1, 'trans->mem', vw & c['r'])
            if p['cls'] == 'mfma':
                n = {4: 8, 8: 12}[p['passes']]
                if c['cls'] == 'valu' and c['base'].startswith('v_pk_') and 'f32' in c['base']: need(n + 2, 'mfma->packed f32', set())
                if c['cls'] == 'valu' and (pw & (c['r'] | c['w'])): need(n, 'mfma->valu', pw & (c['r'] | c['w']))
                if c['cls'] in ('ds', 'vmem') and (pw & (c['r'] | c['w'])): need(n, 'mfma->mem', pw & (c['r'] | c['w']))
                if c['cls'] == 'mfma':
                    if pw & (c['A'] | c['B']): need(n, 'mfma->mfma AB', pw & (c['A'] | c['B']))
                    if (pw & c['Cc']) and pw != c['Cc']: need({4: 6, 8: 10}[p['passes']], 'mfma->mfma C partial', pw & c['Cc'])
                if c['cls'] == 'valu' and (p['Cc'] & c['w']): need({4: 3, 8: 7}[p['passes']], 'mfma srcC WAR', p['Cc'] & c['w'])
            if p['cls'] == 'vmem' and p.get('wide') and c['cls'] == 'valu' and (p['data'] & c['w']): need(2, 'wide store WAR', p['data'] & c['w'])
            if p['cls'] == 'salu' and ('m0', 0) in pw and c.get('dma'): need(1, 'm0->dma', {('m0', 0)})
            dist += p.get('nop', 1)
            j -= 1
    return errs
```

```python
from asmlib import Kern, hazards
from layout import *
def vr(a, n): return f'v[{a}:{a+n-1}]'
def build(local=True, ldflags=''):
    k = Kern('comb_kernel', 64, 48)
    I = k.I
    I('s_cmp_ge_u32 s2, 576\ns_cbranch_scc1 L_comb_end')
    I('s_load_dwordx2 s[20:21], s[0:1], 88\ns_load_dwordx2 s[22:23], s[0:1], 112\ns_load_dwordx2 s[26:27], s[0:1], 128')
    if local:
        I('s_and_b32 s37, s2, 7\ns_lshr_b32 s38, s2, 3\ns_and_b32 s35, s38, 3\ns_lshl_b32 s37, s37, 2\ns_add_u32 s35, s35, s37')
        I('s_lshr_b32 s38, s38, 2\ns_and_b32 s33, s38, 1\ns_lshr_b32 s36, s38, 1')
    else:
        I('s_and_b32 s33, s2, 1\ns_lshr_b32 s34, s2, 1')
        I('s_mul_i32 s35, s34, 7282\ns_lshr_b32 s35, s35, 16')
        I('s_mul_i32 s36, s35, 9\ns_sub_u32 s36, s34, s36')
    I('v_and_b32 v1, 63, v0\nv_lshrrev_b32 v2, 6, v0')
    I('v_and_b32 v3, 15, v1\nv_lshrrev_b32 v4, 4, v1')
    I(f's_mul_i32 s37, s35, {8*73728}\ns_lshl_b32 s38, s36, 13\ns_add_u32 s37, s37, s38\ns_lshl_b32 s38, s33, 12\ns_add_u32 s37, s37, s38\ns_add_u32 s37, s37, {OFF_PART}')
    I('v_lshlrev_b32 v5, 4, v0')
    I('s_lshl_b32 s38, s36, 6\nv_lshlrev_b32 v6, 4, v2\nv_lshlrev_b32 v7, 2, v4\nv_add_u32 v6, v6, v7\nv_add_u32 v6, s38, v6')
    I('s_lshl_b32 s38, s35, 6\ns_lshl_b32 s39, s33, 5\ns_add_u32 s38, s38, s39\nv_add_u32 v7, s38, v3')
    I('v_mul_u32_u24 v7, 1152, v7\nv_lshlrev_b32 v8, 1, v6\nv_add_u32 v7, v7, v8')
    I('v_lshlrev_b32 v9, 2, v6')
    I('s_waitcnt lgkmcnt(0)')
    I(f's_mov_b32 s4, s26\ns_mov_b32 s5, s27\ns_mov_b32 s6, {WS_BYTES}\ns_mov_b32 s7, 0x20000')
    I('s_mov_b32 s8, s20\ns_mov_b32 s9, s21\ns_mov_b32 s10, 1152\ns_mov_b32 s11, 0x20000')
    I('s_mov_b32 s12, s22\ns_mov_b32 s13, s23\ns_mov_b32 s14, 2359296\ns_mov_b32 s15, 0x20000')
    toks = []
    for p in range(8):
        I(f's_add_u32 s38, s37, {p*73728}')
        toks.append(k.vm(f'buffer_load_dwordx4 {vr(16+4*p,4)}, v5, s[4:7], s38 offen {ldflags}'))
    I(f's_mov_b32 s38, {OFF_X1R}')
    k.vm('buffer_load_dwordx2 v[48:49], v7, s[4:7], s38 offen')
    I(f's_mov_b32 s39, {OFF_X1R + 16*1152}')
    k.vm('buffer_load_dwordx2 v[50:51], v7, s[4:7], s39 offen')
    I(f's_mov_b32 s40, {OFF_MODF + 3*2304}')
    k.vm('buffer_load_dwordx4 v[52:55], v9, s[4:7], s40 offen')
    last = k.vm('buffer_load_dwordx2 v[56:57], v8, s[8:11], 0 offen')
    acc = [10, 11, 12, 13, 58, 59, 60, 61]
    for p in range(8):
        k.wait(toks[p])
        b = 16 + 4*p
        for d in range(4):
            lo, hi = acc[2*d], acc[2*d+1]
            if p == 0:
                I(f'v_lshlrev_b32 v{lo}, 16, v{b+d}\nv_and_b32 v{hi}, 0xffff0000, v{b+d}')
            else:
                I(f'v_lshlrev_b32 v14, 16, v{b+d}\nv_and_b32 v15, 0xffff0000, v{b+d}\nv_add_f32 v{lo}, v{lo}, v14\nv_add_f32 v{hi}, v{hi}, v15')
    k.wait(last)
    I('v_lshlrev_b32 v16, 16, v56\nv_and_b32 v17, 0xffff0000, v56\nv_lshlrev_b32 v18, 16, v57\nv_and_b32 v19, 0xffff0000, v57')
    for h in range(2):
        x = 48 + 2*h
        I(f'v_lshlrev_b32 v20, 16, v{x}\nv_and_b32 v21, 0xffff0000, v{x}\nv_lshlrev_b32 v22, 16, v{x+1}\nv_and_b32 v23, 0xffff0000, v{x+1}')
        for r in range(4):
            a = acc[4*h + r]
            I(f'v_add_f32 v{a}, v{a}, v{16+r}\nv_fma_f32 v{a}, v{a}, v{52+r}, v{20+r}')
        I(f'v_cvt_pk_bf16_f32 v{24+2*h}, v{acc[4*h]}, v{acc[4*h+1]}\nv_cvt_pk_bf16_f32 v{25+2*h}, v{acc[4*h+2]}, v{acc[4*h+3]}')
    I('buffer_store_dwordx2 v[24:25], v7, s[12:15], 0 offen')
    I(f's_mov_b32 s38, {16*1152}')
    I('buffer_store_dwordx2 v[26:27], v7, s[12:15], s38 offen')
    I('s_waitcnt vmcnt(0)')
    k.label('L_comb_end')
    I('s_endpgm')
    for e in hazards(k.lines, 'comb'): print('HAZARD', e)
    return k, 0
if __name__ == '__main__':
    k, _ = build(); print(len(k.lines))
```

```python
from asmlib import Kern, hazards
from layout import *
import struct
def vr(a, n): return f'v[{a}:{a+n-1}]'
KC = 4416
L_H = 20480
L_U = L_H + 48 * 160
LDS_BYTES = L_U + 32 * 160
XT_PITCH = 4096

def build(stamps=False, wpf=True):
    k = Kern('conv_kernel', 128, 96)
    I = k.I
    k.stamp_init(stamps, 64, OFF_DBG + 0x10000)
    I('s_cmp_ge_u32 s2, 576\ns_cbranch_scc1 L_conv_end')
    I('s_load_dwordx2 s[20:21], s[0:1], 48\ns_load_dwordx2 s[26:27], s[0:1], 128')
    I('s_cmp_lt_u32 s2, 288\ns_cselect_b32 s54, 64, 80\ns_load_dwordx2 s[56:57], s[0:1], s54')
    k.stamp()
    I('v_and_b32 v1, 63, v0\nv_lshrrev_b32 v2, 6, v0\nv_and_b32 v3, 15, v1\nv_lshrrev_b32 v4, 4, v1')
    I('v_readfirstlane_b32 s33, v2')
    I('v_lshlrev_b32 v5, 4, v0')
    I('s_waitcnt lgkmcnt(0)')
    I(f's_mov_b32 s4, s26\ns_mov_b32 s5, s27\ns_mov_b32 s6, {WS_BYTES}\ns_mov_b32 s7, 0x20000')
    I('s_and_b32 s34, s2, 0xfffffffe\ns_lshl_b32 s34, s34, 1\ns_load_dword s35, s[20:21], s34')
    I('v_lshrrev_b32 v6, 2, v0\nv_mul_u32_u24 v6, 36864, v6\nv_and_b32 v7, 3, v0\nv_lshlrev_b32 v7, 4, v7\nv_add_u32 v30, v6, v7')
    I(f's_lshl_b32 s36, s2, 6\ns_add_u32 s37, s36, {OFF_NT}\ns_add_u32 s36, s36, {OFF_UT}')
    tn = k.vm('buffer_load_dwordx4 v[16:19], v30, s[4:7], s37 offen')
    I(f's_mul_i32 s38, s2, {KG_PITCH}\ns_add_u32 s38, s38, {OFF_KG}')
    k.vm('buffer_load_dwordx4 v[24:27], v5, s[4:7], s38 offen')
    tkk = k.vm('buffer_load_dwordx2 v[28:29], v5, s[4:7], s38 offen offset:16')
    tu = k.vm('buffer_load_dwordx4 v[20:23], v30, s[4:7], s36 offen')
    I(f'v_mul_u32_u24 v6, 2304, v1\ns_lshl_b32 s39, s2, 2\ns_add_u32 s39, s39, {OFF_MODP}')
    tm = None
    I('v_cmp_gt_u32 vcc, 6, v1\ns_nop 1\ns_and_saveexec_b64 s[42:43], vcc')
    for p in range(9):
        I(f's_add_u32 s40, s39, {p*13824}')
        tm = k.vm(f'buffer_load_dword v{32+p}, v6, s[4:7], s40 offen')
    I('s_mov_b64 exec, s[42:43]')
    I(f's_cmp_lt_u32 s2, 32\ns_cbranch_scc0 L_conv_nofl\ns_lshl_b32 s40, s2, 7\ns_add_u32 s40, s40, {OFF_FLAG}')
    I('v_mov_b32 v44, 0\nv_lshlrev_b32 v7, 2, v0\nv_cmp_gt_u32 vcc, 32, v0\ns_nop 1\ns_and_saveexec_b64 s[42:43], vcc')
    I('buffer_store_dword v44, v7, s[4:7], s40 offen')
    I('s_mov_b64 exec, s[42:43]')
    k.label('L_conv_nofl')
    for r in range(4): I(f'v_mov_b32 v{44+r}, 0')
    I(f'v_cmp_gt_u32 vcc, 160, v0\nv_add_u32 v7, {L_H}, v5\ns_nop 0\ns_and_saveexec_b64 s[42:43], vcc')
    k.ds('ds_write_b128 v7, v[44:47]')
    I('s_mov_b64 exec, s[42:43]')
    I(f'v_lshrrev_b32 v7, 3, v0\nv_mul_u32_u24 v7, {KC}, v7\nv_and_b32 v8, 7, v0\nv_lshlrev_b32 v8, 4, v8\nv_add_u32 v7, v7, v8\nv_add_u32 v7, 4096, v7')
    I('v_cmp_gt_u32 vcc, 32, v0\ns_nop 1\ns_and_saveexec_b64 s[42:43], vcc')
    k.ds('ds_write_b128 v7, v[44:47]')
    I('s_mov_b64 exec, s[42:43]')
    k.wait(tkk)
    k.stamp()
    W = [24, 25, 26, 27, 28, 29]
    k.ds('ds_write_b128 v5, v[24:27]')
    for j in range(4): I(f'v_alignbit_b32 v{48+j}, v{W[j+1]}, v{W[j]}, 16')
    k.ds(f'ds_write_b128 v5, v[48:51] offset:{KC}')
    for j in range(4): I(f'v_mov_b32 v{52+j}, v{W[j+1]}')
    k.ds(f'ds_write_b128 v5, v[52:55] offset:{2*KC}')
    for j in range(4): I(f'v_alignbit_b32 v{56+j}, v{W[j+2]}, v{W[j+1]}, 16')
    k.ds(f'ds_write_b128 v5, v[56:59] offset:{3*KC}')
    k.wait(tm)
    for p in range(1, 9): I(f'v_add_f32 v32, v32, v{32+p}')
    I('v_cvt_pk_bf16_f32 v32, v32, v32\nv_and_b32 v32, 0xffff0000, v32')
    I('v_add_f32 v33, 1.0, v32\nv_cvt_pk_bf16_f32 v33, v33, v33\nv_and_b32 v33, 0xffff0000, v33')
    I('v_cmp_eq_u32 vcc, 1, v1\nv_cmp_eq_u32 s[42:43], 4, v1\ns_nop 1\ns_or_b64 vcc, vcc, s[42:43]\ns_nop 1')
    I('v_cndmask_b32 v32, v32, v33, vcc\ns_nop 1')
    I('v_readlane_b32 s44, v32, 0\nv_readlane_b32 s45, v32, 1\nv_readlane_b32 s46, v32, 2')
    I('s_cmp_eq_u32 s33, 0\ns_cbranch_scc0 L_conv_nomod')
    I('v_sub_u32 v34, 8, v1\nv_cmp_gt_u32 vcc, 3, v1\ns_nop 1\nv_cndmask_b32 v34, v34, v1, vcc')
    I(f'v_mul_u32_u24 v34, 2304, v34\ns_lshl_b32 s40, s2, 2\ns_add_u32 s40, s40, {OFF_MODF}')
    I('v_cmp_gt_u32 vcc, 6, v1\ns_nop 1\ns_and_saveexec_b64 s[42:43], vcc')
    I('buffer_store_dword v32, v34, s[4:7], s40 offen')
    I('s_mov_b64 exec, s[42:43]')
    k.label('L_conv_nomod')
    k.wait(tn)
    for j in range(4):
        I(f'v_lshlrev_b32 v36, 16, v{16+j}\nv_and_b32 v37, 0xffff0000, v{16+j}')
        I('v_mul_f32 v36, s45, v36\nv_mul_f32 v37, s45, v37\nv_cvt_pk_bf16_f32 v38, v36, v37')
        I('v_lshlrev_b32 v36, 16, v38\nv_and_b32 v37, 0xffff0000, v38')
        I(f'v_add_f32 v36, s44, v36\nv_add_f32 v37, s44, v37\nv_cvt_pk_bf16_f32 v{16+j}, v36, v37')
    I('v_lshrrev_b32 v7, 3, v0\nv_mul_u32_u24 v7, 160, v7\nv_and_b32 v8, 7, v0\nv_lshlrev_b32 v8, 4, v8\nv_add_u32 v7, v7, v8')
    k.ds(f'ds_write_b128 v7, v[16:19] offset:{L_H + 16*160}')
    k.wait(tu)
    k.ds(f'ds_write_b128 v7, v[20:23] offset:{L_U}')
    VA, VB = 8, 9
    I('v_sub_u32 v10, 3, v3\nv_and_b32 v10, 3, v10')
    I(f'v_mul_u32_u24 v11, {KC}, v10\nv_lshlrev_b32 v12, 3, v4\nv_sub_u32 v12, v12, v3\nv_sub_u32 v12, v12, v10\nv_add_u32 v12, 2047, v12\nv_lshlrev_b32 v12, 1, v12\nv_add_u32 v14, v11, v12')
    I(f'v_mul_u32_u24 v11, 160, v3\nv_lshlrev_b32 v12, 4, v4\nv_add_u32 v11, v11, v12\nv_add_u32 v15, {L_H + 16*160}, v11')
    I('s_mov_b32 s48, 0\ns_mov_b32 s49, 0\ns_mov_b32 s50, 0\ns_mov_b32 s51, 6')
    I('s_cmp_eq_u32 s33, 0\ns_cselect_b32 s49, 6, s49\ns_cselect_b32 s51, 0, s51')
    I('s_cmp_eq_u32 s33, 1\ns_cselect_b32 s48, 12, s48\ns_cselect_b32 s49, 2, s49\ns_cselect_b32 s51, 4, s51')
    I('s_cmp_eq_u32 s33, 2\ns_cselect_b32 s50, 8, s50')
    I('s_cmp_eq_u32 s33, 3\ns_cselect_b32 s50, 20, s50')
    ACC = (64, 80); AF = 96
    BF = 48
    for r in range(32): I(f'v_mov_b32 v{64+r}, 0')
    k.waitall()
    I('s_barrier')
    k.stamp()
    if wpf:
        I('s_mov_b32 s58, 5308416\ns_mov_b32 s59, 0x20000')
        I('s_cmp_lt_u32 s2, 288\ns_cselect_b32 s54, 0, 288\ns_sub_u32 s54, s2, s54\ns_mul_i32 s54, s54, 18432')
        I('v_lshlrev_b32 v10, 7, v0\nv_add_u32 v10, s54, v10\nv_cmp_gt_u32 vcc, 144, v0\ns_nop 1\nv_cndmask_b32 v10, -16, v10, vcc')
        I('buffer_load_dword v31, v10, s[56:59], 0 offen')
    def a_read(slot, o):
        off = 32 * (3 - o)
        k.ds(f'ds_read_b64 {vr(AF+4*slot,2)}, v{VA} offset:{off}')
        return k.ds(f'ds_read_b64 {vr(AF+4*slot+2,2)}, v{VA} offset:{off+8}')
    def b_read(buf, s):
        return k.ds(f'ds_read_b128 {vr(BF+8*buf+4*s,4)}, v{VB} offset:{64*s}')
    def segment(name, acc, j, s_d0, s_n):
        I(f's_cmp_eq_u32 s{s_n}, 0\ns_cbranch_scc1 L_{name}_skip')
        I(f's_lshl_b32 s52, s{s_d0}, 7\ns_add_u32 s52, s52, 96\nv_subrev_u32 v{VA}, s52, v14')
        I(f's_mul_i32 s52, s{s_d0}, 160\ns_sub_u32 s52, {j*16*160}, s52\nv_add_u32 v{VB}, s52, v15')
        tok = {}
        for o in (-2, -1):
            slot = o % 8
            k.ds(f'ds_read_b64 {vr(AF+4*slot,2)}, v{VA} offset:{32*(3-o)}')
            tok[slot] = k.ds(f'ds_read_b64 {vr(AF+4*slot+2,2)}, v{VA} offset:{32*(3-o)+8}')
        for o in range(4): tok[o] = a_read(o, o)
        btok = {0: None, 1: None}
        b_read(0, 0); btok[0] = b_read(0, 1)
        state = dict(tok=tok, btok=btok)
        def unit(par):
            sl = lambda o: (4 * par + o) % 8
            I(f'v_subrev_u32 v{VA}, 128, v{VA}\nv_subrev_u32 v{VB}, 160, v{VB}')
            nb = 1 - par
            b_read(nb, 0); state['btok'][nb] = b_read(nb, 1)
            for o in (0, 1): state['tok'][sl(4 + o)] = a_read(sl(4 + o), o)
            bb = BF + 8 * par
            k.wait(state['btok'][par], *[state['tok'][sl(o)] for o in (-2, -1, 0, 1)])
            for i in range(4): I(f'v_mfma_f32_16x16x32_bf16 {vr(acc+4*i,4)}, {vr(AF+4*sl(i-2),4)}, {vr(bb+4,4)}, {vr(acc+4*i,4)}')
            k.wait(*[state['tok'][sl(o)] for o in (2, 3)])
            for i in range(2): I(f'v_mfma_f32_16x16x32_bf16 {vr(acc+4*i,4)}, {vr(AF+4*sl(i),4)}, {vr(bb,4)}, {vr(acc+4*i,4)}')
            for o in (2, 3): state['tok'][sl(4 + o)] = a_read(sl(4 + o), o)
            for i in range(2, 4): I(f'v_mfma_f32_16x16x32_bf16 {vr(acc+4*i,4)}, {vr(AF+4*sl(i),4)}, {vr(bb,4)}, {vr(acc+4*i,4)}')
        def body():
            unit(0); unit(1)
        save = len(k.lines)
        body(); del k.lines[save:]
        body(); second = k.lines[save:]; del k.lines[save:]
        k.label(f'L_{name}_loop')
        st = len(k.lines)
        body()
        assert k.lines[st:] == second
        for e in hazards(second + second, name): print('HAZARD', e)
        I(f's_sub_u32 s{s_n}, s{s_n}, 1\ns_cmp_lg_u32 s{s_n}, 0\ns_cbranch_scc1 L_{name}_loop')
        k.waitall(vm=False)
        k.label(f'L_{name}_skip')
    segment('segA', ACC[0], 0, 48, 49)
    segment('segB', ACC[1], 1, 50, 51)
    k.stamp()
    I('s_barrier')
    k.stamp()
    I('v_lshlrev_b32 v10, 4, v1')
    I('s_cmp_lt_u32 s33, 2\ns_cbranch_scc0 L_conv_noA')
    I('s_lshl_b32 s52, s33, 12\nv_add_u32 v11, s52, v10\ns_nop 4')
    for i in range(4): I(f'ds_write_b128 v11, {vr(ACC[0]+4*i,4)} offset:{i*1024}')
    k.label('L_conv_noA')
    I('s_cmp_gt_u32 s33, 0\ns_cbranch_scc0 L_conv_noB')
    I('s_add_u32 s52, s33, 1\ns_lshl_b32 s52, s52, 12\nv_add_u32 v11, s52, v10\ns_nop 4')
    for i in range(4): I(f'ds_write_b128 v11, {vr(ACC[1]+4*i,4)} offset:{i*1024}')
    k.label('L_conv_noB')
    I('s_waitcnt lgkmcnt(0)\ns_barrier')
    I('s_lshl_b32 s52, s33, 10\nv_add_u32 v11, s52, v10')
    rt = [k.ds(f'ds_read_b128 {vr(64+4*s,4)}, v11 offset:{s*4096}') for s in range(5)]
    I('v_mul_u32_u24 v12, 160, v3\nv_lshlrev_b32 v13, 3, v4\nv_add_u32 v12, v12, v13\ns_lshl_b32 s52, s33, 5\nv_add_u32 v12, s52, v12')
    th = [k.ds(f'ds_read_b64 {vr(88+2*j,2)}, v12 offset:{L_H + 16*160 + j*16*160}') for j in range(2)]
    tu2 = [k.ds(f'ds_read_b64 {vr(92+2*j,2)}, v12 offset:{L_U + j*16*160}') for j in range(2)]
    I('s_waitcnt lgkmcnt(0)')
    k.done['lg'] = k.cnt['lg']
    I('s_bitcmp1_b32 s2, 0\ns_cselect_b32 s53, 0, 16\ns_lshl_b32 s35, s35, s53\ns_and_b32 s35, s35, 0xffff0000')
    for r in range(4):
        I(f'v_add_f32 v{64+r}, v{64+r}, v{68+r}')
        I(f'v_add_f32 v{72+r}, v{72+r}, v{76+r}\nv_add_f32 v{72+r}, v{72+r}, v{80+r}')
    I('v_mul_u32_u24 v13, 73728, v3\nv_lshlrev_b32 v12, 3, v4\nv_add_u32 v13, v13, v12\ns_lshl_b32 s52, s33, 5\nv_add_u32 v13, s52, v13')
    I(f's_lshl_b32 s52, s2, 7\ns_add_u32 s52, s52, {OFF_X1T}\ns_add_u32 s53, s52, {16*73728}')
    for j in range(2):
        y = 64 + 8 * j
        for d in range(2):
            hreg, ureg = 88 + 2*j + d, 92 + 2*j + d
            y0, y1 = y + 2*d, y + 2*d + 1
            I(f'v_cvt_pk_bf16_f32 v16, v{y0}, v{y1}')
            I(f'v_lshlrev_b32 v17, 16, v{hreg}\nv_and_b32 v18, 0xffff0000, v{hreg}')
            I('v_mul_f32 v17, s35, v17\nv_mul_f32 v18, s35, v18\nv_cvt_pk_bf16_f32 v19, v17, v18')
            I('v_lshlrev_b32 v17, 16, v16\nv_and_b32 v18, 0xffff0000, v16\nv_lshlrev_b32 v20, 16, v19\nv_and_b32 v21, 0xffff0000, v19')
            I('v_add_f32 v17, v17, v20\nv_add_f32 v18, v18, v21\nv_cvt_pk_bf16_f32 v16, v17, v18')
            I('v_lshlrev_b32 v17, 16, v16\nv_and_b32 v18, 0xffff0000, v16')
            I('v_mul_f32 v17, s46, v17\nv_mul_f32 v18, s46, v18\nv_cvt_pk_bf16_f32 v16, v17, v18')
            I('v_lshlrev_b32 v17, 16, v16\nv_and_b32 v18, 0xffff0000, v16')
            I(f'v_lshlrev_b32 v20, 16, v{ureg}\nv_and_b32 v21, 0xffff0000, v{ureg}')
            I(f'v_add_f32 v17, v17, v20\nv_add_f32 v18, v18, v21\nv_cvt_pk_bf16_f32 v{24+2*j+d}, v17, v18')
        I(f'buffer_store_dwordx2 {vr(24+2*j,2)}, v13, s[4:7], s{52+j} offen')
    k.stamp()
    I('s_waitcnt vmcnt(0)')
    k.stamp()
    k.stamp_store('s[4:7]')
    k.label('L_conv_end')
    I('s_endpgm')
    for e in hazards(k.lines, 'conv'): print('HAZARD', e)
    return k, LDS_BYTES
if __name__ == '__main__':
    k, lds = build(); print(len(k.lines), lds)
```

```python
from asmlib import Kern, hazards
from layout import *
import math

SLOT = 24576
PAR_G2 = 6 * SLOT
PAR_B1 = PAR_G2 + 4608
STATS1 = PAR_G2 + 6912
STATS2 = STATS1 + 1024
XS = PAR_G2
LDS_BYTES = max(STATS2 + 1024, XS + 9216)


V_TID, V_LANE = 0, 1
V_T0 = 2
V_DMA, V_DMA2 = 3, 4
V_RD = (5, 6, 7)
V_BIAS, V_ST, V_C1, V_C2, V_FR, V_HW = 8, 9, 10, 11, 12, 13
V_TL, V_Q = 14, 15
V_TMP = 16
V_G = 24
V_B4 = 36
V_PK = 40
V_A = 44
V_ACC = (56, 64)
V_H = 76
V_BF = 112
S_WS, S_W1, S_W2, S_CUR, S_B1 = 4, 8, 12, 16, 28
S_W, S_M, S_P, S_IT, S_OFF, S_D, S_G2, S_B, S_WK, S_T, S_ST, S_STN, S_IDX = 33, 34, 35, 36, 37, 38, 39, 40, 41, 42, 43, 44, 45

def vr(a, n): return f'v[{a}:{a+n-1}]'
def sr(a, n): return f's[{a}:{a+n-1}]'

def build(store_flags='', prefetch=True, stamps=False, no_gelu=False, no_dma=False, no_bar=False, no_mfma=False, no_tr=False, prio=None, nF=2, LA=2, inter=False, stagger=False, pf_late=True, fine=False, classes=False, lean=True, wts=(1.0, 1.0), cls_prio=None, ikr=False):
    k = Kern('mlp_kernel', 256, 96)
    I = k.I
    nst = [0]
    def stamp():
        if stamps:
            I(f's_memrealtime s[{64+2*nst[0]}:{65+2*nst[0]}]')
            if not fine: I(f's_memtime s[{80+2*nst[0]}:{81+2*nst[0]}]')
            nst[0] += 1
    I('s_cmp_ge_u32 s2, 256\ns_cbranch_scc1 L_mlp_end')
    I('s_load_dwordx2 s[20:21], s[0:1], 64\ns_load_dwordx2 s[22:23], s[0:1], 72\ns_load_dwordx2 s[24:25], s[0:1], 80\ns_load_dwordx2 s[26:27], s[0:1], 128')
    if ikr:
        store_flags = 'sc1'
        pass
    stamp()
    I(f'v_and_b32 v{V_LANE}, 63, v0\nv_lshrrev_b32 v{V_T0}, 6, v0')
    lg = {1: 0, 2: 1, 4: 2, 8: 3}[nF]
    I(f's_and_b32 s46, s2, 7\ns_lshr_b32 s47, s2, 3')
    I(f's_and_b32 s{S_P}, s46, {8//nF - 1}\ns_lshl_b32 s{S_P}, s{S_P}, {lg}\ns_and_b32 s48, s47, {nF - 1}\ns_add_u32 s{S_P}, s{S_P}, s48')
    I(f's_lshr_b32 s{S_M}, s46, {3 - lg}\ns_mul_i32 s{S_M}, s{S_M}, {32//nF}\ns_lshr_b32 s48, s47, {lg}\ns_add_u32 s{S_M}, s{S_M}, s48')
    I(f'v_readfirstlane_b32 s{S_W}, v{V_T0}')
    I(f'v_and_b32 v{V_TL}, 15, v{V_LANE}\nv_lshrrev_b32 v{V_Q}, 4, v{V_LANE}')
    t = V_TMP
    I(f'v_lshrrev_b32 v{t}, 3, v{V_LANE}')
    I(f'v_and_b32 v{t+1}, 7, v{V_LANE}')
    I(f'v_and_b32 v{t+2}, 2, v{t}')
    I(f's_and_b32 s46, s{S_W}, 1\ns_lshl_b32 s46, s46, 2')
    I(f'v_or_b32 v{t+2}, s46, v{t+2}')
    I(f'v_xor_b32 v{t+1}, v{t+1}, v{t+2}')
    I(f'v_lshlrev_b32 v{t+1}, 4, v{t+1}')
    I(f's_lshl_b32 s47, s{S_W}, 3')
    I(f'v_add_u32 v{t}, s47, v{t}')
    I(f'v_lshlrev_b32 v{t+3}, 7, v{t}\nv_add_u32 v{V_T0}, v{t+3}, v{t+1}')
    I(f'v_mul_u32_u24 v{t+3}, 9216, v{t}\nv_add_u32 v{V_DMA}, v{t+3}, v{t+1}')
    I(f'v_mul_u32_u24 v{t+3}, 1152, v{t}\nv_add_u32 v{V_DMA2}, v{t+3}, v{t+1}')
    I(f's_lshl_b32 s{S_WK}, s{S_W}, 10')
    I('s_waitcnt lgkmcnt(0)')
    for base, ptr, size in ((S_WS, 26, WS_BYTES), (S_W1, 20, 5308416), (S_W2, 24, 5308416), (S_CUR, 20, 5308416), (S_B1, 22, 9216)):
        I(f's_mov_b32 s{base}, s{ptr}\ns_mov_b32 s{base+1}, s{ptr+1}\ns_mov_b32 s{base+2}, {size}\ns_mov_b32 s{base+3}, 0x20000')
    I(f's_mul_i32 s46, s{S_M}, 73728\ns_add_u32 s46, s46, {OFF_X1T}')
    xt = None
    for b in range(9):
        I(f's_add_u32 m0, s{S_WK}, {b*8192}')
        I(f's_add_u32 s47, s46, {b*64*128}')
        xt = k.vm(f'buffer_load_dwordx4 v{V_T0}, {sr(S_WS,4)}, s47 offen nt lds')
    I(f'v_lshlrev_b32 v{t}, 4, v0')
    I(f's_mov_b32 s46, {OFF_MODF + 4*2304}')
    pa = k.vm(f'buffer_load_dwordx4 {vr(V_G,4)}, v{t}, {sr(S_WS,4)}, s46 offen')
    I(f'v_subrev_u32 v{t+1}, 288, v0\nv_lshlrev_b32 v{t+1}, 3, v{t+1}')
    I(f's_mul_i32 s46, s{S_P}, 1152')
    I(f'v_cmp_gt_u32 vcc, 288, v0')
    I(f'v_add_u32 v{t+1}, s46, v{t+1}\ns_nop 0')
    I(f'v_cndmask_b32 v{t+1}, v{t+1}, -16, vcc')
    pb = k.vm(f'buffer_load_dwordx2 {vr(V_G+4,2)}, v{t+1}, {sr(S_B1,4)}, 0 offen')
    def do_prefetch():
        G = 32 // nF; per = 5184 // G; rows = 576 // G
        I(f's_and_b32 s60, s{S_M}, {G - 1}')
        for rep in range((per + 511) // 512):
            I(f'v_add_u32 v{t+4}, {rep*512}, v0')
            I(f'v_mul_u32_u24 v{t+2}, 7282, v{t+4}\nv_lshrrev_b32 v{t+2}, 16, v{t+2}')
            I(f'v_mul_u32_u24 v{t+3}, 9, v{t+2}\nv_sub_u32 v{t+3}, v{t+4}, v{t+3}')
            I(f's_mul_i32 s61, s60, {rows}\nv_add_u32 v{t+2}, s61, v{t+2}')
            I(f'v_mul_u32_u24 v{t+2}, 9216, v{t+2}\nv_lshlrev_b32 v{t+3}, 7, v{t+3}')
            I(f'v_add_u32 v{t+2}, v{t+2}, v{t+3}')
            I(f's_mul_i32 s61, s{S_P}, 1152\nv_add_u32 v{t+2}, s61, v{t+2}')
            I(f'v_cmp_gt_u32 vcc, {per}, v{t+4}\ns_nop 1\nv_cndmask_b32 v{t+2}, -16, v{t+2}, vcc')
            k.vm(f'buffer_load_dword v{V_H-4}, v{t+2}, {sr(S_W1,4)}, 0 offen')
            I(f'v_lshlrev_b32 v{t+2}, 7, v{t+4}')
            I(f's_mul_i32 s61, s{S_P}, 663552\ns_mul_i32 s62, s60, {per*128}\ns_add_u32 s61, s61, s62')
            I(f'v_add_u32 v{t+2}, s61, v{t+2}')
            I(f'v_cndmask_b32 v{t+2}, -16, v{t+2}, vcc')
            k.vm(f'buffer_load_dword v{V_H-3}, v{t+2}, {sr(S_W2,4)}, 0 offen')
    if prefetch and not pf_late: do_prefetch()
    D1, D2 = 192 * 9216, 192 * 1152
    I(f's_mul_i32 s{S_OFF}, s{S_P}, 1152\ns_mov_b32 s{S_D}, {D1}\ns_mov_b32 s{S_G2}, {(128 - 2*D1) & 0xffffffff}\ns_mov_b32 s{S_B}, {64*9216}')
    VD = (V_DMA, 22, 23)
    I(f'v_add_u32 v{VD[1]}, {64*9216}, v{V_DMA}\nv_add_u32 v{VD[2]}, {128*9216}, v{V_DMA}')
    def dma_m0(slot, b): I(f's_add_u32 m0, s{S_WK}, {slot*SLOT + b*8192}')
    def dma_go(b, kc):
        tok = k.vm(f'buffer_load_dwordx4 v{VD[b]}, {sr(S_CUR,4)}, s{S_OFF} offen lds')
        if b == 2: I(f's_add_u32 s{S_OFF}, s{S_OFF}, s{S_G2 if kc == 2 else S_D}')
        return tok
    def dma_chunk(slot, kc):
        tok = None
        for b in range(3):
            dma_m0(slot, b); I('s_nop 0'); tok = dma_go(b, kc)
        return tok
    c0 = dma_chunk(3, 0); c1 = dma_chunk(4, 1); c2 = dma_chunk(5, 2)
    I(f'v_lshrrev_b32 v{t}, 2, v{V_TL}')
    I(f'v_and_b32 v{t+1}, 3, v{V_LANE}')
    I(f'v_lshlrev_b32 v{t+2}, 3, v{V_Q}\nv_add_u32 v{t+2}, v{t+2}, v{t}\nv_lshlrev_b32 v{t+2}, 7, v{t+2}')
    I(f'v_and_b32 v{t+3}, 2, v{t}')
    I(f'v_and_b32 v{t+4}, 1, v{V_Q}\nv_lshlrev_b32 v{t+4}, 2, v{t+4}\nv_or_b32 v{t+3}, v{t+3}, v{t+4}')
    I(f's_and_b32 s46, s{S_W}, 3\ns_lshl_b32 s46, s46, 1')
    I(f'v_lshrrev_b32 v{t+4}, 1, v{t+1}\nv_add_u32 v{t+4}, s46, v{t+4}\nv_xor_b32 v{t+4}, v{t+4}, v{t+3}\nv_lshlrev_b32 v{t+4}, 4, v{t+4}')
    I(f'v_and_b32 v{t+1}, 1, v{t+1}\nv_lshlrev_b32 v{t+1}, 3, v{t+1}')
    I(f'v_add_u32 v{t+2}, v{t+2}, v{t+4}\nv_add_u32 v{V_RD[0]}, v{t+2}, v{t+1}')
    I(f'v_add_u32 v{V_RD[1]}, {2*SLOT}, v{V_RD[0]}\nv_add_u32 v{V_RD[2]}, {4*SLOT}, v{V_RD[0]}')
    k.wait(pb)
    I(f'v_lshlrev_b32 v{V_G+8}, 16, v{V_G+4}\nv_and_b32 v{V_G+9}, 0xffff0000, v{V_G+4}\nv_lshlrev_b32 v{V_G+10}, 16, v{V_G+5}\nv_and_b32 v{V_G+11}, 0xffff0000, v{V_G+5}')
    I(f'v_cmp_gt_u32 vcc, 288, v0\ns_nop 1')
    for r in range(4): I(f'v_cndmask_b32 v{V_G+r}, v{V_G+8+r}, v{V_G+r}, vcc')
    I(f'v_lshlrev_b32 v{t}, 4, v0\nv_add_u32 v{t}, {PAR_G2}, v{t}')
    I(f'v_cmp_gt_u32 vcc, 432, v0\ns_nop 1\ns_and_saveexec_b64 s[50:51], vcc')
    k.ds(f'ds_write_b128 v{t}, {vr(V_G,4)}')
    I('s_mov_b64 exec, s[50:51]')
    c1v = -2.0 * math.sqrt(2.0 / math.pi) * math.log2(math.e); c2v = c1v * 0.044715
    import struct
    f2u = lambda x: struct.unpack('<I', struct.pack('<f', x))[0]
    I(f'v_mov_b32 v{V_C1}, {f2u(c1v):#x}\nv_mov_b32 v{V_C2}, {f2u(c2v):#x}')
    I(f's_and_b32 s46, s{S_W}, 3\ns_lshr_b32 s47, s{S_W}, 2')
    I(f's_lshl_b32 s48, s46, 6\ns_add_u32 s48, s48, {PAR_B1}')
    I(f'v_lshlrev_b32 v{V_BIAS}, 4, v{V_Q}\nv_add_u32 v{V_BIAS}, s48, v{V_BIAS}')
    I(f's_mul_i32 s48, s47, 36864\nv_lshlrev_b32 v{V_FR}, 4, v{V_LANE}\nv_add_u32 v{V_FR}, s48, v{V_FR}')
    I(f's_lshr_b32 s48, s46, 1\ns_lshl_b32 s48, s48, 10\ns_mul_i32 s49, s47, 36864\ns_add_u32 s48, s48, s49')
    I(f's_and_b32 s49, s46, 1\ns_lshl_b32 s49, s49, 9\ns_add_u32 s48, s48, s49\ns_add_u32 s48, s48, {3*SLOT}')
    I(f'v_lshrrev_b32 v{t}, 1, v{V_Q}\nv_lshlrev_b32 v{t}, 8, v{t}\nv_lshlrev_b32 v{t+1}, 4, v{V_TL}\nv_add_u32 v{t}, v{t}, v{t+1}')
    I(f'v_and_b32 v{t+1}, 1, v{V_Q}\nv_lshlrev_b32 v{t+1}, 3, v{t+1}\nv_add_u32 v{t}, v{t}, v{t+1}\nv_add_u32 v{V_HW}, s48, v{t}')
    I(f'v_lshlrev_b32 v{V_ST}, 4, v{V_LANE}\nv_add_u32 v{V_ST}, s{S_WK}, v{V_ST}')
    I(f's_lshl_b32 s48, s{S_M}, 3\ns_add_u32 s48, s48, s{S_P}\ns_mul_i32 s{S_STN}, s48, 73728\ns_add_u32 s{S_STN}, s{S_STN}, {OFF_PART}\ns_mov_b32 s{S_ST}, 0x7ff00000')
    X, H2, PG = V_BF, V_BF + 36, V_BF + 108
    ONES, A1, A2 = V_A, V_ACC[0], V_ACC[0] + 4
    for r in range(4): I(f'v_mov_b32 v{ONES+r}, 0x3f803f80')
    I(f's_mul_i32 s48, s47, {9*4096}\nv_add_u32 v{t}, s48, v{V_RD[0]}')
    I(f'v_and_b32 v{t+1}, 3, v{V_TL}')
    I(f'v_cmp_eq_u32 s[52:53], 1, v{t+1}\nv_cmp_eq_u32 s[54:55], 2, v{t+1}\nv_cmp_eq_u32 s[56:57], 3, v{t+1}')
    I(f'v_lshrrev_b32 v{t+1}, 2, v{V_TL}\nv_cmp_eq_u32 s[58:59], v{t+1}, v{V_Q}')
    I(f's_lshl_b32 s48, s46, 8\nv_lshlrev_b32 v{t+2}, 4, v{V_TL}\nv_add_u32 v{t+2}, s48, v{t+2}\nv_add_u32 v{t+2}, {STATS1}, v{t+2}')
    I(f's_lshl_b32 s48, s47, 3\nv_add_u32 v{t+3}, s48, v{t+2}')
    k.wait(xt)
    k.waitall(vm=False)
    I('s_barrier')
    stamp()
    if prefetch and pf_late:
        save_t = [V_TMP + 2, V_TMP + 3]
        I(f'v_mov_b32 v{V_PK}, v{t+2}\nv_mov_b32 v{V_PK+1}, v{t+3}')
        do_prefetch()
        I(f'v_mov_b32 v{t+2}, v{V_PK}\nv_mov_b32 v{t+3}, v{V_PK+1}')
    toks = []
    for u in range(9):
        k.ds(f'ds_read_b64_tr_b16 {vr(X+4*u,2)}, v{t} offset:{u*4096}')
        toks.append(k.ds(f'ds_read_b64_tr_b16 {vr(X+4*u+2,2)}, v{t} offset:{u*4096+512}'))
    def stats(src, area_off):
        for u in range(9):
            if src == X and area_off == 0: k.wait(toks[u])
            I(f'v_mfma_f32_16x16x32_bf16 {vr(A1,4)}, {vr(ONES,4)}, {vr(src+4*u,4)}, {"0" if u == 0 else vr(A1,4)}')
            I(f'v_mfma_f32_16x16x32_bf16 {vr(A2,4)}, {vr(src+4*u,4)}, {vr(src+4*u,4)}, {"0" if u == 0 else vr(A2,4)}')
    stats(X, 0)
    if not ikr:
        I(f's_cmp_eq_u32 s{S_W}, s{S_P}\ns_cbranch_scc0 L_mlp_nox1')
        I(f's_lshl_b32 s48, s{S_M}, 6\ns_lshl_b32 s49, s46, 4\ns_add_u32 s48, s48, s49')
        I(f'v_add_u32 v{t+4}, s48, v{V_TL}\nv_mul_u32_u24 v{t+4}, 1152, v{t+4}\nv_lshlrev_b32 v{t+5}, 4, v{V_Q}\nv_add_u32 v{t+4}, v{t+4}, v{t+5}')
        I(f's_mul_i32 s48, s47, 576\ns_add_u32 s48, s48, {OFF_X1R}')
        for u in range(9):
            I(f'buffer_store_dwordx4 {vr(X+4*u,4)}, v{t+4}, {sr(S_WS,4)}, s48 offen offset:{u*64}')
        k.label('L_mlp_nox1')
    def finish_stats(area):
        k.nop(8)
        I(f'v_cndmask_b32 v{V_G}, v{A2}, v{A2+1}, s[52:53]\nv_cndmask_b32 v{V_G}, v{V_G}, v{A2+2}, s[54:55]\nv_cndmask_b32 v{V_G+1}, v{V_G}, v{A2+3}, s[56:57]')
        I(f'v_mov_b32 v{V_G}, v{A1}')
        I('s_mov_b64 s[50:51], exec\ns_mov_b64 exec, s[58:59]')
        k.ds(f'ds_write_b64 v{t+3}, {vr(V_G,2)} offset:{area}')
        I('s_mov_b64 exec, s[50:51]')
        k.waitall(vm=False)
        I('s_barrier')
        if fine and not ikr: stamp()
        tk = k.ds(f'ds_read_b128 {vr(V_G+4,4)}, v{t+2} offset:{area}')
        return tk
    def stats_to_rm(tk):
        k.wait(tk)
        inv = f2u(1.0 / 576.0)
        I(f'v_add_f32 v{V_G}, v{V_G+4}, v{V_G+6}\nv_add_f32 v{V_G+1}, v{V_G+5}, v{V_G+7}')
        I(f'v_mul_f32 v{V_G}, {inv:#x}, v{V_G}\nv_mul_f32 v{V_G+1}, {inv:#x}, v{V_G+1}')
        I(f'v_fma_f32 v{V_G+1}, -v{V_G}, v{V_G}, v{V_G+1}')
        I(f'v_max_f32 v{V_G+1}, 0, v{V_G+1}\nv_add_f32 v{V_G+1}, {f2u(1e-5):#x}, v{V_G+1}')
        I(f'v_rsq_f32 v{V_G+2}, v{V_G+1}\ns_nop 0')
        I(f'v_mul_f32 v{V_G+3}, v{V_G}, v{V_G+2}\nv_sub_f32 v{V_G+3}, 0, v{V_G+3}')
    tk = finish_stats(0)
    I(f's_mul_i32 s48, s47, {9*128}\ns_add_u32 s48, s48, {PAR_G2}\nv_lshlrev_b32 v{t+4}, 5, v{V_Q}\nv_add_u32 v{t+4}, s48, v{t+4}')
    def par_reads(u):
        b = PG + (u & 1) * 16
        k.ds(f'ds_read_b128 {vr(b,4)}, v{t+4} offset:{u*128}')
        k.ds(f'ds_read_b128 {vr(b+4,4)}, v{t+4} offset:{u*128+16}')
        k.ds(f'ds_read_b128 {vr(b+8,4)}, v{t+4} offset:{2304+u*128}')
        return k.ds(f'ds_read_b128 {vr(b+12,4)}, v{t+4} offset:{2304+u*128+16}')
    ptk = [par_reads(0)]
    stats_to_rm(tk)
    R, NMR = V_G + 2, V_G + 3
    for u in range(9):
        if u + 1 < 9: ptk.append(par_reads(u + 1))
        b = PG + (u & 1) * 16
        for d in range(4):
            I(f'v_lshlrev_b32 v{H2+8*u+2*d}, 16, v{X+4*u+d}\nv_and_b32 v{H2+8*u+2*d+1}, 0xffff0000, v{X+4*u+d}')
        for e in range(8): I(f'v_fma_f32 v{H2+8*u+e}, v{H2+8*u+e}, v{R}, v{NMR}')
        k.wait(ptk[u])
        for e in range(8): I(f'v_fma_f32 v{H2+8*u+e}, v{H2+8*u+e}, v{b+e}, v{b+8+e}')
        for d in range(4): I(f'v_cvt_pk_bf16_f32 v{X+4*u+d}, v{H2+8*u+2*d}, v{H2+8*u+2*d+1}')
    I('s_nop 1')
    stats(X, 1024)
    tk = finish_stats(1024)
    stats_to_rm(tk)
    I(f's_mul_i32 s48, s46, 18432\ns_mul_i32 s49, s47, 9216\ns_add_u32 s48, s48, s49\nv_lshlrev_b32 v{t+4}, 4, v{V_LANE}\nv_add_u32 v{t+4}, s48, v{t+4}')
    for u in range(9):
        for e in range(8): I(f'v_fma_f32 v{H2+8*u+e}, v{H2+8*u+e}, v{R}, v{NMR}')
        for d in range(4): I(f'v_cvt_pk_bf16_f32 v{X+4*u+d}, v{H2+8*u+2*d}, v{H2+8*u+2*d+1}')
        k.ds(f'ds_write_b128 v{t+4}, {vr(X+4*u,4)} offset:{u*1024}')
    k.waitall(vm=False)
    I('s_barrier')
    if fine and not ikr: stamp()
    def load_bfrags(base_off):
        tk = None
        for n in range(36):
            tk = k.ds(f'ds_read_b128 {vr(V_BF+4*n,4)}, v{V_FR} offset:{base_off + n*1024}') if base_off + n*1024 < 65536 else None
        return tk
    load_bfrags(0)
    btk = k.ds(f'ds_read_b128 {vr(V_B4,4)}, v{V_BIAS}')
    I(f'v_add_u32 v{V_BIAS}, 256, v{V_BIAS}')
    k.wait(c0)
    if ikr: I('s_load_dwordx2 s[8:9], s[0:1], 88\ns_load_dwordx2 s[28:29], s[0:1], 112')
    k.waitall(vm=False)
    if ikr: I('s_mov_b32 s10, 1152\ns_mov_b32 s11, 0x20000\ns_mov_b32 s30, 2359296\ns_mov_b32 s31, 0x20000')
    I('s_barrier')
    dma_chunk(0, 0); dma_chunk(1, 1)
    stamp()

    NB = LA + 1
    ABUF = [V_A, V_A + 4, V_A + 8, V_TMP, V_TMP + 4][:NB]
    atok = {}
    ctr = [0]
    def a_read_parts(cnt, slot, u):
        buf = ABUF[cnt % NB]
        off = (slot & 1) * SLOT + u * 4096
        def r0(): k.ds(f'ds_read_b64_tr_b16 {vr(buf,2)}, v{V_RD[slot>>1]} offset:{off}')
        def r1(): atok[cnt % NB] = k.ds(f'ds_read_b64_tr_b16 {vr(buf+2,2)}, v{V_RD[slot>>1]} offset:{off+512}')
        return r0, r1
    def a_reads(cnt, slot, u):
        r0, r1 = a_read_parts(cnt, slot, u); r0(); r1()
    def gelu_ops(acc, dst):
        ops = []
        for h in range(2):
            x = [acc + 4*h + r for r in range(4)]; g = [V_G + 4*h + r for r in range(4)]
            ops += [f'v_mul_f32 v{g[r]}, v{x[r]}, v{x[r]}' for r in range(4)]
            ops += [f'v_fma_f32 v{g[r]}, v{g[r]}, v{V_C2}, v{V_C1}' for r in range(4)]
            ops += [f'v_mul_f32 v{g[r]}, v{x[r]}, v{g[r]}' for r in range(4)]
            ops += [f'v_exp_f32 v{g[r]}, v{g[r]}' for r in range(4)]
            ops += [f'v_add_f32 v{g[r]}, 1.0, v{g[r]}' for r in range(4)]
            ops += [f'v_rcp_f32 v{g[r]}, v{g[r]}' for r in range(4)]
            ops += [f'v_mul_f32 v{g[r]}, v{x[r]}, v{g[r]}' for r in range(4)]
            ops += dst(h, g)
        return ops
    lab = [0]
    cur = dict(cls=0)
    def group(phase, par, slots, issue, extra, last=False, vmw=(9, 9, 9), pre=None, early=False, hooks=None, prebar=None):
        acc = V_ACC[par]
        extra = list(extra)
        if no_gelu and phase == 1: extra = []
        nfill = len(extra)
        cls = cur['cls']
        dma_steps = (0, 2, 4) if cls == 0 else (1, 3, 5)
        wt = []
        for n in range(18):
            w_ = 0.0 if n == 0 else (wts[0] if (n % 6) in dma_steps else wts[1])
            if early: w_ = 1.0 if 1 <= n <= 3 else 0.0
            wt += [w_ / 2, w_ / 2]
        tot = sum(wt); cum = []; a_ = 0.0
        for w_ in wt:
            a_ += w_; cum.append(int(round(nfill * a_ / tot)))
        cum[-1] = nfill
        st = dict(done=0)
        def fill(upto):
            while st['done'] < min(upto, nfill):
                x_ = extra[st['done']]
                if callable(x_): x_()
                else: I(x_)
                st['done'] += 1
        for kc in range(3):
            if vmw[kc] is not None:
                if prebar and kc in prebar: prebar[kc]()
                if vmw[kc] != 'b': k.raw_wait(vm=vmw[kc])
                if not no_bar: I('s_barrier')
            if pre and kc in pre: pre[kc]()
            for u in range(6):
                n = kc * 6 + u
                cnt = ctr[0]; ctr[0] += 1
                buf = ABUF[cnt % NB]
                k.wait(atok[cnt % NB])
                nn = n + LA
                if nn < 18: rd = a_read_parts(cnt + LA, slots[nn // 6], nn % 6)
                elif not last: rd = a_read_parts(cnt + LA, slots[3], nn - 18)
                else: rd = (lambda: None, lambda: None)
                def mfma(h):
                    if n == 0: c = vr(V_B4, 4) if phase == 1 else '0'
                    else: c = vr(acc + 4*h, 4)
                    if not no_mfma: I(f'v_mfma_f32_16x16x32_bf16 {vr(acc+4*h,4)}, {vr(buf,4)}, {vr(V_BF+(h*18+n)*4,4)}, {c}')
                dma = issue[kc] is not None and not no_dma and u in dma_steps
                b = dma_steps.index(u) if dma else None
                mfma(0)
                rd[0](); fill(cum[2*n])
                mfma(1)
                if dma: dma_m0(issue[kc][0], b)
                rd[1]()
                if dma:
                    if nn >= 18 and last: I('s_nop 0')
                    dma_go(b, issue[kc][1])
                if phase == 1 and n == 8:
                    group.btk = k.ds(f'ds_read_b128 {vr(V_B4,4)}, v{V_BIAS}')
                    I(f'v_add_u32 v{V_BIAS}, 256, v{V_BIAS}')
                fill(cum[2*n+1])
                if hooks and n in hooks: hooks[n]()
                if phase == 1 and n == 17: k.wait(group.btk)
    group.btk = btk
    def h_dst_indexed(delta):
        def f(h, g):
            return [f'v_cvt_pk_bf16_f32 v{V_PK}, v{g[0]}, v{g[1]}', f'v_cvt_pk_bf16_f32 v{V_PK+1}, v{g[2]}, v{g[3]}',
                    f's_set_gpr_idx_on s{S_IDX}, gpr_idx(DST)', f'v_mov_b32 v{V_H+delta+2*h}, v{V_PK}', f'v_mov_b32 v{V_H+delta+2*h+1}, v{V_PK+1}', 's_set_gpr_idx_off']
        return f
    def h_dst_static(G):
        def f(h, g):
            return [f'v_cvt_pk_bf16_f32 v{V_H+4*G+2*h}, v{g[0]}, v{g[1]}', f'v_cvt_pk_bf16_f32 v{V_H+4*G+2*h+1}, v{g[2]}, v{g[3]}']
        return f
    def merge_idx(ops):
        out = []; i = 0
        while i < len(ops):
            if ops[i].startswith('s_set_gpr_idx_on'):
                out.append('\n'.join(ops[i:i+4])); i += 4
            else:
                out.append(ops[i]); i += 1
        return out
    def switch_src(to):
        def f():
            lab = f'L_sw_{to}_{cur["cls"]}'
            I(f's_cmp_eq_u32 s{S_IT}, 3\ns_cbranch_scc0 {lab}')
            if to == 'w2':
                I(f's_mov_b32 s{S_CUR}, s{S_W2}\ns_mov_b32 s{S_CUR+1}, s{S_W2+1}')
                I(f'v_mov_b32 v{VD[0]}, v{V_DMA2}\nv_add_u32 v{VD[1]}, {64*1152}, v{V_DMA2}\nv_add_u32 v{VD[2]}, {128*1152}, v{V_DMA2}')
                I(f's_mul_i32 s{S_OFF}, s{S_P}, 663552\ns_mov_b32 s{S_D}, {D2}\ns_mov_b32 s{S_G2}, {(128 - 2*D2) & 0xffffffff}')
            else:
                I(f's_mov_b32 s{S_OFF}, 0x7ff00000\ns_mov_b32 s{S_D}, 0\ns_mov_b32 s{S_G2}, 0')
            k.label(lab)
        return f
    def main(cls):
        cur['cls'] = cls
        for n in range(LA): a_reads(n, 3, n)
        k.wait(btk)
        I(f's_mov_b32 s{S_IT}, 0\ns_mov_b32 s{S_IDX}, 0')
        def body1():
            group(1, 0, (3, 4, 5, 0), ((2, 2), (3, 0), (4, 1)), merge_idx(gelu_ops(V_ACC[1], h_dst_indexed(-4))))
            group(1, 1, (0, 1, 2, 3), ((5, 2), (0, 0), (1, 1)), merge_idx(gelu_ops(V_ACC[0], h_dst_indexed(0))), pre={1: switch_src('w2')})
        def loop(label, body, n):
            save = len(k.lines); l0 = lab[0]
            body(); first = k.lines[save:]; del k.lines[save:]; lab[0] = l0
            body(); second = k.lines[save:]; del k.lines[save:]; lab[0] = l0
            start = len(k.lines)
            k.label(label)
            body()
            third = k.lines[start+1:]
            assert second == third, 'loop body not a fixed point'
            strip = lambda L: [x for x in L]
            def split(L):
                body_, waits = [], {}
                for x in L:
                    if x.startswith('    s_waitcnt'): waits.setdefault(len(body_), []).append(x.strip())
                    else: body_.append(x)
                return body_, waits
            fb, fw = split(first); sb_, sw_ = split(second)
            assert fb == sb_, 'loop body differs between entry and steady state'
            import re as _re
            def cnts(ws):
                d = {}
                for w_ in ws:
                    for nm, v in _re.findall(r'(vmcnt|lgkmcnt)\((\d+)\)', w_): d[nm] = min(d.get(nm, 99), int(v))
                return d
            for pos, ws in fw.items():
                a = cnts(ws); b = cnts(sw_.get(pos, []))
                for nm, v in a.items():
                    assert nm in b and b[nm] <= v, ('steady-state wait too lax for loop entry', label, pos, ws, sw_.get(pos))
            errs = hazards(third + third, label)
            for e in errs: print('HAZARD', e)
            I(f's_add_u32 s{S_IDX}, s{S_IDX}, 8\ns_add_u32 s{S_IT}, s{S_IT}, 1\ns_cmp_lt_u32 s{S_IT}, {n}\ns_cbranch_scc1 {label}')
        loop(f'L_p1_{cls}', body1, 4)
        stamp()
        group(1, 0, (3, 4, 5, 0), ((2, 2), None, None), gelu_ops(V_ACC[1], h_dst_static(7)), vmw=(9, 9, 6))
        k.nop(8)
        for op in gelu_ops(V_ACC[0], h_dst_static(8)): I(op)
        k.raw_wait(vm=3)
        I('s_barrier')
        for G in range(9):
            for h in range(2):
                k.ds(f'ds_write_b64 v{V_HW}, {vr(V_H+4*G+2*h,2)} offset:{G*2048 + h*18432}')
        k.waitall(vm=False)
        I('s_barrier')
        I(f'v_add_u32 v{V_FR}, {3*SLOT}, v{V_FR}')
        load_bfrags(0)
        k.waitall(vm=False)
        I('s_barrier')
        dma_chunk(3, 0); dma_chunk(4, 1)
        stamp()
        stok = {}
        def store_ops(acc):
            ops = [f'v_cvt_pk_bf16_f32 v{V_PK+2*h+d}, v{acc+4*h+2*d}, v{acc+4*h+2*d+1}' for h in range(2) for d in range(2)]
            def st_():
                stok['last'] = k.vm(f'buffer_store_dwordx4 {vr(V_PK,4)}, v{V_ST}, {sr(S_WS,4)}, s{S_ST} offen {store_flags}')
                I(f's_mov_b32 s{S_ST}, s{S_STN}\ns_add_u32 s{S_STN}, s{S_STN}, 8192')
            ops.append(st_)
            return ops
        def run(ops):
            for op in ops:
                if callable(op): op()
                else: I(op)
        I(f's_mov_b32 s{S_IT}, 0')
        if not ikr:
            def body2():
                group(2, 0, (0, 1, 2, 3), ((5, 2), (0, 0), (1, 1)), store_ops(V_ACC[1]), vmw=(9, 9, 9))
                group(2, 1, (3, 4, 5, 0), ((2, 2), (3, 0), (4, 1)), store_ops(V_ACC[0]), vmw=(9, 9, 9), pre={1: switch_src('oob')})
            loop(f'L_p2_{cls}', body2, 4)
            group(2, 0, (0, 1, 2, 3), (None, None, None), store_ops(V_ACC[1]), last=True, vmw=(9, 6, None))
            k.nop(8)
            run(store_ops(V_ACC[0]))
            return
        S_FL, S_G, S_CNT = 46, 50, 51
        VF, VFA, VL16, VO, VTR, VP4 = 2, 12, 13, 8, 20, 21
        I(f's_lshl_b32 s{S_FL}, s{S_M}, 7\ns_add_u32 s{S_FL}, s{S_FL}, {OFF_FLAG}')
        I(f'v_and_b32 v{VFA}, 7, v{V_LANE}\nv_lshlrev_b32 v{VFA}, 2, v{VFA}\nv_lshlrev_b32 v{VL16}, 4, v{V_LANE}')
        I(f's_lshr_b32 s52, s{S_P}, 2\ns_and_b32 s53, s{S_P}, 3')
        I(f's_lshl_b32 s54, s{S_M}, 6\ns_lshl_b32 s55, s52, 5\ns_add_u32 s54, s54, s55\nv_add_u32 v{VO}, s54, v{V_TL}\nv_mul_u32_u24 v{VO}, 1152, v{VO}')
        I(f's_lshl_b32 s55, s53, 4\nv_lshlrev_b32 v{VP4}, 2, v{V_Q}\nv_add_u32 v{VP4}, s55, v{VP4}')
        I(f'v_lshlrev_b32 v16, 1, v{VP4}\nv_add_u32 v{VO}, v{VO}, v16')
        I(f'v_lshrrev_b32 v{VTR}, 2, v{V_TL}\nv_lshlrev_b32 v16, 2, v{V_Q}\nv_add_u32 v{VTR}, v{VTR}, v16\nv_lshlrev_b32 v{VTR}, 6, v{VTR}')
        I(f'v_and_b32 v16, 3, v{V_LANE}\nv_lshlrev_b32 v16, 3, v16\nv_add_u32 v{VTR}, v{VTR}, v16\nv_add_u32 v{VTR}, {XS}, v{VTR}')
        VXG = 19
        I(f'v_lshrrev_b32 v{VXG}, 2, v{V_LANE}\nv_lshlrev_b32 v{VXG}, 7, v{VXG}\nv_and_b32 v16, 3, v{V_LANE}\nv_lshlrev_b32 v16, 4, v16\nv_add_u32 v{VXG}, v{VXG}, v16\ns_lshl_b32 s55, s52, 6\nv_add_u32 v{VXG}, s55, v{VXG}')
        def signal(val, name, cond_it=None):
            lb = f'L_sig{name}'
            if cond_it is not None: I(f's_cmp_eq_u32 s{S_IT}, {cond_it}\ns_cbranch_scc0 {lb}')
            I(f's_cmp_eq_u32 s{S_W}, 0\ns_cbranch_scc0 {lb}')
            I(f's_lshl_b32 s52, s{S_P}, 2\ns_add_u32 s52, s52, s{S_FL}\nv_mov_b32 v16, {val}\nv_mov_b32 v17, 0\ns_mov_b64 exec, 1')
            I(f'buffer_store_dword v16, v17, {sr(S_WS,4)}, s52 offen sc1')
            I('s_mov_b64 exec, -1')
            k.label(lb)
        ftok = {}
        def flag_load(): ftok['t'] = k.vm(f'buffer_load_dword v{VF}, v{VFA}, {sr(S_WS,4)}, s{S_FL} offen sc1')
        def spin(val, name):
            I(f's_mov_b32 s{S_CNT}, 0x40000')
            k.label(f'L_spin{name}')
            I(f'v_cmp_gt_u32 vcc, {val}, v{VF}\ns_nop 4\ns_cbranch_vccz L_spun{name}')
            I(f's_sub_u32 s{S_CNT}, s{S_CNT}, 1\ns_cmp_eq_u32 s{S_CNT}, 0\ns_cbranch_scc1 L_spun{name}')
            I(f's_sleep 1\nbuffer_load_dword v{VF}, v{VFA}, {sr(S_WS,4)}, s{S_FL} offen sc1\ns_waitcnt vmcnt(0)\ns_branch L_spin{name}')
            k.label(f'L_spun{name}')
        PR = V_H
        R0, R1 = V_G, V_G + 6
        def statics(R, slotidx):
            I(f's_mul_i32 s52, s{S_M}, 73728\ns_lshl_b32 s54, s{S_G}, 13\ns_add_u32 s52, s52, s54\ns_lshl_b32 s54, s53, 11\ns_add_u32 s52, s52, s54\ns_add_u32 s52, s52, {OFF_X1T}')
            I(f's_lshl_b32 s54, {slotidx}, 10\ns_add_u32 m0, s54, {XS}\ns_nop 0')
            I(f'buffer_load_dwordx4 v{VXG}, {sr(S_WS,4)}, s52 offen lds')
            I(f's_lshl_b32 s54, s{S_G}, 8\ns_add_u32 s52, s54, {OFF_MODF + 3*2304}\nv_lshlrev_b32 v16, 2, v{VP4}')
            I(f'buffer_load_dwordx4 {vr(R,4)}, v16, {sr(S_WS,4)}, s52 offen')
            I(f's_lshl_b32 s54, s{S_G}, 7\nv_lshlrev_b32 v17, 1, v{VP4}')
            I(f'buffer_load_dwordx2 {vr(R+4,2)}, v17, s[8:11], s54 offen')
        def partials():
            I(f's_mul_i32 s52, s{S_M}, {8*73728}\ns_lshl_b32 s54, s{S_G}, 13\ns_add_u32 s52, s52, s54\ns_lshl_b32 s54, s{S_P}, 10\ns_add_u32 s52, s52, s54\ns_add_u32 s52, s52, {OFF_PART}')
            for p_ in range(8):
                I(f'buffer_load_dwordx4 {vr(PR+4*p_,4)}, v{VL16}, {sr(S_WS,4)}, s52 offen sc1')
                if p_ < 7: I(f's_add_u32 s52, s52, 73728')
        T = V_BF
        def finish(R, slotidx):
            I(f's_lshl_b32 s54, {slotidx}, 10\nv_add_u32 v16, s54, v{VTR}')
            I(f'ds_read_b64_tr_b16 {vr(T,2)}, v16\nds_read_b64_tr_b16 {vr(T+2,2)}, v16 offset:32')
            acc = [T + 4 + e for e in range(8)]
            t0, t1 = T + 12, T + 13
            for p_ in range(8):
                for d in range(4):
                    lo, hi = acc[2*d], acc[2*d+1]
                    b = PR + 4*p_ + d
                    if p_ == 0: I(f'v_lshlrev_b32 v{lo}, 16, v{b}\nv_and_b32 v{hi}, 0xffff0000, v{b}')
                    else: I(f'v_lshlrev_b32 v{t0}, 16, v{b}\nv_and_b32 v{t1}, 0xffff0000, v{b}\nv_add_f32 v{lo}, v{lo}, v{t0}\nv_add_f32 v{hi}, v{hi}, v{t1}')
            b2 = T + 16; xx = T + 20; pk = T + 24
            I(f'v_lshlrev_b32 v{b2}, 16, v{R+4}\nv_and_b32 v{b2+1}, 0xffff0000, v{R+4}\nv_lshlrev_b32 v{b2+2}, 16, v{R+5}\nv_and_b32 v{b2+3}, 0xffff0000, v{R+5}')
            I('s_waitcnt lgkmcnt(0)')
            I(f's_lshl_b32 s54, s{S_G}, 7')
            for h in range(2):
                x = T + 2*h
                I(f'v_lshlrev_b32 v{xx}, 16, v{x}\nv_and_b32 v{xx+1}, 0xffff0000, v{x}\nv_lshlrev_b32 v{xx+2}, 16, v{x+1}\nv_and_b32 v{xx+3}, 0xffff0000, v{x+1}')
                for r in range(4):
                    a = acc[4*h + r]
                    I(f'v_add_f32 v{a}, v{a}, v{b2+r}\nv_fma_f32 v{a}, v{a}, v{R+r}, v{xx+r}')
                I(f'v_cvt_pk_bf16_f32 v{pk+2*h}, v{acc[4*h]}, v{acc[4*h+1]}\nv_cvt_pk_bf16_f32 v{pk+2*h+1}, v{acc[4*h+2]}, v{acc[4*h+3]}')
            I(f'buffer_store_dwordx2 {vr(pk,2)}, v{VO}, s[28:31], s54 offen')
            I(f's_add_u32 s54, s54, {16*1152}')
            I(f'buffer_store_dwordx2 {vr(pk+2,2)}, v{VO}, s[28:31], s54 offen')
        def body2():
            group(2, 0, (0, 1, 2, 3), ((5, 2), (0, 0), (1, 1)), store_ops(V_ACC[1]), vmw=(9, 9, 9), early=True,
                  pre={1: lambda: signal(1, f'a{cls}', cond_it=3)})
            group(2, 1, (3, 4, 5, 0), ((2, 2), (3, 0), (4, 1)), store_ops(V_ACC[0]), vmw=(9, 9, 9), pre={1: switch_src('oob')}, early=True, hooks={8: flag_load})
        loop(f'L_p2_{cls}', body2, 4)
        if fine: stamp()
        s6 = stok['last']
        k.wait(ftok['t'])
        I(f's_mov_b32 s{S_G}, s{S_W}')
        I(f's_cmp_ge_u32 s{S_W}, 5\ns_cbranch_scc1 L_noearly')
        spin(1, 'a')
        k.label('L_noearly')
        S_PB = 56
        I(f's_mul_i32 s{S_PB}, s{S_M}, {8*73728}\ns_lshl_b32 s54, s{S_G}, 13\ns_add_u32 s{S_PB}, s{S_PB}, s54\ns_lshl_b32 s54, s{S_P}, 10\ns_add_u32 s{S_PB}, s{S_PB}, s54\ns_add_u32 s{S_PB}, s{S_PB}, {OFF_PART}')
        I(f's_cmp_ge_u32 s{S_W}, 5\ns_cselect_b32 s{S_PB}, 0x7ff00000, s{S_PB}\ns_cselect_b32 s58, 0, 73728')
        def pload(p_):
            def f():
                k.vm(f'buffer_load_dwordx4 {vr(PR+4*p_,4)}, v{VL16}, {sr(S_WS,4)}, s{S_PB} offen sc1')
                I(f's_add_u32 s{S_PB}, s{S_PB}, s58')
            return f
        k.raw_wait(vm=6)
        hooks = {n: pload(n - 4) for n in range(4, 12)}
        hooks[12] = flag_load
        hooks[13] = lambda: statics(R0, f's{S_W}')
        group(2, 0, (0, 1, 2, 3), (None, None, None), store_ops(V_ACC[1]), last=True, vmw=('b', 'b', None), early=True,
              pre={1: lambda: signal(2, 'b')}, prebar={1: lambda: k.wait(s6)}, hooks=hooks)
        if fine: stamp()
        I(f's_cmp_eq_u32 s{S_W}, 0\ns_cbranch_scc0 L_nost8\ns_mov_b32 s{S_G}, 8')
        statics(R1, '8')
        I(f's_mov_b32 s{S_G}, 0')
        k.label('L_nost8')
        k.nop(7)
        run(store_ops(V_ACC[0]))
        I(f's_sub_u32 s52, s{S_W}, 5\ns_cmp_lt_u32 s52, 2\ns_cbranch_scc0 L_no6')
        I('s_waitcnt vmcnt(4)')
        spin(2, 'c')
        partials()
        I('s_waitcnt vmcnt(8)\ns_branch L_st8')
        k.label('L_no6')
        I('s_waitcnt vmcnt(0)')
        k.label('L_st8')
        if fine: stamp()
        I('s_barrier')
        if fine: stamp()
        signal(3, 'd')
        I(f's_cmp_eq_u32 s{S_W}, 7\ns_cbranch_scc1 L_late')
        I(f's_cmp_ge_u32 s{S_W}, 5\ns_cbranch_scc0 L_have\ns_waitcnt vmcnt(0)')
        k.label('L_have')
        finish(R0, f's{S_W}')
        I(f's_cmp_eq_u32 s{S_W}, 0\ns_cbranch_scc0 L_ikr_done\ns_mov_b32 s{S_G}, 8')
        for e in range(6): I(f'v_mov_b32 v{R0+e}, v{R1+e}')
        I(f's_mov_b32 s57, 8\ns_branch L_late2')
        k.label('L_late')
        I(f's_mov_b32 s57, 7')
        k.label('L_late2')
        I(f'buffer_load_dword v{VF}, v{VFA}, {sr(S_WS,4)}, s{S_FL} offen sc1\ns_waitcnt vmcnt(0)')
        spin(3, 'b')
        partials()
        I('s_waitcnt vmcnt(0)')
        finish(R0, 's57')
        k.label('L_ikr_done')
    if classes:
        import copy
        st0 = (dict(k.cnt), dict(k.done), dict(atok), ctr[0], nst[0], group.btk)
        I(f's_cmp_ge_u32 s{S_W}, 4\ns_cbranch_scc1 L_main1')
        if cls_prio == 0: I('s_setprio 1')
        main(0)
        I('s_branch L_main_done')
        k.label('L_main1')
        k.cnt, k.done = dict(st0[0]), dict(st0[1]); atok.clear(); atok.update(st0[2]); ctr[0] = st0[3]; nst[0] = st0[4]; group.btk = st0[5]
        if cls_prio == 1: I('s_setprio 1')
        main(1)
        k.label('L_main_done')
    else:
        main(0)
    stamp()
    I('s_waitcnt vmcnt(0)')
    stamp()
    if stamps:
        I('s_waitcnt lgkmcnt(0)')
        I(f's_lshl_b32 s46, s2, 6\ns_add_u32 s46, s46, {OFF_DBG}')
        for i in range(nst[0]):
            I(f'v_mov_b32 v2, s{64+2*i}\nv_mov_b32 v3, 0')
            I(f'buffer_store_dword v2, v3, {sr(S_WS,4)}, s46 offen offset:{4*i}')
            if not fine:
                I(f'v_mov_b32 v2, s{80+2*i}')
                I(f'buffer_store_dword v2, v3, {sr(S_WS,4)}, s46 offen offset:{32+4*i}')
        I('s_waitcnt vmcnt(0)')
    k.label('L_mlp_end')
    I('s_endpgm')
    errs = hazards(k.lines, 'mlp')
    for e in errs: print('HAZARD', e)
    return k, LDS_BYTES

if __name__ == '__main__':
    k, lds = build()
    print(len(k.lines), 'lines; lds', lds)
```

```python
from asmlib import Kern, hazards
from layout import *
import struct, math
def vr(a, n): return f'v[{a}:{a+n-1}]'
f2u = lambda x: struct.unpack('<I', struct.pack('<f', x))[0]
N_LN, N_MOD, N_KG = 64, 243, 144
GRID = N_LN + N_MOD + N_KG
TP = 1184
T_BYTES = 32 * TP + 384
KW = 2 * 16 * 528
LDS_BYTES = max(2 * T_BYTES, 4 * KW)

def build(stamps=False):
    k = Kern('prep_kernel', 128, 96)
    I = k.I
    k.stamp_init(stamps, 64, OFF_DBG + 0x20000)
    I(f's_cmp_ge_u32 s2, {GRID}\ns_cbranch_scc1 L_prep_end')
    I('s_load_dwordx2 s[26:27], s[0:1], 128')
    k.stamp()
    if stamps: I('s_mov_b32 s59, s2')
    I('v_and_b32 v1, 63, v0\nv_lshrrev_b32 v2, 6, v0')
    I('s_nop 0\nv_readfirstlane_b32 s33, v2')
    I(f's_cmp_lt_u32 s2, {N_KG}\ns_cbranch_scc1 L_kgen')
    I(f's_sub_u32 s2, s2, {N_KG}')
    I(f's_cmp_ge_u32 s2, {N_LN}\ns_cbranch_scc1 L_mod')
    I('s_load_dwordx2 s[20:21], s[0:1], 0')
    I('v_lshrrev_b32 v3, 3, v0\nv_and_b32 v4, 7, v0')
    I('s_lshl_b32 s34, s2, 5\nv_add_u32 v5, s34, v3\nv_mul_u32_u24 v5, 1152, v5\nv_lshlrev_b32 v6, 4, v4\nv_add_u32 v5, v5, v6')
    I('s_waitcnt lgkmcnt(0)')
    I(f's_mov_b32 s4, s26\ns_mov_b32 s5, s27\ns_mov_b32 s6, {WS_BYTES}\ns_mov_b32 s7, 0x20000')
    I('s_mov_b32 s8, s20\ns_mov_b32 s9, s21\ns_mov_b32 s10, 2359296\ns_mov_b32 s11, 0x20000')
    U, X = 16, 52
    tk = [k.vm(f'buffer_load_dwordx4 {vr(U+4*m,4)}, v5, s[8:11], 0 offen offset:{m*128}') for m in range(9)]
    I(f'v_mul_u32_u24 v7, {TP}, v3\nv_lshrrev_b32 v8, 3, v3\nv_lshlrev_b32 v8, 7, v8\nv_add_u32 v7, v7, v8\nv_add_u32 v7, v7, v6')
    I('v_mov_b32 v10, 0\nv_mov_b32 v11, 0')
    for m in range(9):
        k.wait(tk[m])
        k.ds(f'ds_write_b128 v7, {vr(U+4*m,4)} offset:{m*128}')
        for d in range(4):
            I(f'v_lshlrev_b32 v{X+8*m+2*d}, 16, v{U+4*m+d}\nv_and_b32 v{X+8*m+2*d+1}, 0xffff0000, v{U+4*m+d}')
        for d in range(4): I(f'v_pk_add_f32 v[10:11], v[10:11], {vr(X+8*m+2*d,2)}')
    k.stamp()
    def red8(reg):
        I(f's_nop 1\nv_add_f32_dpp v{reg}, v{reg}, v{reg} quad_perm:[1,0,3,2] row_mask:0xf bank_mask:0xf')
        I(f's_nop 1\nv_add_f32_dpp v{reg}, v{reg}, v{reg} quad_perm:[2,3,0,1] row_mask:0xf bank_mask:0xf')
        I(f's_nop 1\nv_add_f32_dpp v{reg}, v{reg}, v{reg} row_half_mirror row_mask:0xf bank_mask:0xf')
    I('v_add_f32 v10, v10, v11')
    red8(10)
    I(f'v_mul_f32 v10, {f2u(-1.0/576):#x}, v10\nv_mov_b32 v11, v10\nv_mov_b32 v12, 0\nv_mov_b32 v13, 0')
    for e in range(36): I(f'v_pk_add_f32 {vr(X+2*e,2)}, {vr(X+2*e,2)}, v[10:11]')
    for e in range(36): I(f'v_pk_fma_f32 v[12:13], {vr(X+2*e,2)}, {vr(X+2*e,2)}, v[12:13]')
    I('v_add_f32 v12, v12, v13')
    red8(12)
    I(f'v_mul_f32 v12, {f2u(1.0/576):#x}, v12\nv_add_f32 v12, {f2u(1e-5):#x}, v12\nv_rsq_f32 v12, v12\ns_nop 0\nv_mov_b32 v13, v12')
    for e in range(36):
        I(f'v_pk_mul_f32 {vr(X+2*e,2)}, {vr(X+2*e,2)}, v[12:13]')
        I(f'v_cvt_pk_bf16_f32 v{U+e}, v{X+2*e}, v{X+2*e+1}')
    for m in range(9): k.ds(f'ds_write_b128 v7, {vr(U+4*m,4)} offset:{T_BYTES + m*128}')
    k.waitall(vm=False)
    I('s_barrier')
    k.stamp()
    I('v_lshrrev_b32 v3, 4, v1\nv_and_b32 v4, 15, v1\nv_lshrrev_b32 v5, 2, v4\nv_and_b32 v6, 3, v1')
    I(f'v_lshlrev_b32 v7, 3, v3\nv_add_u32 v7, v7, v5\nv_mul_u32_u24 v7, {TP}, v7\nv_lshlrev_b32 v8, 7, v3\nv_add_u32 v7, v7, v8')
    I('v_lshlrev_b32 v8, 3, v6\nv_add_u32 v7, v7, v8\ns_mul_i32 s35, s33, 288\nv_add_u32 v7, s35, v7')
    I('s_mul_i32 s35, s33, 144\nv_add_u32 v8, s35, v4\nv_lshlrev_b32 v8, 6, v8\nv_lshlrev_b32 v9, 4, v3\nv_add_u32 v8, v8, v9\ns_mul_i32 s35, s2, 36864\nv_add_u32 v8, s35, v8')
    for arr, off in ((0, OFF_UT), (1, OFF_NT)):
        tks = []
        rb = 16 if arr == 0 else 52
        for i in range(9):
            k.ds(f'ds_read_b64_tr_b16 {vr(rb+4*i,2)}, v7 offset:{arr*T_BYTES + i*32}')
            tks.append(k.ds(f'ds_read_b64_tr_b16 {vr(rb+4*i+2,2)}, v7 offset:{arr*T_BYTES + i*32 + 4*TP}'))
        for i in range(9):
            k.wait(tks[i])
            I(f's_mov_b32 s36, {off + i*1024}')
            k.vm(f'buffer_store_dwordx4 {vr(rb+4*i,4)}, v8, s[4:7], s36 offen')
    k.stamp()
    I('s_branch L_prep_fin')
    k.st_n = 1
    k.label('L_mod')
    I('s_load_dwordx2 s[20:21], s[0:1], 96\ns_load_dwordx2 s[22:23], s[0:1], 104')
    I(f's_sub_u32 s34, s2, {N_LN}\ns_mul_i32 s35, s34, 2428\ns_lshr_b32 s35, s35, 16\ns_mul_i32 s36, s35, 27\ns_sub_u32 s36, s34, s36')
    I('v_and_b32 v3, 15, v0\nv_lshrrev_b32 v4, 4, v0')
    I('s_lshl_b32 s37, s35, 6\nv_add_u32 v5, s37, v4')
    I('v_mul_u32_u24 v6, 6912, v5\nv_lshlrev_b32 v7, 4, v3\nv_add_u32 v6, v6, v7\ns_lshl_b32 s37, s36, 8\nv_add_u32 v6, s37, v6')
    I('v_lshlrev_b32 v5, 1, v5')
    I('s_waitcnt lgkmcnt(0)')
    I(f's_mov_b32 s4, s26\ns_mov_b32 s5, s27\ns_mov_b32 s6, {WS_BYTES}\ns_mov_b32 s7, 0x20000')
    I('s_mov_b32 s8, s20\ns_mov_b32 s9, s21\ns_mov_b32 s10, 1152\ns_mov_b32 s11, 0x20000')
    I('s_mov_b32 s12, s22\ns_mov_b32 s13, s23\ns_mov_b32 s14, 3981312\ns_mov_b32 s15, 0x20000')
    tw = []
    for i in range(4):
        I(f's_mov_b32 s38, {i*16*6912}')
        tw.append(k.vm(f'buffer_load_dwordx4 {vr(16+4*i,4)}, v6, s[12:15], s38 offen'))
    tc = None
    for i in range(4): tc = k.vm(f'buffer_load_ushort v{32+i}, v5, s[8:11], 0 offen offset:{i*32}')
    k.wait(tc)
    k.stamp()
    for i in range(4): I(f'v_lshlrev_b32 v{32+i}, 16, v{32+i}')
    for i in range(4): I(f'v_mul_f32 v{36+i}, {f2u(-math.log2(math.e)):#x}, v{32+i}')
    for i in range(4): I(f'v_exp_f32 v{36+i}, v{36+i}')
    for i in range(4): I(f'v_add_f32 v{36+i}, 1.0, v{36+i}')
    for i in range(4): I(f'v_rcp_f32 v{36+i}, v{36+i}')
    for i in range(4): I(f'v_mul_f32 v{32+i}, v{32+i}, v{36+i}')
    for i in range(4): I(f'v_cvt_pk_bf16_f32 v{32+i}, v{32+i}, v{32+i}\nv_and_b32 v{32+i}, 0xffff0000, v{32+i}')
    for e in range(8): I(f'v_mov_b32 v{40+e}, 0')
    for i in range(4):
        for d in range(4):
            I(f'v_lshlrev_b32 v48, 16, v{16+4*i+d}\nv_and_b32 v49, 0xffff0000, v{16+4*i+d}')
            I(f'v_fmac_f32 v{40+2*d}, v48, v{32+i}\nv_fmac_f32 v{40+2*d+1}, v49, v{32+i}')
    I('v_lshlrev_b32 v6, 9, v4\nv_lshlrev_b32 v7, 5, v3\nv_add_u32 v6, v6, v7')
    I('ds_write_b128 v6, v[40:43]\nds_write_b128 v6, v[44:47] offset:16')
    I('s_waitcnt lgkmcnt(0)\ns_barrier')
    I('v_cmp_gt_u32 vcc, 128, v0\nv_lshlrev_b32 v6, 2, v0\ns_nop 0\ns_and_saveexec_b64 s[42:43], vcc\ns_cbranch_execz L_prep_fin')
    for g in range(16): I(f'ds_read_b32 v{16+g}, v6 offset:{g*512}')
    I('s_waitcnt lgkmcnt(0)')
    for g in range(1, 16): I(f'v_add_f32 v16, v16, v{16+g}')
    I(f's_mul_i32 s37, s35, 13824\ns_lshl_b32 s38, s36, 9\ns_add_u32 s37, s37, s38\ns_add_u32 s37, s37, {OFF_MODP}')
    I('buffer_store_dword v16, v6, s[4:7], s37 offen')
    k.stamp(); k.stamp()
    I('s_branch L_prep_fin')
    k.label('L_kgen')
    k.st_n = 1
    I('s_load_dwordx2 s[8:9], s[0:1], 8\ns_load_dwordx2 s[12:13], s[0:1], 16\ns_load_dwordx2 s[16:17], s[0:1], 24\ns_load_dwordx2 s[20:21], s[0:1], 32\ns_load_dwordx2 s[24:25], s[0:1], 40')
    I('s_lshl_b32 s34, s2, 2\ns_add_u32 s34, s34, s33')
    I('v_lshlrev_b32 v3, 1, v1\ns_lshl_b32 s35, s34, 8\nv_add_u32 v3, s35, v3')
    I('s_and_b32 s36, s34, 0xfffffffe\ns_lshl_b32 s36, s36, 1')
    I('s_waitcnt lgkmcnt(0)')
    I('s_load_dword s37, s[24:25], s36')
    I(f's_mov_b32 s4, s26\ns_mov_b32 s5, s27\ns_mov_b32 s6, {WS_BYTES}\ns_mov_b32 s7, 0x20000')
    for b in (8, 12, 16, 20):
        I(f's_mov_b32 s{b+2}, 147456\ns_mov_b32 s{b+3}, 0x20000')
    k.cnt['vm'] = k.done['vm'] = 0; k.cnt['lg'] = k.done['lg'] = 0
    last = None
    for a, b in enumerate((8, 12, 16, 20)):
        for md in range(2):
            last = k.vm(f'buffer_load_ushort v{16+2*a+md}, v3, s[{b}:{b+3}], 0 offen offset:{md*128}')
    I('s_waitcnt lgkmcnt(0)')
    I('s_bitcmp1_b32 s34, 0\ns_cselect_b32 s38, 0, 16\ns_lshl_b32 s37, s37, s38\ns_and_b32 s37, s37, 0xffff0000')
    L2E = f2u(math.log2(math.e))
    I(f'v_mov_b32 v4, s37\nv_mul_f32 v4, {L2E:#x}, v4\nv_exp_f32 v4, v4\ns_nop 0\nv_cvt_pk_bf16_f32 v4, v4, v4\nv_and_b32 v4, 0xffff0000, v4')
    FB = 0; GB = 16 * 528
    I(f's_mul_i32 s39, s33, {KW}\nv_lshlrev_b32 v5, 2, v1\nv_add_u32 v5, s39, v5')
    k.wait(last)
    k.stamp()
    for r in range(16, 24): I(f'v_lshlrev_b32 v{r}, 16, v{r}')
    def R(md, name):
        b = 24 + 26 * md
        return b + dict(AR=0, AI=1, C=2, Z=4, Z8=18, Z128=20, U=22, F=24)[name]
    T0 = 76
    def direct(dst, md, p):
        I(f'v_mul_f32 v{T0}, {f2u(float(p)):#x}, v{R(md,"AR")}\nv_mul_f32 v{T0+1}, {f2u(float(p)):#x}, v{R(md,"AI")}')
        I(f'v_exp_f32 v{T0}, v{T0}\nv_fract_f32 v{T0+1}, v{T0+1}\ns_nop 0\nv_cos_f32 v{T0+2}, v{T0+1}\nv_sin_f32 v{T0+3}, v{T0+1}\ns_nop 0')
        I(f'v_mul_f32 v{dst}, v{T0}, v{T0+2}\nv_mul_f32 v{dst+1}, v{T0}, v{T0+3}')
    def cmul(dst, a, b):
        I(f'v_pk_mul_f32 {vr(dst,2)}, {vr(a,2)}, {vr(b,2)} op_sel:[0,0] op_sel_hi:[1,0]')
        I(f'v_pk_fma_f32 {vr(dst,2)}, {vr(a,2)}, {vr(b,2)}, {vr(dst,2)} op_sel:[1,1,0] op_sel_hi:[0,1,1] neg_lo:[1,0,0]')
    def put(base, row, md, src, neg):
        I(f'v_cvt_pk_bf16_f32 v{T0+4+md}, v{src}, {"-" if neg else ""}v{src+1}')
        k.ds(f'ds_write_b32 v5, v{T0+4+md} offset:{base + row*528 + md*256}')
    for md in range(2):
        la, ai, cr, ci = 16 + md, 18 + md, 20 + md, 22 + md
        I(f'v_mul_f32 v{la}, {L2E:#x}, v{la}\nv_exp_f32 v{la}, v{la}\ns_nop 0\nv_cvt_pk_bf16_f32 v{la}, v{la}, v{la}\nv_and_b32 v{la}, 0xffff0000, v{la}')
        I(f'v_mul_f32 v{la}, v{la}, v4\nv_mul_f32 v{R(md,"AR")}, {f2u(-math.log2(math.e)):#x}, v{la}')
        I(f'v_mul_f32 v{ai}, v{ai}, v4\nv_mul_f32 v{R(md,"AI")}, {f2u(1.0/(2*math.pi)):#x}, v{ai}')
        I(f'v_mul_f32 v{cr}, v{cr}, v4\nv_mul_f32 v{ci}, v{ci}, v4\nv_add_f32 v{R(md,"C")}, v{cr}, v{cr}\nv_add_f32 v{R(md,"C")+1}, v{ci}, v{ci}')
        direct(R(md, 'Z'), md, 1); direct(R(md, 'Z8'), md, 8); direct(R(md, 'Z128'), md, 128)
    for md in range(2):
        I(f'v_mov_b32 v{R(md,"F")}, 1.0\nv_mov_b32 v{R(md,"F")+1}, 0')
        put(FB, 0, md, R(md, 'F'), False)
        put(FB, 1, md, R(md, 'Z8'), False)
    cur = {md: R(md, 'Z8') for md in range(2)}
    for beta in range(2, 16):
        for md in range(2):
            dst = R(md, 'F') if cur[md] != R(md, 'F') else T0 + 6 + 2 * md
            cmul(dst, cur[md], R(md, 'Z8')); cur[md] = dst
            put(FB, beta, md, dst, False)
    for e in range(2, 8):
        for md in range(2): cmul(R(md, 'Z') + 2*(e-1), R(md, 'Z') + 2*(e-2), R(md, 'Z'))
    I(f'v_and_b32 v6, 15, v1\nv_lshrrev_b32 v7, 4, v1\nv_mul_u32_u24 v8, 528, v6\nv_lshlrev_b32 v9, 4, v7\nv_add_u32 v8, v8, v9\nv_add_u32 v8, s39, v8')
    BFR = 88
    k.waitall(vm=False)
    bt = [k.ds(f'ds_read_b128 {vr(BFR+4*s,4)}, v8 offset:{FB + s*64}') for s in range(8)]
    ACC = 12
    Ucur = {md: R(md, 'C') for md in range(2)}
    alpha = [0]
    def next_U():
        for md in range(2):
            dst = R(md, 'U') if Ucur[md] != R(md, 'U') else R(md, 'F')
            cmul(dst, Ucur[md], R(md, 'Z128')); Ucur[md] = dst
        alpha[0] += 1
    def row_out(row, eps):
        for md in range(2):
            if eps == 0: put(GB, row, md, Ucur[md], True)
            else:
                t = T0 + 6 + 2 * md
                cmul(t, Ucur[md], R(md, 'Z') + 2*(eps-1)); put(GB, row, md, t, True)
    tiles = [[(0, e) for e in range(8)] + [(1, e) for e in range(8)],
             [(a, e) for a in (2, 3) for e in (0, 2, 4, 6)] + [(a, e) for a in (4, 5, 6, 7) for e in (0, 4)],
             [(a, 0) for a in range(8, 17)]]
    for ti, rows in enumerate(tiles):
        for row, (a, e) in enumerate(rows):
            while alpha[0] < a: next_U()
            row_out(row, e)
        k.waitall(vm=False)
        tks = {0: k.ds(f'ds_read_b128 v[120:123], v8 offset:{GB}')}
        for s in range(8):
            if s + 1 < 8: tks[s+1] = k.ds(f'ds_read_b128 {vr((120, 124)[(s+1) & 1],4)}, v8 offset:{GB + (s+1)*64}')
            k.wait(tks[s])
            I(f'v_mfma_f32_16x16x32_bf16 {vr(ACC+4*ti,4)}, {vr((120, 124)[s & 1],4)}, {vr(BFR+4*s,4)}, {"0" if s == 0 else vr(ACC+4*ti,4)}')
    k.nop(8)
    k.stamp()
    TB = GB
    I(f'v_lshlrev_b32 v9, 4, v6\nv_add_u32 v9, s39, v9')
    I('v_lshrrev_b32 v10, 1, v7\nv_lshlrev_b32 v10, 8, v10\nv_and_b32 v11, 1, v7\nv_lshlrev_b32 v11, 3, v11\nv_add_u32 v10, v10, v11\nv_add_u32 v10, v10, v9')
    def tput(addr, r, acc, off):
        I(f'v_cvt_pk_bf16_f32 v{T0+r}, v{acc}, v{acc}')
        k.ds(f'ds_write_b16 v{addr}, v{T0+r} offset:{TB + off}')
    for r in range(4): tput(10, r, ACC + r, 2*r)
    I('v_cmp_gt_u32 vcc, 2, v7\nv_lshlrev_b32 v10, 8, v7\nv_add_u32 v10, 512, v10\nv_lshlrev_b32 v11, 9, v7')
    I('v_cndmask_b32 v10, v11, v10, vcc\nv_add_u32 v10, v10, v9')
    for r in range(4):
        lo, hi = 4*r, 256*(r >> 1) + 8*(r & 1)
        I(f'v_mov_b32 v11, {hi}\nv_cndmask_b32 v11, v11, {lo}, vcc' if lo <= 64 else '')
        I('v_add_u32 v11, v11, v10')
        tput(11, r, ACC + 4 + r, 0)
    for r in range(4):
        I(f'v_lshlrev_b32 v10, 2, v7\nv_add_u32 v10, {8 + r}, v10\nv_min_u32 v10, 17, v10\nv_lshlrev_b32 v10, 8, v10\nv_add_u32 v10, v10, v9')
        tput(10, r, ACC + 8 + r, 0)
    k.waitall(vm=False)
    I(f'v_lshlrev_b32 v10, 4, v1\nv_add_u32 v10, s39, v10')
    I(f's_mul_i32 s40, s34, {KG_PITCH}\ns_add_u32 s40, s40, {OFF_KG}')
    I('v_sub_u32 v11, 255, v1\nv_lshlrev_b32 v11, 4, v11')
    I('v_cmp_gt_u32 vcc, 32, v1\nv_and_b32 v12, 1, v1\nv_lshlrev_b32 v12, 4, v12')
    PAT = {1: [0,0,2,4,4,4,6,8], 2: [0,0,0,4,4,4,8,8], 3: [0,0,0,0,None,8,8,8]}
    for it in range(4):
        for e in range(8):
            reg = 32 + 8*it + e
            if it == 0:
                dl = 2 * (PAT[1][e] - e)
                if dl:
                    I(f'v_mov_b32 v13, {dl}\nv_cndmask_b32 v13, v13, 0, vcc\nv_add_u32 v13, v13, v10'); a = 13
                else: a = 10
                k.ds(f'ds_read_u16 v{reg}, v{a} offset:{TB + 2*e}')
            elif it == 1:
                k.ds(f'ds_read_u16 v{reg}, v10 offset:{TB + 1024 + 2*PAT[2][e]}')
            else:
                if PAT[3][e] is None:
                    I('v_add_u32 v13, v12, v10')
                    k.ds(f'ds_read_u16 v{reg}, v13 offset:{TB + it*1024}')
                else:
                    k.ds(f'ds_read_u16 v{reg}, v10 offset:{TB + it*1024 + 2*PAT[3][e]}')
    k.waitall(vm=False)
    for it in range(4):
        for j in range(4):
            I(f'v_lshl_or_b32 v{16+4*it+j}, v{32+8*it+6-2*j}, 16, v{32+8*it+7-2*j}')
    for it in range(4):
        I(f's_sub_u32 s41, s40, {it*1024}')
        I(f'buffer_store_dwordx4 {vr(16+4*it,4)}, v11, s[4:7], s41 offen')
    I('s_nop 1')
    for r in range(4): I(f'v_mov_b32 v{32+r}, 0')
    I('v_lshlrev_b32 v12, 4, v1\nv_cmp_gt_u32 vcc, 16, v1\ns_nop 1\ns_and_saveexec_b64 s[42:43], vcc')
    I('s_add_u32 s41, s40, 4096\nbuffer_store_dwordx4 v[32:35], v12, s[4:7], s41 offen')
    k.stamp()
    k.label('L_prep_fin')
    I('s_waitcnt vmcnt(0)')
    k.st_n = 4; k.stamp()
    if stamps: I('s_mov_b32 s2, s59')
    k.stamp_store('s[4:7]', nmax=5)
    k.label('L_prep_end')
    I('s_endpgm')
    for e in hazards(k.lines, 'prep'): print('HAZARD', e)
    return k, LDS_BYTES
if __name__ == '__main__':
    k, lds = build(); print(len(k.lines), lds)
```

```python
import sys, importlib
HEAD = open('adaLN_cond__ssm_conv_s4d__mixer_channel_mlp__prompt.s.ref').read().split('; Override')[0]
FINAL = 'adaLN_cond__ssm_conv_s4d__mixer_channel_mlp__prompt.s'
def make(path, kernels):
    out = [HEAD.rstrip('\n')]
    for k, g, b, lds in kernels:
        out.append(f'; @launch kernel={k.name} grid=({g},1,1) block=({b},1,1) lds={lds}')
    out.append('.amdgcn_target "amdgcn-amd-amdhsa--gfx950"')
    seen = set()
    for k, g, b, lds in kernels:
        if k.name in seen: continue
        seen.add(k.name); out.append(k.text())
    open(path, 'w').write('\n'.join(out))
def full(path, mlp_kw={}, conv_kw={}, prep_kw={}, comb_kw={}):
    import k_mlp, k_comb, k_conv, k_prep
    p, pl = k_prep.build(**prep_kw); cv, cl = k_conv.build(**conv_kw); m, ml = k_mlp.build(**mlp_kw); c, _ = k_comb.build(**comb_kw)
    L = [(p, k_prep.GRID, 256, pl), (cv, 576, 256, cl), (m, 256, 512, ml)]
    if not mlp_kw.get('ikr'): L.append((c, 576, 256, 0))
    make(path, L)
if __name__ == '__main__':
    kw = dict(inter=True, prefetch=False, nF=4, ikr=True)
    full(FINAL, mlp_kw=kw)
    st = dict(conv_kw=dict(stamps=True), prep_kw=dict(stamps=True))
    full('t_ikr.s', mlp_kw=dict(stamps=True, fine=True, **kw), **st)
```

```python
from asmlib import Kern, hazards
from layout import *
import struct
def vr(a, n): return f'v[{a}:{a+n-1}]'
KC = 4416
L_H = 28672
L_U = L_H + 48 * 160
LDS_CH = L_U + 32 * 160
LDS_BYTES = 3 * LDS_CH
XT_PITCH = 4096

def build(stamps=False, wpf=True, xmap=True, no_mfma=False, no_a=False, no_b=False, prio=True):
    NCH = 3
    LB = 's61'
    k = Kern('conv_kernel', 128, 96)
    I = k.I
    k.stamp_init(stamps, 64, OFF_DBG + 0x10000)
    I('s_cmp_ge_u32 s2, 192\ns_cbranch_scc1 L_conv_end')
    I('s_mov_b32 s55, s2')
    if xmap: I('s_and_b32 s34, s2, 7\ns_mul_i32 s34, s34, 24\ns_lshr_b32 s2, s2, 3\ns_add_u32 s2, s2, s34')
    I('s_load_dwordx2 s[20:21], s[0:1], 48\ns_load_dwordx2 s[26:27], s[0:1], 128')
    I('s_cmp_lt_u32 s55, 96\ns_cselect_b32 s54, 64, 80\ns_load_dwordx2 s[56:57], s[0:1], s54')
    k.stamp()
    I('v_mov_b32 v42, v0\nv_lshrrev_b32 v2, 6, v0\nv_and_b32 v0, 255, v0\nv_and_b32 v1, 63, v0\nv_and_b32 v3, 15, v1\nv_lshrrev_b32 v4, 4, v1')
    I('v_readfirstlane_b32 s33, v2')
    I(f's_nop 3\ns_lshr_b32 s34, s33, 2\ns_and_b32 s33, s33, 3\ns_mul_i32 s2, s2, 3\ns_add_u32 s2, s2, s34\ns_mul_i32 {LB}, s34, {LDS_CH}')
    I('v_lshlrev_b32 v5, 4, v0')
    I('s_waitcnt lgkmcnt(0)')
    I(f's_mov_b32 s4, s26\ns_mov_b32 s5, s27\ns_mov_b32 s6, {WS_BYTES}\ns_mov_b32 s7, 0x20000')
    I('s_and_b32 s34, s2, 0xfffffffe\ns_lshl_b32 s34, s34, 1\ns_load_dword s35, s[20:21], s34')
    I('v_lshrrev_b32 v6, 2, v0\nv_mul_u32_u24 v6, 36864, v6\nv_and_b32 v7, 3, v0\nv_lshlrev_b32 v7, 4, v7\nv_add_u32 v30, v6, v7')
    I(f's_lshl_b32 s36, s2, 6\ns_add_u32 s37, s36, {OFF_NT}\ns_add_u32 s36, s36, {OFF_UT}')
    tn = k.vm('buffer_load_dwordx4 v[16:19], v30, s[4:7], s37 offen')
    I(f's_mul_i32 s38, s2, {KG_PITCH}\ns_add_u32 s38, s38, {OFF_KG}')
    k.vm('buffer_load_dwordx4 v[24:27], v5, s[4:7], s38 offen')
    tkk = k.vm('buffer_load_dwordx2 v[28:29], v5, s[4:7], s38 offen offset:16')
    tu = k.vm('buffer_load_dwordx4 v[20:23], v30, s[4:7], s36 offen')
    I(f'v_mul_u32_u24 v6, 2304, v1\ns_lshl_b32 s39, s2, 2\ns_add_u32 s39, s39, {OFF_MODP}')
    tm = None
    I('v_cmp_gt_u32 vcc, 6, v1\ns_nop 1\ns_and_saveexec_b64 s[42:43], vcc')
    for p in range(9):
        I(f's_add_u32 s40, s39, {p*13824}')
        tm = k.vm(f'buffer_load_dword v{32+p}, v6, s[4:7], s40 offen')
    I('s_mov_b64 exec, s[42:43]')
    I(f's_cmp_lt_u32 s2, 32\ns_cbranch_scc0 L_conv_nofl\ns_lshl_b32 s40, s2, 7\ns_add_u32 s40, s40, {OFF_FLAG}')
    I('v_mov_b32 v44, 0\nv_lshlrev_b32 v7, 2, v0\nv_cmp_gt_u32 vcc, 32, v0\ns_nop 1\ns_and_saveexec_b64 s[42:43], vcc')
    I('buffer_store_dword v44, v7, s[4:7], s40 offen')
    I('s_mov_b64 exec, s[42:43]')
    k.label('L_conv_nofl')
    for r in range(4): I(f'v_mov_b32 v{44+r}, 0')
    I(f'v_cmp_gt_u32 vcc, 160, v0\nv_add_u32 v7, {L_H}, v5\nv_add_u32 v7, {LB}, v7\ns_and_saveexec_b64 s[42:43], vcc')
    k.ds('ds_write_b128 v7, v[44:47]')
    I('s_mov_b64 exec, s[42:43]')
    I(f'v_lshrrev_b32 v7, 3, v0\nv_mul_u32_u24 v7, {KC}, v7\nv_and_b32 v8, 7, v0\nv_lshlrev_b32 v8, 4, v8\nv_add_u32 v7, v7, v8\nv_add_u32 v7, 4096, v7\nv_add_u32 v7, {LB}, v7\nv_add_u32 v43, {LB}, v5')
    I('v_cmp_gt_u32 vcc, 32, v0\ns_nop 1\ns_and_saveexec_b64 s[42:43], vcc')
    k.ds('ds_write_b128 v7, v[44:47]')
    I('s_mov_b64 exec, s[42:43]')
    k.wait(tkk)
    k.stamp()
    W = [24, 25, 26, 27, 28, 29]
    k.ds('ds_write_b128 v43, v[24:27]')
    for j in range(4): I(f'v_alignbit_b32 v{48+j}, v{W[j+1]}, v{W[j]}, 16')
    k.ds(f'ds_write_b128 v43, v[48:51] offset:{KC}')
    for j in range(4): I(f'v_mov_b32 v{52+j}, v{W[j+1]}')
    k.ds(f'ds_write_b128 v43, v[52:55] offset:{2*KC}')
    for j in range(4): I(f'v_alignbit_b32 v{56+j}, v{W[j+2]}, v{W[j+1]}, 16')
    k.ds(f'ds_write_b128 v43, v[56:59] offset:{3*KC}')
    k.wait(tm)
    k.stamp()
    for p in range(1, 9): I(f'v_add_f32 v32, v32, v{32+p}')
    I('v_cvt_pk_bf16_f32 v32, v32, v32\nv_and_b32 v32, 0xffff0000, v32')
    I('v_add_f32 v33, 1.0, v32\nv_cvt_pk_bf16_f32 v33, v33, v33\nv_and_b32 v33, 0xffff0000, v33')
    I('v_cmp_eq_u32 vcc, 1, v1\nv_cmp_eq_u32 s[42:43], 4, v1\ns_nop 1\ns_or_b64 vcc, vcc, s[42:43]\ns_nop 1')
    I('v_cndmask_b32 v32, v32, v33, vcc\ns_nop 1')
    I('v_readlane_b32 s44, v32, 0\nv_readlane_b32 s45, v32, 1\nv_readlane_b32 s46, v32, 2')
    I('s_cmp_eq_u32 s33, 0\ns_cbranch_scc0 L_conv_nomod')
    I('v_sub_u32 v34, 8, v1\nv_cmp_gt_u32 vcc, 3, v1\ns_nop 1\nv_cndmask_b32 v34, v34, v1, vcc')
    I(f'v_mul_u32_u24 v34, 2304, v34\ns_lshl_b32 s40, s2, 2\ns_add_u32 s40, s40, {OFF_MODF}')
    I('v_cmp_gt_u32 vcc, 6, v1\ns_nop 1\ns_and_saveexec_b64 s[42:43], vcc')
    I('buffer_store_dword v32, v34, s[4:7], s40 offen')
    I('s_mov_b64 exec, s[42:43]')
    k.label('L_conv_nomod')
    k.wait(tn)
    k.stamp()
    I('v_mov_b32 v38, s45\nv_mov_b32 v39, s44')
    for j in range(4):
        I(f'v_lshlrev_b32 v36, 16, v{16+j}\nv_and_b32 v37, 0xffff0000, v{16+j}')
        I(f'v_fma_f32 v36, v36, v38, v39\nv_fma_f32 v37, v37, v38, v39\nv_cvt_pk_bf16_f32 v{16+j}, v36, v37')
    I(f'v_lshrrev_b32 v7, 3, v0\nv_mul_u32_u24 v7, 160, v7\nv_and_b32 v8, 7, v0\nv_lshlrev_b32 v8, 4, v8\nv_add_u32 v7, v7, v8\nv_add_u32 v7, {LB}, v7')
    k.ds(f'ds_write_b128 v7, v[16:19] offset:{L_H + 16*160}')
    k.wait(tu)
    k.stamp()
    k.ds(f'ds_write_b128 v7, v[20:23] offset:{L_U}')
    VA, VB = 8, 9
    I('v_sub_u32 v10, 3, v3\nv_and_b32 v10, 3, v10')
    I(f'v_mul_u32_u24 v11, {KC}, v10\nv_lshlrev_b32 v12, 3, v4\nv_sub_u32 v12, v12, v3\nv_sub_u32 v12, v12, v10\nv_add_u32 v12, 2047, v12\nv_lshlrev_b32 v12, 1, v12\nv_add_u32 v14, v11, v12\nv_add_u32 v14, {LB}, v14')
    I(f'v_mul_u32_u24 v11, 160, v3\nv_lshlrev_b32 v12, 4, v4\nv_add_u32 v11, v11, v12\nv_add_u32 v15, {L_H + 16*160}, v11\nv_add_u32 v15, {LB}, v15')
    I('s_mul_i32 s48, s33, 6\ns_mov_b32 s49, 3\ns_mov_b32 s50, 16\ns_mov_b32 s51, 0')
    I('s_cmp_eq_u32 s33, 2\ns_cselect_b32 s49, 2, s49\ns_cselect_b32 s51, 2, s51')
    I('s_cmp_eq_u32 s33, 3\ns_cselect_b32 s49, 0, s49\ns_cselect_b32 s50, 20, s50\ns_cselect_b32 s51, 6, s51')
    ACC = (64, 80); AF = 96
    BF = 32
    for r in range(32): I(f'v_mov_b32 v{64+r}, 0')
    k.waitall()
    I('s_barrier')
    k.stamp()
    if wpf:
        I('s_mov_b32 s58, 5308416\ns_mov_b32 s59, 0x20000')
        I('s_cmp_lt_u32 s55, 96\ns_cselect_b32 s54, 0, 96\ns_sub_u32 s54, s55, s54\ns_mul_i32 s54, s54, 55296')
        I('v_lshlrev_b32 v10, 7, v42\nv_add_u32 v10, s54, v10\nv_cmp_gt_u32 vcc, 432, v42\ns_nop 1\nv_cndmask_b32 v10, -16, v10, vcc')
        I('buffer_load_dword v31, v10, s[56:59], 0 offen')
    def a_read(slot, o):
        off = 32 * (3 - o)
        if no_a and a_read.inloop: return None
        k.ds(f'ds_read_b64 {vr(AF+4*slot,2)}, v{VA} offset:{off}')
        return k.ds(f'ds_read_b64 {vr(AF+4*slot+2,2)}, v{VA} offset:{off+8}')
    a_read.inloop = False
    def b_read(buf, j, s, dual):
        if no_b and a_read.inloop: return None
        off = 64 * s + (2560 * j if dual else 0)
        return k.ds(f'ds_read_b128 {vr(BF+16*buf+8*j+4*s,4)}, v{VB} offset:{off}')
    def segment(name, dual, s_d0, s_n):
        js = (0, 1) if dual else (1,)
        I(f's_cmp_eq_u32 s{s_n}, 0\ns_cbranch_scc1 L_{name}_skip')
        I(f's_lshl_b32 s52, s{s_d0}, 7\ns_add_u32 s52, s52, 96\nv_subrev_u32 v{VA}, s52, v14')
        I(f's_mul_i32 s52, s{s_d0}, 160\ns_sub_u32 s52, {0 if dual else 2560}, s52\nv_add_u32 v{VB}, s52, v15')
        tok = {}
        for o in (-2, -1):
            slot = o % 8
            k.ds(f'ds_read_b64 {vr(AF+4*slot,2)}, v{VA} offset:{32*(3-o)}')
            tok[slot] = k.ds(f'ds_read_b64 {vr(AF+4*slot+2,2)}, v{VA} offset:{32*(3-o)+8}')
        for o in range(4): tok[o] = a_read(o, o)
        btok = {0: None, 1: None}
        for j in js:
            for s in range(2): btok[0] = b_read(0, j, s, dual)
        k.waitall(vm=False)
        state = dict(tok=tok, btok=btok)
        def unit(par):
            sl = lambda o: (4 * par + o) % 8
            nb = 1 - par
            def mm(j, i, s):
                if not no_mfma: I(f'v_mfma_f32_16x16x32_bf16 {vr(ACC[j]+4*i,4)}, {vr(AF+4*sl(i-2*s),4)}, {vr(BF+16*par+8*j+4*s,4)}, {vr(ACC[j]+4*i,4)}')
            def an(o): state['tok'][sl(4 + o)] = a_read(sl(4 + o), o)
            def bn(j, s): state['btok'][nb] = b_read(nb, j, s, dual)
            k.wait(state['btok'][par], *[state['tok'][sl(o)] for o in (-2, -1, 0, 1)])
            t2 = state['tok'][sl(2)]; t3 = state['tok'][sl(3)]
            if dual:
                mm(0, 0, 1)
                I(f'v_subrev_u32 v{VA}, 128, v{VA}\nv_subrev_u32 v{VB}, 160, v{VB}')
                mm(1, 0, 1); bn(0, 0)
                mm(0, 1, 1); bn(0, 1)
                mm(1, 1, 1); bn(1, 0)
                mm(0, 2, 1); bn(1, 1)
                mm(1, 2, 1); an(0)
                mm(0, 3, 1)
                mm(1, 3, 1); an(1)
                mm(0, 0, 0)
                mm(1, 0, 0); an(2)
                mm(0, 1, 0)
                mm(1, 1, 0)
                k.wait(t2, t3)
                mm(0, 2, 0); an(3)
                mm(1, 2, 0)
                mm(0, 3, 0)
                mm(1, 3, 0)
            else:
                mm(1, 0, 1)
                I(f'v_subrev_u32 v{VA}, 128, v{VA}\nv_subrev_u32 v{VB}, 160, v{VB}')
                mm(1, 1, 1); bn(1, 0)
                mm(1, 2, 1); bn(1, 1)
                mm(1, 3, 1); an(0)
                mm(1, 0, 0); an(1)
                mm(1, 1, 0); an(2)
                k.wait(t2, t3)
                mm(1, 2, 0); an(3)
                mm(1, 3, 0)
        def body():
            a_read.inloop = True
            unit(0); unit(1)
            a_read.inloop = False
        save = len(k.lines)
        body(); del k.lines[save:]
        body(); second = k.lines[save:]; del k.lines[save:]
        k.label(f'L_{name}_loop')
        st = len(k.lines)
        body()
        assert k.lines[st:] == second
        for e in hazards(second + second, name): print('HAZARD', e)
        I(f's_sub_u32 s{s_n}, s{s_n}, 1\ns_cmp_lg_u32 s{s_n}, 0\ns_cbranch_scc1 L_{name}_loop')
        k.waitall(vm=False)
        k.label(f'L_{name}_skip')
    segment('segA', True, 48, 49)
    segment('segB', False, 50, 51)
    k.stamp()
    I('s_barrier')
    k.stamp()
    I(f'v_lshlrev_b32 v10, 4, v1\nv_add_u32 v10, {LB}, v10')
    I('s_lshl_b32 s52, s33, 12\nv_add_u32 v11, s52, v10')
    I('s_cmp_lt_u32 s33, 3\ns_cbranch_scc0 L_conv_noA\ns_nop 4')
    for i in range(4): I(f'ds_write_b128 v11, {vr(ACC[0]+4*i,4)} offset:{i*1024}')
    k.label('L_conv_noA')
    I('s_nop 4')
    for i in range(4): I(f'ds_write_b128 v11, {vr(ACC[1]+4*i,4)} offset:{3*4096 + i*1024}')
    I('s_waitcnt lgkmcnt(0)\ns_barrier')
    I('s_lshl_b32 s52, s33, 10\nv_add_u32 v11, s52, v10')
    for s_ in range(7): I(f'ds_read_b128 {vr(64+4*s_,4)}, v11 offset:{s_*4096}')
    I(f'v_mul_u32_u24 v12, 160, v3\nv_lshlrev_b32 v13, 3, v4\nv_add_u32 v12, v12, v13\ns_lshl_b32 s52, s33, 5\ns_add_u32 s52, s52, {LB}\nv_add_u32 v12, s52, v12')
    for j in range(2): I(f'ds_read_b64 {vr(96+2*j,2)}, v12 offset:{L_H + 16*160 + j*16*160}')
    for j in range(2): I(f'ds_read_b64 {vr(100+2*j,2)}, v12 offset:{L_U + j*16*160}')
    I('s_bitcmp1_b32 s2, 0\ns_cselect_b32 s53, 0, 16\ns_lshl_b32 s35, s35, s53\ns_and_b32 s35, s35, 0xffff0000')
    I('v_mov_b32 v22, s35\nv_mov_b32 v23, s46')
    I('v_mul_u32_u24 v13, 73728, v3\nv_lshlrev_b32 v12, 3, v4\nv_add_u32 v13, v13, v12\ns_lshl_b32 s52, s33, 5\nv_add_u32 v13, s52, v13')
    I(f's_lshl_b32 s52, s2, 7\ns_add_u32 s52, s52, {OFF_X1T}\ns_add_u32 s53, s52, {16*73728}')
    I('s_waitcnt lgkmcnt(0)')
    for r in range(4):
        I(f'v_add_f32 v{64+r}, v{64+r}, v{68+r}\nv_add_f32 v{76+r}, v{76+r}, v{80+r}\nv_add_f32 v{84+r}, v{84+r}, v{88+r}')
    for r in range(4):
        I(f'v_add_f32 v{64+r}, v{64+r}, v{72+r}\nv_add_f32 v{76+r}, v{76+r}, v{84+r}')
    for j in range(2):
        y = (64, 76)[j]
        for d in range(2):
            hreg, ureg = 96 + 2*j + d, 100 + 2*j + d
            y0, y1 = y + 2*d, y + 2*d + 1
            I(f'v_lshlrev_b32 v17, 16, v{hreg}\nv_and_b32 v18, 0xffff0000, v{hreg}\nv_lshlrev_b32 v20, 16, v{ureg}\nv_and_b32 v21, 0xffff0000, v{ureg}')
            I(f'v_fma_f32 v17, v17, v22, v{y0}\nv_fma_f32 v18, v18, v22, v{y1}')
            I(f'v_fma_f32 v17, v17, v23, v20\nv_fma_f32 v18, v18, v23, v21\nv_cvt_pk_bf16_f32 v{24+2*j+d}, v17, v18')
        I(f'buffer_store_dwordx2 {vr(24+2*j,2)}, v13, s[4:7], s{52+j} offen')
    k.stamp()
    I('s_waitcnt vmcnt(0)')
    k.stamp()
    k.stamp_store('s[4:7]', idreg='s55')
    k.label('L_conv_end')
    I('s_endpgm')
    for e in hazards(k.lines, 'conv'): print('HAZARD', e)
    return k, LDS_BYTES
if __name__ == '__main__':
    k, lds = build(); print(len(k.lines), lds)
```

```python
from asmlib import Kern, hazards
from layout import *
import struct, math
def vr(a, n): return f'v[{a}:{a+n-1}]'
f2u = lambda x: struct.unpack('<I', struct.pack('<f', x))[0]
N_LN, N_KG, N_MOD = 64, 576, 243
GRID = N_LN + N_KG + N_MOD
L_F = 0
L_G = 16 * 528
TB = L_F + 8
TP = 1184
T_BYTES = 32 * TP + 384
LDS_BYTES = max(T_BYTES, 64 * 528, 8192)

def build(stamps=False, prio=True, xmap=True):
    k = Kern('prep_kernel', 128, 96)
    I = k.I
    k.stamp_init(stamps, 64, OFF_DBG + 0x20000)
    I(f's_cmp_ge_u32 s2, {GRID}\ns_cbranch_scc1 L_prep_end')
    I('s_load_dwordx2 s[26:27], s[0:1], 128')
    k.stamp()
    if stamps: I('s_mov_b32 s59, s2')
    I('v_and_b32 v1, 63, v0\nv_lshrrev_b32 v2, 6, v0')
    I('s_nop 0\nv_readfirstlane_b32 s33, v2')
    I(f's_cmp_ge_u32 s2, {N_LN + N_KG}\ns_cbranch_scc1 L_mod')
    I(f's_cmp_ge_u32 s2, {N_LN}\ns_cbranch_scc1 L_kgen')
    I('s_load_dwordx2 s[20:21], s[0:1], 0')
    if prio: I('s_setprio 3')
    I('v_lshrrev_b32 v3, 3, v0\nv_and_b32 v4, 7, v0')
    I('s_lshl_b32 s34, s2, 5\nv_add_u32 v5, s34, v3\nv_mul_u32_u24 v5, 1152, v5\nv_lshlrev_b32 v6, 4, v4\nv_add_u32 v5, v5, v6')
    I('s_waitcnt lgkmcnt(0)')
    I(f's_mov_b32 s4, s26\ns_mov_b32 s5, s27\ns_mov_b32 s6, {WS_BYTES}\ns_mov_b32 s7, 0x20000')
    I('s_mov_b32 s8, s20\ns_mov_b32 s9, s21\ns_mov_b32 s10, 2359296\ns_mov_b32 s11, 0x20000')
    U, X = 16, 52
    tk = [k.vm(f'buffer_load_dwordx4 {vr(U+4*m,4)}, v5, s[8:11], 0 offen offset:{m*128}') for m in range(9)]
    I(f'v_mul_u32_u24 v7, {TP}, v3\nv_lshrrev_b32 v8, 3, v3\nv_lshlrev_b32 v8, 7, v8\nv_add_u32 v7, v7, v8\nv_add_u32 v7, v7, v6')
    I('v_mov_b32 v10, 0\nv_mov_b32 v11, 0')
    for m in range(9):
        k.wait(tk[m])
        k.ds(f'ds_write_b128 v7, {vr(U+4*m,4)} offset:{m*128}')
        for d in range(4):
            I(f'v_lshlrev_b32 v{X+8*m+2*d}, 16, v{U+4*m+d}\nv_and_b32 v{X+8*m+2*d+1}, 0xffff0000, v{U+4*m+d}')
        for d in range(4): I(f'v_pk_add_f32 v[10:11], v[10:11], {vr(X+8*m+2*d,2)}')
    k.stamp()
    I('v_lshrrev_b32 v3, 4, v1\nv_and_b32 v4, 15, v1\nv_lshrrev_b32 v5, 2, v4\nv_and_b32 v6, 3, v1')
    I(f'v_lshlrev_b32 v14, 3, v3\nv_add_u32 v14, v14, v5\nv_mul_u32_u24 v14, {TP}, v14\nv_lshlrev_b32 v8, 7, v3\nv_add_u32 v14, v14, v8')
    I('v_lshlrev_b32 v8, 3, v6\nv_add_u32 v14, v14, v8\ns_mul_i32 s35, s33, 288\nv_add_u32 v14, s35, v14')
    I('s_mul_i32 s35, s33, 144\nv_add_u32 v8, s35, v4\nv_lshlrev_b32 v8, 6, v8\nv_lshlrev_b32 v9, 4, v3\nv_add_u32 v8, v8, v9\ns_mul_i32 s35, s2, 36864\nv_add_u32 v8, s35, v8')
    def transposed(arr, off, rb):
        tks = []
        for i in range(9):
            k.ds(f'ds_read_b64_tr_b16 {vr(rb+4*i,2)}, v14 offset:{i*32}')
            tks.append(k.ds(f'ds_read_b64_tr_b16 {vr(rb+4*i+2,2)}, v14 offset:{i*32 + 4*TP}'))
        return tks
    def stores(tks, off, rb):
        for i in range(9):
            k.wait(tks[i])
            I(f's_mov_b32 s36, {off + i*1024}')
            k.vm(f'buffer_store_dwordx4 {vr(rb+4*i,4)}, v8, s[4:7], s36 offen')
    k.waitall(vm=False)
    I('s_barrier')
    tks = transposed(0, OFF_UT, U)
    def red8(reg):
        I(f's_nop 1\nv_add_f32_dpp v{reg}, v{reg}, v{reg} quad_perm:[1,0,3,2] row_mask:0xf bank_mask:0xf')
        I(f's_nop 1\nv_add_f32_dpp v{reg}, v{reg}, v{reg} quad_perm:[2,3,0,1] row_mask:0xf bank_mask:0xf')
        I(f's_nop 1\nv_add_f32_dpp v{reg}, v{reg}, v{reg} row_half_mirror row_mask:0xf bank_mask:0xf')
    I('v_add_f32 v10, v10, v11')
    red8(10)
    I(f'v_mul_f32 v10, {f2u(-1.0/576):#x}, v10\nv_mov_b32 v12, 0\nv_mov_b32 v11, v10\nv_mov_b32 v13, 0')
    stores(tks, OFF_UT, U)
    for e in range(36): I(f'v_pk_add_f32 {vr(X+2*e,2)}, {vr(X+2*e,2)}, v[10:11]')
    for e in range(36): I(f'v_pk_fma_f32 v[12:13], {vr(X+2*e,2)}, {vr(X+2*e,2)}, v[12:13]')
    I('v_add_f32 v12, v12, v13')
    red8(12)
    I(f'v_mul_f32 v12, {f2u(1.0/576):#x}, v12\nv_add_f32 v12, {f2u(1e-5):#x}, v12\nv_rsq_f32 v12, v12\ns_nop 0\nv_mov_b32 v13, v12')
    for e in range(36):
        I(f'v_pk_mul_f32 {vr(X+2*e,2)}, {vr(X+2*e,2)}, v[12:13]')
        I(f'v_cvt_pk_bf16_f32 v{U+e}, v{X+2*e}, v{X+2*e+1}')
    I('s_barrier')
    for m in range(9): k.ds(f'ds_write_b128 v7, {vr(U+4*m,4)} offset:{m*128}')
    k.waitall(vm=False)
    I('s_barrier')
    k.stamp()
    tks = transposed(1, OFF_NT, X)
    stores(tks, OFF_NT, X)
    k.stamp()
    I('s_branch L_prep_fin')
    k.st_n = 1
    k.label('L_mod')
    I('s_load_dwordx2 s[20:21], s[0:1], 96\ns_load_dwordx2 s[22:23], s[0:1], 104')
    I(f's_sub_u32 s34, s2, {N_LN + N_KG}\ns_mul_i32 s35, s34, 2428\ns_lshr_b32 s35, s35, 16\ns_mul_i32 s36, s35, 27\ns_sub_u32 s36, s34, s36')
    I('v_and_b32 v3, 15, v0\nv_lshrrev_b32 v4, 4, v0')
    I('s_lshl_b32 s37, s35, 6\nv_add_u32 v5, s37, v4')
    I('v_mul_u32_u24 v6, 6912, v5\nv_lshlrev_b32 v7, 4, v3\nv_add_u32 v6, v6, v7\ns_lshl_b32 s37, s36, 8\nv_add_u32 v6, s37, v6')
    I('v_lshlrev_b32 v5, 1, v5')
    I('s_waitcnt lgkmcnt(0)')
    I(f's_mov_b32 s4, s26\ns_mov_b32 s5, s27\ns_mov_b32 s6, {WS_BYTES}\ns_mov_b32 s7, 0x20000')
    I('s_mov_b32 s8, s20\ns_mov_b32 s9, s21\ns_mov_b32 s10, 1152\ns_mov_b32 s11, 0x20000')
    I('s_mov_b32 s12, s22\ns_mov_b32 s13, s23\ns_mov_b32 s14, 3981312\ns_mov_b32 s15, 0x20000')
    tw = []
    for i in range(4):
        I(f's_mov_b32 s38, {i*16*6912}')
        tw.append(k.vm(f'buffer_load_dwordx4 {vr(16+4*i,4)}, v6, s[12:15], s38 offen'))
    tc = None
    for i in range(4): tc = k.vm(f'buffer_load_ushort v{32+i}, v5, s[8:11], 0 offen offset:{i*32}')
    k.wait(tc)
    k.stamp()
    for i in range(4): I(f'v_lshlrev_b32 v{32+i}, 16, v{32+i}')
    for i in range(4): I(f'v_mul_f32 v{36+i}, {f2u(-math.log2(math.e)):#x}, v{32+i}')
    for i in range(4): I(f'v_exp_f32 v{36+i}, v{36+i}')
    for i in range(4): I(f'v_add_f32 v{36+i}, 1.0, v{36+i}')
    for i in range(4): I(f'v_rcp_f32 v{36+i}, v{36+i}')
    for i in range(4): I(f'v_mul_f32 v{32+i}, v{32+i}, v{36+i}')
    for i in range(4): I(f'v_cvt_pk_bf16_f32 v{32+i}, v{32+i}, v{32+i}\nv_and_b32 v{32+i}, 0xffff0000, v{32+i}')
    for e in range(8): I(f'v_mov_b32 v{40+e}, 0')
    for i in range(4):
        for d in range(4):
            I(f'v_lshlrev_b32 v48, 16, v{16+4*i+d}\nv_and_b32 v49, 0xffff0000, v{16+4*i+d}')
            I(f'v_fmac_f32 v{40+2*d}, v48, v{32+i}\nv_fmac_f32 v{40+2*d+1}, v49, v{32+i}')
    I('v_lshlrev_b32 v6, 9, v4\nv_lshlrev_b32 v7, 5, v3\nv_add_u32 v6, v6, v7')
    I('ds_write_b128 v6, v[40:43]\nds_write_b128 v6, v[44:47] offset:16')
    I('s_waitcnt lgkmcnt(0)\ns_barrier')
    I('v_cmp_gt_u32 vcc, 128, v0\nv_lshlrev_b32 v6, 2, v0\ns_nop 0\ns_and_saveexec_b64 s[42:43], vcc\ns_cbranch_execz L_prep_fin')
    for g in range(16): I(f'ds_read_b32 v{16+g}, v6 offset:{g*512}')
    I('s_waitcnt lgkmcnt(0)')
    for g in range(1, 16): I(f'v_add_f32 v16, v16, v{16+g}')
    I(f's_mul_i32 s37, s35, 13824\ns_lshl_b32 s38, s36, 9\ns_add_u32 s37, s37, s38\ns_add_u32 s37, s37, {OFF_MODP}')
    I('buffer_store_dword v16, v6, s[4:7], s37 offen')
    k.stamp(); k.stamp()
    I('s_branch L_prep_fin')
    k.label('L_kgen')
    k.st_n = 1
    k.cnt['vm'] = k.done['vm'] = 0; k.cnt['lg'] = k.done['lg'] = 0
    I(f's_sub_u32 s2, s2, {N_LN}')
    if xmap: I('s_and_b32 s34, s2, 7\ns_mul_i32 s34, s34, 72\ns_lshr_b32 s2, s2, 3\ns_add_u32 s2, s2, s34')
    I('s_load_dwordx2 s[8:9], s[0:1], 8\ns_load_dwordx2 s[12:13], s[0:1], 16\ns_load_dwordx2 s[16:17], s[0:1], 24\ns_load_dwordx2 s[28:29], s[0:1], 32\ns_load_dwordx2 s[20:21], s[0:1], 40')
    I('v_and_b32 v3, 15, v1\nv_lshrrev_b32 v4, 4, v1')
    I('v_and_b32 v6, 127, v0\nv_lshlrev_b32 v7, 1, v6\ns_lshl_b32 s35, s2, 8\nv_add_u32 v7, s35, v7')
    I('s_and_b32 s34, s2, 0xfffffffe\ns_lshl_b32 s34, s34, 1')
    I('s_waitcnt lgkmcnt(0)')
    I('s_load_dword s36, s[20:21], s34')
    I(f's_mov_b32 s4, s26\ns_mov_b32 s5, s27\ns_mov_b32 s6, {WS_BYTES}\ns_mov_b32 s7, 0x20000')
    for b in (8, 12, 16, 28): I(f's_mov_b32 s{b+2}, 147456\ns_mov_b32 s{b+3}, 0x20000')
    tp = None
    for a, b in enumerate((8, 12, 16, 28)): tp = k.vm(f'buffer_load_ushort v{16+a}, v7, s[{b}:{b+3}], 0 offen')
    L2E = f2u(math.log2(math.e))
    I('s_waitcnt lgkmcnt(0)')
    k.done['lg'] = k.cnt['lg']
    I('s_bitcmp1_b32 s2, 0\ns_cselect_b32 s53, 0, 16\ns_lshl_b32 s36, s36, s53\ns_and_b32 s36, s36, 0xffff0000')
    I(f'v_mov_b32 v10, s36\nv_mul_f32 v10, {L2E:#x}, v10\nv_exp_f32 v10, v10\ns_nop 0\nv_cvt_pk_bf16_f32 v10, v10, v10\nv_and_b32 v10, 0xffff0000, v10')
    I('v_lshlrev_b32 v11, 2, v6')
    k.wait(tp)
    k.stamp()
    AR, AI, CC, T0 = 20, 21, 22, 24
    for r in range(16, 20): I(f'v_lshlrev_b32 v{r}, 16, v{r}')
    I(f'v_mul_f32 v16, {L2E:#x}, v16\nv_exp_f32 v16, v16\ns_nop 0\nv_cvt_pk_bf16_f32 v16, v16, v16\nv_and_b32 v16, 0xffff0000, v16')
    I(f'v_mul_f32 v16, v16, v10\nv_mul_f32 v{AR}, {f2u(-math.log2(math.e)):#x}, v16')
    I(f'v_mul_f32 v17, v17, v10\nv_mul_f32 v{AI}, {f2u(1.0/(2*math.pi)):#x}, v17')
    I(f'v_mul_f32 v18, v18, v10\nv_mul_f32 v19, v19, v10\nv_add_f32 v{CC}, v18, v18\nv_add_f32 v{CC+1}, v19, v19')
    def direct(dst, p):
        I(f'v_mul_f32 v{T0}, {f2u(float(p)):#x}, v{AR}\nv_mul_f32 v{T0+1}, {f2u(float(p)):#x}, v{AI}')
        I(f'v_exp_f32 v{T0}, v{T0}\nv_fract_f32 v{T0+1}, v{T0+1}\ns_nop 0\nv_cos_f32 v{T0+2}, v{T0+1}\nv_sin_f32 v{T0+3}, v{T0+1}\ns_nop 0')
        I(f'v_mul_f32 v{dst}, v{T0}, v{T0+2}\nv_mul_f32 v{dst+1}, v{T0}, v{T0+3}')
    def cmul(dst, a, b):
        I(f'v_pk_mul_f32 {vr(dst,2)}, {vr(a,2)}, {vr(b,2)} op_sel:[0,0] op_sel_hi:[1,0]')
        I(f'v_pk_fma_f32 {vr(dst,2)}, {vr(a,2)}, {vr(b,2)}, {vr(dst,2)} op_sel:[1,1,0] op_sel_hi:[0,1,1] neg_lo:[1,0,0]')
    pp = [0]
    def put(base, row, src, neg):
        t = T0 + 4 + (pp[0] & 1); pp[0] += 1
        I(f'v_cvt_pk_bf16_f32 v{t}, v{src}, {"-" if neg else ""}v{src+1}')
        k.ds(f'ds_write_b32 v11, v{t} offset:{base + row*528}')
    Z, Z8, Z128, P0, P1, U0, U1 = 32, 46, 48, 50, 52, 54, 56
    I('s_cmp_ge_u32 s33, 2\ns_cbranch_scc1 L_kg_b')
    direct(Z, 1); direct(Z8, 8); direct(Z128, 128)
    I(f'v_mov_b32 v{P0}, 1.0\nv_mov_b32 v{P0+1}, 0')
    put(L_F, 0, P0, False); put(L_F, 1, Z8, False)
    cur = Z8
    for beta in range(2, 16):
        dst = P0 if cur != P0 else P1
        cmul(dst, cur, Z8); cur = dst
        put(L_F, beta, dst, False)
        if beta - 2 < 6: cmul(Z + 2*(beta-1), Z + 2*(beta-2), Z)
    cmul(U1, CC, Z128)
    for al, U in ((0, CC), (1, U1)):
        put(L_G, 8*al, U, True)
        for e in range(1, 8):
            dst = (P0, P1)[e & 1]
            cmul(dst, U, Z + 2*(e-1)); put(L_G, 8*al + e, dst, True)
    I('s_branch L_kg_done')
    k.label('L_kg_b')
    Z2, Z4, Z6 = Z, Z + 2, Z + 4
    direct(Z2, 2); direct(Z128, 128); direct(P0, 256)
    cmul(Z4, Z2, Z2); cmul(U0, CC, P0); cmul(Z6, Z4, Z2)
    Uc = U0; row = 16
    for al in range(2, 17):
        if al > 2:
            dst = U1 if Uc == U0 else U0
            cmul(dst, Uc, Z128); Uc = dst
        eps = (0, 2, 4, 6) if al < 4 else ((0, 4) if al < 8 else (0,))
        for e in eps:
            if e == 0: put(L_G, row, Uc, True)
            else:
                dst = (P0, P1)[row & 1]
                cmul(dst, Uc, {2: Z2, 4: Z4, 6: Z6}[e]); put(L_G, row, dst, True)
            row += 1
    k.label('L_kg_done')
    k.waitall(vm=False)
    I('s_barrier')
    k.stamp()
    I(f'v_mul_u32_u24 v12, 528, v3\nv_lshlrev_b32 v13, 4, v4\nv_add_u32 v12, v12, v13')
    I(f's_mul_i32 s52, s33, {16*528}\ns_add_u32 s52, s52, {L_G}\nv_add_u32 v13, s52, v12')
    I('s_cmp_lt_u32 s33, 3\ns_cbranch_scc0 L_nomm')
    at = []
    for s in range(8):
        I(f'ds_read_b128 {vr(32+8*s,4)}, v13 offset:{s*64}\nds_read_b128 {vr(36+8*s,4)}, v12 offset:{L_F + s*64}')
    for s in range(8):
        I(f's_waitcnt lgkmcnt({14 - 2*s})')
        I(f'v_mfma_f32_16x16x32_bf16 v[96:99], {vr(32+8*s,4)}, {vr(36+8*s,4)}, {"0" if s == 0 else "v[96:99]"}')
    k.label('L_nomm')
    I('s_barrier')
    I('v_lshlrev_b32 v9, 4, v3')
    I('s_cmp_lt_u32 s33, 3\ns_cbranch_scc0 L_notab')
    I('s_cmp_eq_u32 s33, 1\ns_cbranch_scc1 L_tab1\ns_cmp_eq_u32 s33, 2\ns_cbranch_scc1 L_tab2')
    def tput(addr, r, off):
        I(f'v_cvt_pk_bf16_f32 v{24+r}, v{96+r}, v{96+r}')
        I(f'ds_write_b16 v{addr}, v{24+r} offset:{TB + off}')
    I('v_lshrrev_b32 v14, 1, v4\nv_lshlrev_b32 v14, 8, v14\nv_and_b32 v15, 1, v4\nv_lshlrev_b32 v15, 3, v15\nv_add_u32 v14, v14, v15\nv_add_u32 v14, v14, v9')
    for r in range(4): tput(14, r, 2*r)
    I('s_branch L_notab')
    k.label('L_tab1')
    I('v_cmp_gt_u32 vcc, 2, v4\nv_lshlrev_b32 v14, 8, v4\nv_add_u32 v14, 512, v14\nv_lshlrev_b32 v15, 9, v4')
    I('v_cndmask_b32 v14, v15, v14, vcc\nv_add_u32 v14, v14, v9')
    for r in range(4):
        lo, hi = 4*r, 256*(r >> 1) + 8*(r & 1)
        I(f'v_mov_b32 v15, {hi}\nv_cndmask_b32 v15, v15, {lo}, vcc\nv_add_u32 v15, v15, v14')
        tput(15, r, 0)
    I('s_branch L_notab')
    k.label('L_tab2')
    for r in range(4):
        I(f'v_lshlrev_b32 v14, 2, v4\nv_add_u32 v14, {8 + r}, v14\nv_min_u32 v14, 17, v14\nv_lshlrev_b32 v14, 8, v14\nv_add_u32 v14, v14, v9')
        tput(14, r, 0)
    k.label('L_notab')
    I(f'v_mov_b32 v14, {L_F}\nv_mov_b32 v24, 0\nv_mov_b32 v25, 0\nv_cmp_eq_u32 vcc, 192, v0\ns_nop 1\ns_and_saveexec_b64 s[42:43], vcc')
    I('ds_write_b64 v14, v[24:25]')
    I('s_mov_b64 exec, s[42:43]')
    I('s_waitcnt lgkmcnt(0)\ns_barrier')
    k.stamp()
    I('v_lshlrev_b32 v14, 4, v0\nv_add_u32 v14, 14, v14\nv_cvt_f32_i32 v14, v14')
    I(f'v_mov_b32 v15, {TB}')
    X = 32
    for j in range(0, 8, 2):
        I(f'v_add_f32 v24, {f2u(-2.0*j):#x}, v14' if j else 'v_mov_b32 v24, v14')
        I(f'v_add_f32 v25, {f2u(-2.0*(j+1)):#x}, v14')
        I('v_cvt_pk_bf16_f32 v26, v24, v25\nv_lshlrev_b32 v24, 16, v26\nv_and_b32 v25, 0xffff0000, v26')
        I('v_cvt_i32_f32 v24, v24\nv_cvt_i32_f32 v25, v25\nv_add_u32 v24, v24, v15\nv_add_u32 v25, v25, v15')
        I(f'ds_read_u16 v{X+j}, v24')
        I(f'ds_read_u16 v{X+j+1}, v25')
    I(f's_mul_i32 s40, s2, {KG_PITCH}\ns_add_u32 s40, s40, {OFF_KG}')
    I('v_sub_u32 v9, 255, v0\nv_lshlrev_b32 v9, 4, v9')
    for r in range(4): I(f'v_mov_b32 v{44+r}, 0')
    I('v_lshlrev_b32 v12, 4, v0\nv_cmp_gt_u32 vcc, 16, v0')
    I('s_waitcnt lgkmcnt(0)')
    for d in range(4): I(f'v_lshl_or_b32 v{48+d}, v{X+2*d+1}, 16, v{X+2*d}')
    I('buffer_store_dwordx4 v[48:51], v9, s[4:7], s40 offen')
    I('s_and_saveexec_b64 s[42:43], vcc\ns_add_u32 s41, s40, 4096')
    I('buffer_store_dwordx4 v[44:47], v12, s[4:7], s41 offen')
    I('s_mov_b64 exec, s[42:43]')
    k.stamp()
    k.label('L_prep_fin')
    I('s_waitcnt vmcnt(0)')
    k.st_n = 4; k.stamp()
    if stamps: I('s_mov_b32 s2, s59')
    k.stamp_store('s[4:7]', nmax=5)
    k.label('L_prep_end')
    I('s_endpgm')
    for e in hazards(k.lines, 'prep'): print('HAZARD', e)
    return k, LDS_BYTES
if __name__ == '__main__':
    k, lds = build(); print(len(k.lines), lds)
```

```python
import sys, importlib
HEAD = open('adaLN_cond__ssm_conv_s4d__mixer_channel_mlp__prompt.s.ref').read().split('; Override')[0]
FINAL = 'adaLN_cond__ssm_conv_s4d__mixer_channel_mlp__prompt.s'
def make(path, kernels):
    out = [HEAD.rstrip('\n')]
    for k, g, b, lds in kernels:
        out.append(f'; @launch kernel={k.name} grid=({g},1,1) block=({b},1,1) lds={lds}')
    out.append('.amdgcn_target "amdgcn-amd-amdhsa--gfx950"')
    seen = set()
    for k, g, b, lds in kernels:
        if k.name in seen: continue
        seen.add(k.name); out.append(k.text())
    open(path, 'w').write('\n'.join(out))
def full(path, mlp_kw={}, conv_kw={}, prep_kw={}, comb_kw={}):
    import k_mlp, k_comb, k_prep
    import k_conv
    p, pl = k_prep.build(**prep_kw); cv, cl = k_conv.build(**conv_kw); m, ml = k_mlp.build(**mlp_kw); c, _ = k_comb.build(**comb_kw)
    L = [(p, k_prep.GRID, 256, pl), (cv, 192, 768, cl), (m, 256, 512, ml)]
    if not mlp_kw.get('ikr'): L.append((c, 576, 256, 0))
    make(path, L)
if __name__ == '__main__':
    kw = dict(inter=True, prefetch=False, nF=4, ikr=True, rot=True)
    full(FINAL, mlp_kw=kw)
    m = dict(stamps=True, fine=True, **kw)
    full('t_b.s', mlp_kw=m, conv_kw=dict(stamps=True), prep_kw=dict(stamps=True))
    full('t_b2.s', mlp_kw=m, conv_kw=dict(stamps=True), prep_kw=dict(stamps=True, bal=False))
    full('t_b3.s', mlp_kw=m, conv_kw=dict(stamps=True), prep_kw=dict(stamps=True, prio=False))
```

```python
from asmlib import Kern, hazards
from layout import *
import struct
def vr(a, n): return f'v[{a}:{a+n-1}]'
KC = 4416
L_H = 28672
L_U = L_H + 48 * 160
LDS_CH = L_U + 32 * 160
LDS_BYTES = 3 * LDS_CH
XT_PITCH = 4096

def build(stamps=False, wpf=True, xmap=True, no_mfma=False, no_a=False, no_b=False, prio=True, sent=False):
    NCH = 3
    LB = 's61'
    k = Kern('conv_kernel', 128, 96)
    I = k.I
    k.stamp_init(stamps, 64, OFF_DBG + 0x10000)
    I('s_cmp_ge_u32 s2, 192\ns_cbranch_scc1 L_conv_end')
    I('s_mov_b32 s55, s2')
    if xmap: I('s_and_b32 s34, s2, 7\ns_mul_i32 s34, s34, 24\ns_lshr_b32 s2, s2, 3\ns_add_u32 s2, s2, s34')
    I('s_load_dwordx2 s[20:21], s[0:1], 48\ns_load_dwordx2 s[26:27], s[0:1], 128')
    I('s_cmp_lt_u32 s55, 96\ns_cselect_b32 s54, 64, 80\ns_load_dwordx2 s[56:57], s[0:1], s54')
    k.stamp()
    I('v_mov_b32 v42, v0\nv_lshrrev_b32 v2, 6, v0\nv_and_b32 v0, 255, v0\nv_and_b32 v1, 63, v0\nv_and_b32 v3, 15, v1\nv_lshrrev_b32 v4, 4, v1')
    I('v_readfirstlane_b32 s33, v2')
    I(f's_nop 3\ns_lshr_b32 s34, s33, 2\ns_and_b32 s33, s33, 3\ns_mul_i32 s2, s2, 3\ns_add_u32 s2, s2, s34\ns_mul_i32 {LB}, s34, {LDS_CH}')
    I('v_lshlrev_b32 v5, 4, v0')
    I('s_waitcnt lgkmcnt(0)')
    I(f's_mov_b32 s4, s26\ns_mov_b32 s5, s27\ns_mov_b32 s6, {WS_BYTES}\ns_mov_b32 s7, 0x20000')
    I('s_and_b32 s34, s2, 0xfffffffe\ns_lshl_b32 s34, s34, 1\ns_load_dword s35, s[20:21], s34')
    I('v_lshrrev_b32 v6, 2, v0\nv_mul_u32_u24 v6, 36864, v6\nv_and_b32 v7, 3, v0\nv_lshlrev_b32 v7, 4, v7\nv_add_u32 v30, v6, v7')
    I(f's_lshl_b32 s36, s2, 6\ns_add_u32 s37, s36, {OFF_NT}\ns_add_u32 s36, s36, {OFF_UT}')
    tn = k.vm('buffer_load_dwordx4 v[16:19], v30, s[4:7], s37 offen')
    I(f's_mul_i32 s38, s2, {KG_PITCH}\ns_add_u32 s38, s38, {OFF_KG}')
    k.vm('buffer_load_dwordx4 v[24:27], v5, s[4:7], s38 offen')
    tkk = k.vm('buffer_load_dwordx2 v[28:29], v5, s[4:7], s38 offen offset:16')
    tu = k.vm('buffer_load_dwordx4 v[20:23], v30, s[4:7], s36 offen')
    I(f'v_mul_u32_u24 v6, 2304, v1\ns_lshl_b32 s39, s2, 2\ns_add_u32 s39, s39, {OFF_MODP}')
    tm = None
    I('v_cmp_gt_u32 vcc, 6, v1\ns_nop 1\ns_and_saveexec_b64 s[42:43], vcc')
    for p in range(9):
        I(f's_add_u32 s40, s39, {p*13824}')
        tm = k.vm(f'buffer_load_dword v{32+p}, v6, s[4:7], s40 offen')
    I('s_mov_b64 exec, s[42:43]')
    I(f's_cmp_lt_u32 s2, 32\ns_cbranch_scc0 L_conv_nofl\ns_lshl_b32 s40, s2, 7\ns_add_u32 s40, s40, {OFF_FLAG}')
    I('v_mov_b32 v44, 0\nv_lshlrev_b32 v7, 2, v0\nv_cmp_gt_u32 vcc, 32, v0\ns_nop 1\ns_and_saveexec_b64 s[42:43], vcc')
    I('buffer_store_dword v44, v7, s[4:7], s40 offen')
    I('s_mov_b64 exec, s[42:43]')
    k.label('L_conv_nofl')
    for r in range(4): I(f'v_mov_b32 v{44+r}, 0')
    I(f'v_cmp_gt_u32 vcc, 160, v0\nv_add_u32 v7, {L_H}, v5\nv_add_u32 v7, {LB}, v7\ns_and_saveexec_b64 s[42:43], vcc')
    k.ds('ds_write_b128 v7, v[44:47]')
    I('s_mov_b64 exec, s[42:43]')
    I(f'v_lshrrev_b32 v7, 3, v0\nv_mul_u32_u24 v7, {KC}, v7\nv_and_b32 v8, 7, v0\nv_lshlrev_b32 v8, 4, v8\nv_add_u32 v7, v7, v8\nv_add_u32 v7, 4096, v7\nv_add_u32 v7, {LB}, v7\nv_add_u32 v43, {LB}, v5')
    I('v_cmp_gt_u32 vcc, 32, v0\ns_nop 1\ns_and_saveexec_b64 s[42:43], vcc')
    k.ds('ds_write_b128 v7, v[44:47]')
    I('s_mov_b64 exec, s[42:43]')
    k.wait(tkk)
    k.stamp()
    W = [24, 25, 26, 27, 28, 29]
    k.ds('ds_write_b128 v43, v[24:27]')
    for j in range(4): I(f'v_alignbit_b32 v{48+j}, v{W[j+1]}, v{W[j]}, 16')
    k.ds(f'ds_write_b128 v43, v[48:51] offset:{KC}')
    for j in range(4): I(f'v_mov_b32 v{52+j}, v{W[j+1]}')
    k.ds(f'ds_write_b128 v43, v[52:55] offset:{2*KC}')
    for j in range(4): I(f'v_alignbit_b32 v{56+j}, v{W[j+2]}, v{W[j+1]}, 16')
    k.ds(f'ds_write_b128 v43, v[56:59] offset:{3*KC}')
    k.wait(tm)
    k.stamp()
    for p in range(1, 9): I(f'v_add_f32 v32, v32, v{32+p}')
    I('v_cvt_pk_bf16_f32 v32, v32, v32\nv_and_b32 v32, 0xffff0000, v32')
    I('v_add_f32 v33, 1.0, v32\nv_cvt_pk_bf16_f32 v33, v33, v33\nv_and_b32 v33, 0xffff0000, v33')
    I('v_cmp_eq_u32 vcc, 1, v1\nv_cmp_eq_u32 s[42:43], 4, v1\ns_nop 1\ns_or_b64 vcc, vcc, s[42:43]\ns_nop 1')
    I('v_cndmask_b32 v32, v32, v33, vcc\ns_nop 1')
    I('v_readlane_b32 s44, v32, 0\nv_readlane_b32 s45, v32, 1\nv_readlane_b32 s46, v32, 2')
    I('s_cmp_eq_u32 s33, 0\ns_cbranch_scc0 L_conv_nomod')
    I('v_sub_u32 v34, 8, v1\nv_cmp_gt_u32 vcc, 3, v1\ns_nop 1\nv_cndmask_b32 v34, v34, v1, vcc')
    I(f'v_mul_u32_u24 v34, 2304, v34\ns_lshl_b32 s40, s2, 2\ns_add_u32 s40, s40, {OFF_MODF}')
    I('v_cmp_gt_u32 vcc, 6, v1\ns_nop 1\ns_and_saveexec_b64 s[42:43], vcc')
    I('buffer_store_dword v32, v34, s[4:7], s40 offen')
    I('s_mov_b64 exec, s[42:43]')
    k.label('L_conv_nomod')
    k.wait(tn)
    k.stamp()
    I('v_mov_b32 v38, s45\nv_mov_b32 v39, s44')
    for j in range(4):
        I(f'v_lshlrev_b32 v36, 16, v{16+j}\nv_and_b32 v37, 0xffff0000, v{16+j}')
        I(f'v_fma_f32 v36, v36, v38, v39\nv_fma_f32 v37, v37, v38, v39\nv_cvt_pk_bf16_f32 v{16+j}, v36, v37')
    I(f'v_lshrrev_b32 v7, 3, v0\nv_mul_u32_u24 v7, 160, v7\nv_and_b32 v8, 7, v0\nv_lshlrev_b32 v8, 4, v8\nv_add_u32 v7, v7, v8\nv_add_u32 v7, {LB}, v7')
    k.ds(f'ds_write_b128 v7, v[16:19] offset:{L_H + 16*160}')
    k.wait(tu)
    k.stamp()
    k.ds(f'ds_write_b128 v7, v[20:23] offset:{L_U}')
    VA, VB = 8, 9
    I('v_sub_u32 v10, 3, v3\nv_and_b32 v10, 3, v10')
    I(f'v_mul_u32_u24 v11, {KC}, v10\nv_lshlrev_b32 v12, 3, v4\nv_sub_u32 v12, v12, v3\nv_sub_u32 v12, v12, v10\nv_add_u32 v12, 2047, v12\nv_lshlrev_b32 v12, 1, v12\nv_add_u32 v14, v11, v12\nv_add_u32 v14, {LB}, v14')
    I(f'v_mul_u32_u24 v11, 160, v3\nv_lshlrev_b32 v12, 4, v4\nv_add_u32 v11, v11, v12\nv_add_u32 v15, {L_H + 16*160}, v11\nv_add_u32 v15, {LB}, v15')
    I('s_mul_i32 s48, s33, 6\ns_mov_b32 s49, 3\ns_mov_b32 s50, 16\ns_mov_b32 s51, 0')
    I('s_cmp_eq_u32 s33, 2\ns_cselect_b32 s49, 2, s49\ns_cselect_b32 s51, 2, s51')
    I('s_cmp_eq_u32 s33, 3\ns_cselect_b32 s49, 0, s49\ns_cselect_b32 s50, 20, s50\ns_cselect_b32 s51, 6, s51')
    ACC = (64, 80); AF = 96
    BF = 32
    for r in range(32): I(f'v_mov_b32 v{64+r}, 0')
    k.waitall()
    I('s_barrier')
    k.stamp()
    if sent:
        for r in range(4): I(f'v_mov_b32 v{16+r}, -1')
        for rnd in range(2):
            I(f's_mul_i32 s40, s55, 768\ns_add_u32 s40, s40, {rnd*147456}\nv_add_u32 v20, s40, v42')
            I(f'v_lshrrev_b32 v21, 10, v20\nv_mul_u32_u24 v21, 73728, v21\nv_and_b32 v22, 1023, v20\nv_lshlrev_b32 v22, 4, v22\nv_add_u32 v21, v21, v22')
            I('v_cmp_gt_u32 vcc, 262144, v20\ns_nop 1' if False else f's_mov_b32 s41, 262144\nv_cmp_gt_u32 vcc, s41, v20\ns_nop 1')
            I('v_cndmask_b32 v21, -16, v21, vcc')
            I(f's_mov_b32 s41, {OFF_PART + 7*8192}')
            I('buffer_store_dwordx4 v[16:19], v21, s[4:7], s41 offen sc1')
        I('s_nop 1')
    if wpf:
        I('s_mov_b32 s58, 5308416\ns_mov_b32 s59, 0x20000')
        I('s_cmp_lt_u32 s55, 96\ns_cselect_b32 s54, 0, 96\ns_sub_u32 s54, s55, s54\ns_mul_i32 s54, s54, 55296')
        I('v_lshlrev_b32 v10, 7, v42\nv_add_u32 v10, s54, v10\nv_cmp_gt_u32 vcc, 432, v42\ns_nop 1\nv_cndmask_b32 v10, -16, v10, vcc')
        I('buffer_load_dword v31, v10, s[56:59], 0 offen')
    def a_read(slot, o):
        off = 32 * (3 - o)
        if no_a and a_read.inloop: return None
        k.ds(f'ds_read_b64 {vr(AF+4*slot,2)}, v{VA} offset:{off}')
        return k.ds(f'ds_read_b64 {vr(AF+4*slot+2,2)}, v{VA} offset:{off+8}')
    a_read.inloop = False
    def b_read(buf, j, s, dual):
        if no_b and a_read.inloop: return None
        off = 64 * s + (2560 * j if dual else 0)
        return k.ds(f'ds_read_b128 {vr(BF+16*buf+8*j+4*s,4)}, v{VB} offset:{off}')
    def segment(name, dual, s_d0, s_n):
        js = (0, 1) if dual else (1,)
        I(f's_cmp_eq_u32 s{s_n}, 0\ns_cbranch_scc1 L_{name}_skip')
        I(f's_lshl_b32 s52, s{s_d0}, 7\ns_add_u32 s52, s52, 96\nv_subrev_u32 v{VA}, s52, v14')
        I(f's_mul_i32 s52, s{s_d0}, 160\ns_sub_u32 s52, {0 if dual else 2560}, s52\nv_add_u32 v{VB}, s52, v15')
        tok = {}
        for o in (-2, -1):
            slot = o % 8
            k.ds(f'ds_read_b64 {vr(AF+4*slot,2)}, v{VA} offset:{32*(3-o)}')
            tok[slot] = k.ds(f'ds_read_b64 {vr(AF+4*slot+2,2)}, v{VA} offset:{32*(3-o)+8}')
        for o in range(4): tok[o] = a_read(o, o)
        btok = {0: None, 1: None}
        for j in js:
            for s in range(2): btok[0] = b_read(0, j, s, dual)
        k.waitall(vm=False)
        state = dict(tok=tok, btok=btok)
        def unit(par):
            sl = lambda o: (4 * par + o) % 8
            nb = 1 - par
            def mm(j, i, s):
                if not no_mfma: I(f'v_mfma_f32_16x16x32_bf16 {vr(ACC[j]+4*i,4)}, {vr(AF+4*sl(i-2*s),4)}, {vr(BF+16*par+8*j+4*s,4)}, {vr(ACC[j]+4*i,4)}')
            def an(o): state['tok'][sl(4 + o)] = a_read(sl(4 + o), o)
            def bn(j, s): state['btok'][nb] = b_read(nb, j, s, dual)
            k.wait(state['btok'][par], *[state['tok'][sl(o)] for o in (-2, -1, 0, 1)])
            t2 = state['tok'][sl(2)]; t3 = state['tok'][sl(3)]
            if dual:
                mm(0, 0, 1)
                I(f'v_subrev_u32 v{VA}, 128, v{VA}\nv_subrev_u32 v{VB}, 160, v{VB}')
                mm(1, 0, 1); bn(0, 0)
                mm(0, 1, 1); bn(0, 1)
                mm(1, 1, 1); bn(1, 0)
                mm(0, 2, 1); bn(1, 1)
                mm(1, 2, 1); an(0)
                mm(0, 3, 1)
                mm(1, 3, 1); an(1)
                mm(0, 0, 0)
                mm(1, 0, 0); an(2)
                mm(0, 1, 0)
                mm(1, 1, 0)
                k.wait(t2, t3)
                mm(0, 2, 0); an(3)
                mm(1, 2, 0)
                mm(0, 3, 0)
                mm(1, 3, 0)
            else:
                mm(1, 0, 1)
                I(f'v_subrev_u32 v{VA}, 128, v{VA}\nv_subrev_u32 v{VB}, 160, v{VB}')
                mm(1, 1, 1); bn(1, 0)
                mm(1, 2, 1); bn(1, 1)
                mm(1, 3, 1); an(0)
                mm(1, 0, 0); an(1)
                mm(1, 1, 0); an(2)
                k.wait(t2, t3)
                mm(1, 2, 0); an(3)
                mm(1, 3, 0)
        def body():
            a_read.inloop = True
            unit(0); unit(1)
            a_read.inloop = False
        save = len(k.lines)
        body(); del k.lines[save:]
        body(); second = k.lines[save:]; del k.lines[save:]
        k.label(f'L_{name}_loop')
        st = len(k.lines)
        body()
        assert k.lines[st:] == second
        for e in hazards(second + second, name): print('HAZARD', e)
        I(f's_sub_u32 s{s_n}, s{s_n}, 1\ns_cmp_lg_u32 s{s_n}, 0\ns_cbranch_scc1 L_{name}_loop')
        k.waitall(vm=False)
        k.label(f'L_{name}_skip')
    segment('segA', True, 48, 49)
    segment('segB', False, 50, 51)
    k.stamp()
    I('s_barrier')
    k.stamp()
    I(f'v_lshlrev_b32 v10, 4, v1\nv_add_u32 v10, {LB}, v10')
    I('s_lshl_b32 s52, s33, 12\nv_add_u32 v11, s52, v10')
    I('s_cmp_lt_u32 s33, 3\ns_cbranch_scc0 L_conv_noA\ns_nop 4')
    for i in range(4): I(f'ds_write_b128 v11, {vr(ACC[0]+4*i,4)} offset:{i*1024}')
    k.label('L_conv_noA')
    I('s_nop 4')
    for i in range(4): I(f'ds_write_b128 v11, {vr(ACC[1]+4*i,4)} offset:{3*4096 + i*1024}')
    I('s_waitcnt lgkmcnt(0)\ns_barrier')
    I('s_lshl_b32 s52, s33, 10\nv_add_u32 v11, s52, v10')
    for s_ in range(7): I(f'ds_read_b128 {vr(64+4*s_,4)}, v11 offset:{s_*4096}')
    I(f'v_mul_u32_u24 v12, 160, v3\nv_lshlrev_b32 v13, 3, v4\nv_add_u32 v12, v12, v13\ns_lshl_b32 s52, s33, 5\ns_add_u32 s52, s52, {LB}\nv_add_u32 v12, s52, v12')
    for j in range(2): I(f'ds_read_b64 {vr(96+2*j,2)}, v12 offset:{L_H + 16*160 + j*16*160}')
    for j in range(2): I(f'ds_read_b64 {vr(100+2*j,2)}, v12 offset:{L_U + j*16*160}')
    I('s_bitcmp1_b32 s2, 0\ns_cselect_b32 s53, 0, 16\ns_lshl_b32 s35, s35, s53\ns_and_b32 s35, s35, 0xffff0000')
    I('v_mov_b32 v22, s35\nv_mov_b32 v23, s46')
    I('v_mul_u32_u24 v13, 73728, v3\nv_lshlrev_b32 v12, 3, v4\nv_add_u32 v13, v13, v12\ns_lshl_b32 s52, s33, 5\nv_add_u32 v13, s52, v13')
    I(f's_lshl_b32 s52, s2, 7\ns_add_u32 s52, s52, {OFF_X1T}\ns_add_u32 s53, s52, {16*73728}')
    I('s_waitcnt lgkmcnt(0)')
    for r in range(4):
        I(f'v_add_f32 v{64+r}, v{64+r}, v{68+r}\nv_add_f32 v{76+r}, v{76+r}, v{80+r}\nv_add_f32 v{84+r}, v{84+r}, v{88+r}')
    for r in range(4):
        I(f'v_add_f32 v{64+r}, v{64+r}, v{72+r}\nv_add_f32 v{76+r}, v{76+r}, v{84+r}')
    for j in range(2):
        y = (64, 76)[j]
        for d in range(2):
            hreg, ureg = 96 + 2*j + d, 100 + 2*j + d
            y0, y1 = y + 2*d, y + 2*d + 1
            I(f'v_lshlrev_b32 v17, 16, v{hreg}\nv_and_b32 v18, 0xffff0000, v{hreg}\nv_lshlrev_b32 v20, 16, v{ureg}\nv_and_b32 v21, 0xffff0000, v{ureg}')
            I(f'v_fma_f32 v17, v17, v22, v{y0}\nv_fma_f32 v18, v18, v22, v{y1}')
            I(f'v_fma_f32 v17, v17, v23, v20\nv_fma_f32 v18, v18, v23, v21\nv_cvt_pk_bf16_f32 v{24+2*j+d}, v17, v18')
        I(f'buffer_store_dwordx2 {vr(24+2*j,2)}, v13, s[4:7], s{52+j} offen')
    k.stamp()
    I('s_waitcnt vmcnt(0)')
    k.stamp()
    k.stamp_store('s[4:7]', idreg='s55')
    k.label('L_conv_end')
    I('s_endpgm')
    for e in hazards(k.lines, 'conv'): print('HAZARD', e)
    return k, LDS_BYTES
if __name__ == '__main__':
    k, lds = build(); print(len(k.lines), lds)
```

```python
from asmlib import Kern, hazards
from layout import *
import math

SLOT = 24576
PAR_G2 = 6 * SLOT
PAR_B1 = PAR_G2 + 4608
STATS1 = PAR_G2 + 6912
STATS2 = STATS1 + 1024
XS = PAR_G2
LDS_BYTES = max(STATS2 + 1024, XS + 9216)


V_TID, V_LANE = 0, 1
V_T0 = 2
V_DMA, V_DMA2 = 3, 4
V_RD = (5, 6, 7)
V_BIAS, V_ST, V_C1, V_C2, V_FR, V_HW = 8, 9, 10, 11, 12, 13
V_TL, V_Q = 14, 15
V_TMP = 16
V_G = 24
V_B4 = 36
V_PK = 40
V_A = 44
V_ACC = (56, 64)
V_H = 76
V_BF = 112
S_WS, S_W1, S_W2, S_CUR, S_B1 = 4, 8, 12, 16, 28
S_W, S_M, S_P, S_IT, S_OFF, S_D, S_G2, S_B, S_WK, S_T, S_ST, S_STN, S_IDX = 33, 34, 35, 36, 37, 38, 39, 40, 41, 42, 43, 44, 45

def vr(a, n): return f'v[{a}:{a+n-1}]'
def sr(a, n): return f's[{a}:{a+n-1}]'

def build(store_flags='', prefetch=True, stamps=False, no_gelu=False, no_dma=False, no_bar=False, no_mfma=False, no_tr=False, prio=None, nF=2, LA=2, inter=False, stagger=False, pf_late=True, fine=False, classes=False, lean=True, wts=(1.0, 1.0), cls_prio=None, ikr=False, pk=False, dmaf='', dbgout=False, sent=False, rot=False):
    k = Kern('mlp_kernel', 256, 96)
    I = k.I
    nst = [0]
    def stamp():
        if stamps:
            I(f's_memrealtime s[{64+2*nst[0]}:{65+2*nst[0]}]')
            if not fine: I(f's_memtime s[{80+2*nst[0]}:{81+2*nst[0]}]')
            nst[0] += 1
    I('s_cmp_ge_u32 s2, 256\ns_cbranch_scc1 L_mlp_end')
    I('s_load_dwordx2 s[20:21], s[0:1], 64\ns_load_dwordx2 s[22:23], s[0:1], 72\ns_load_dwordx2 s[24:25], s[0:1], 80\ns_load_dwordx2 s[26:27], s[0:1], 128')
    if ikr:
        store_flags = 'sc1'
        pass
    stamp()
    I(f'v_and_b32 v{V_LANE}, 63, v0\nv_lshrrev_b32 v{V_T0}, 6, v0')
    lg = {1: 0, 2: 1, 4: 2, 8: 3}[nF]
    I(f's_and_b32 s46, s2, 7\ns_lshr_b32 s47, s2, 3')
    I(f's_and_b32 s{S_P}, s46, {8//nF - 1}\ns_lshl_b32 s{S_P}, s{S_P}, {lg}\ns_and_b32 s48, s47, {nF - 1}\ns_add_u32 s{S_P}, s{S_P}, s48')
    I(f's_lshr_b32 s{S_M}, s46, {3 - lg}\ns_mul_i32 s{S_M}, s{S_M}, {32//nF}\ns_lshr_b32 s48, s47, {lg}\ns_add_u32 s{S_M}, s{S_M}, s48')
    I(f'v_readfirstlane_b32 s{S_W}, v{V_T0}')
    I(f'v_and_b32 v{V_TL}, 15, v{V_LANE}\nv_lshrrev_b32 v{V_Q}, 4, v{V_LANE}')
    t = V_TMP
    I(f'v_lshrrev_b32 v{t}, 3, v{V_LANE}')
    I(f'v_and_b32 v{t+1}, 7, v{V_LANE}')
    I(f'v_and_b32 v{t+2}, 2, v{t}')
    I(f's_and_b32 s46, s{S_W}, 1\ns_lshl_b32 s46, s46, 2')
    I(f'v_or_b32 v{t+2}, s46, v{t+2}')
    I(f'v_xor_b32 v{t+1}, v{t+1}, v{t+2}')
    I(f'v_lshlrev_b32 v{t+1}, 4, v{t+1}')
    I(f's_lshl_b32 s47, s{S_W}, 3')
    I(f'v_add_u32 v{t}, s47, v{t}')
    I(f'v_lshlrev_b32 v{t+3}, 7, v{t}\nv_add_u32 v{V_T0}, v{t+3}, v{t+1}')
    I(f'v_mul_u32_u24 v{t+3}, 9216, v{t}\nv_add_u32 v{V_DMA}, v{t+3}, v{t+1}')
    I(f'v_mul_u32_u24 v{t+3}, 1152, v{t}\nv_add_u32 v{V_DMA2}, v{t+3}, v{t+1}')
    I(f's_lshl_b32 s{S_WK}, s{S_W}, 10')
    I('s_waitcnt lgkmcnt(0)')
    for base, ptr, size in ((S_WS, 26, WS_BYTES), (S_W1, 20, 5308416), (S_W2, 24, 5308416), (S_CUR, 20, 5308416), (S_B1, 22, 9216)):
        I(f's_mov_b32 s{base}, s{ptr}\ns_mov_b32 s{base+1}, s{ptr+1}\ns_mov_b32 s{base+2}, {size}\ns_mov_b32 s{base+3}, 0x20000')
    I(f's_mul_i32 s46, s{S_M}, 73728\ns_add_u32 s46, s46, {OFF_X1T}')
    xt = None
    for b in range(9):
        I(f's_add_u32 m0, s{S_WK}, {b*8192}')
        I(f's_add_u32 s47, s46, {b*64*128}')
        xt = k.vm(f'buffer_load_dwordx4 v{V_T0}, {sr(S_WS,4)}, s47 offen nt lds')
    I(f'v_lshlrev_b32 v{t}, 4, v0')
    I(f's_mov_b32 s46, {OFF_MODF + 4*2304}')
    pa = k.vm(f'buffer_load_dwordx4 {vr(V_G,4)}, v{t}, {sr(S_WS,4)}, s46 offen')
    I(f'v_subrev_u32 v{t+1}, 288, v0\nv_lshlrev_b32 v{t+1}, 3, v{t+1}')
    I(f's_mul_i32 s46, s{S_P}, 1152')
    I(f'v_cmp_gt_u32 vcc, 288, v0')
    I(f'v_add_u32 v{t+1}, s46, v{t+1}\ns_nop 0')
    I(f'v_cndmask_b32 v{t+1}, v{t+1}, -16, vcc')
    pb = k.vm(f'buffer_load_dwordx2 {vr(V_G+4,2)}, v{t+1}, {sr(S_B1,4)}, 0 offen')
    def do_prefetch():
        G = 32 // nF; per = 5184 // G; rows = 576 // G
        I(f's_and_b32 s60, s{S_M}, {G - 1}')
        for rep in range((per + 511) // 512):
            I(f'v_add_u32 v{t+4}, {rep*512}, v0')
            I(f'v_mul_u32_u24 v{t+2}, 7282, v{t+4}\nv_lshrrev_b32 v{t+2}, 16, v{t+2}')
            I(f'v_mul_u32_u24 v{t+3}, 9, v{t+2}\nv_sub_u32 v{t+3}, v{t+4}, v{t+3}')
            I(f's_mul_i32 s61, s60, {rows}\nv_add_u32 v{t+2}, s61, v{t+2}')
            I(f'v_mul_u32_u24 v{t+2}, 9216, v{t+2}\nv_lshlrev_b32 v{t+3}, 7, v{t+3}')
            I(f'v_add_u32 v{t+2}, v{t+2}, v{t+3}')
            I(f's_mul_i32 s61, s{S_P}, 1152\nv_add_u32 v{t+2}, s61, v{t+2}')
            I(f'v_cmp_gt_u32 vcc, {per}, v{t+4}\ns_nop 1\nv_cndmask_b32 v{t+2}, -16, v{t+2}, vcc')
            k.vm(f'buffer_load_dword v{V_H-4}, v{t+2}, {sr(S_W1,4)}, 0 offen')
            I(f'v_lshlrev_b32 v{t+2}, 7, v{t+4}')
            I(f's_mul_i32 s61, s{S_P}, 663552\ns_mul_i32 s62, s60, {per*128}\ns_add_u32 s61, s61, s62')
            I(f'v_add_u32 v{t+2}, s61, v{t+2}')
            I(f'v_cndmask_b32 v{t+2}, -16, v{t+2}, vcc')
            k.vm(f'buffer_load_dword v{V_H-3}, v{t+2}, {sr(S_W2,4)}, 0 offen')
    if prefetch and not pf_late: do_prefetch()
    D1, D2 = 192 * 9216, 192 * 1152
    I(f's_mul_i32 s{S_OFF}, s{S_P}, 1152\ns_mov_b32 s{S_D}, {D1}\ns_mov_b32 s{S_G2}, {(128 - 2*D1) & 0xffffffff}\ns_mov_b32 s{S_B}, {64*9216}')
    I(f's_mov_b32 s63, 0\ns_mov_b32 s60, 0\ns_mov_b32 s61, 15\ns_mov_b32 s62, s{S_OFF}')
    VD = (V_DMA, 22, 23)
    I(f'v_add_u32 v{VD[1]}, {64*9216}, v{V_DMA}\nv_add_u32 v{VD[2]}, {128*9216}, v{V_DMA}')
    def dma_m0(slot, b): I(f's_add_u32 m0, s{S_WK}, {slot*SLOT + b*8192}')
    def dma_go(b, kc):
        tok = k.vm(f'buffer_load_dwordx4 v{VD[b]}, {sr(S_CUR,4)}, s{S_OFF} offen {dmaf} lds')
        if b == 2:
            if kc == 2:
                I(f's_add_u32 s63, s63, 1\ns_add_u32 s{S_T}, s63, s60\ns_and_b32 s{S_T}, s{S_T}, s61\ns_lshl_b32 s{S_T}, s{S_T}, 7\ns_add_u32 s{S_OFF}, s62, s{S_T}')
            else: I(f's_add_u32 s{S_OFF}, s{S_OFF}, s{S_D}')
        dma_go.last = tok
        return tok
    def dma_chunk(slot, kc):
        tok = None
        for b in range(3):
            dma_m0(slot, b); I('s_nop 0'); tok = dma_go(b, kc)
        return tok
    c0 = dma_chunk(3, 0); c1 = dma_chunk(4, 1); c2 = dma_chunk(5, 2)
    I(f'v_lshrrev_b32 v{t}, 2, v{V_TL}')
    I(f'v_and_b32 v{t+1}, 3, v{V_LANE}')
    I(f'v_lshlrev_b32 v{t+2}, 3, v{V_Q}\nv_add_u32 v{t+2}, v{t+2}, v{t}\nv_lshlrev_b32 v{t+2}, 7, v{t+2}')
    I(f'v_and_b32 v{t+3}, 2, v{t}')
    I(f'v_and_b32 v{t+4}, 1, v{V_Q}\nv_lshlrev_b32 v{t+4}, 2, v{t+4}\nv_or_b32 v{t+3}, v{t+3}, v{t+4}')
    I(f's_and_b32 s46, s{S_W}, 3\ns_lshl_b32 s46, s46, 1')
    I(f'v_lshrrev_b32 v{t+4}, 1, v{t+1}\nv_add_u32 v{t+4}, s46, v{t+4}\nv_xor_b32 v{t+4}, v{t+4}, v{t+3}\nv_lshlrev_b32 v{t+4}, 4, v{t+4}')
    I(f'v_and_b32 v{t+1}, 1, v{t+1}\nv_lshlrev_b32 v{t+1}, 3, v{t+1}')
    I(f'v_add_u32 v{t+2}, v{t+2}, v{t+4}\nv_add_u32 v{V_RD[0]}, v{t+2}, v{t+1}')
    I(f'v_add_u32 v{V_RD[1]}, {2*SLOT}, v{V_RD[0]}\nv_add_u32 v{V_RD[2]}, {4*SLOT}, v{V_RD[0]}')
    k.wait(pb)
    I(f'v_lshlrev_b32 v{V_G+8}, 16, v{V_G+4}\nv_and_b32 v{V_G+9}, 0xffff0000, v{V_G+4}\nv_lshlrev_b32 v{V_G+10}, 16, v{V_G+5}\nv_and_b32 v{V_G+11}, 0xffff0000, v{V_G+5}')
    I(f'v_cmp_gt_u32 vcc, 288, v0\ns_nop 1')
    for r in range(4): I(f'v_cndmask_b32 v{V_G+r}, v{V_G+8+r}, v{V_G+r}, vcc')
    I(f'v_lshlrev_b32 v{t}, 4, v0\nv_add_u32 v{t}, {PAR_G2}, v{t}')
    I(f'v_cmp_gt_u32 vcc, 432, v0\ns_nop 1\ns_and_saveexec_b64 s[50:51], vcc')
    k.ds(f'ds_write_b128 v{t}, {vr(V_G,4)}')
    I('s_mov_b64 exec, s[50:51]')
    c1v = -2.0 * math.sqrt(2.0 / math.pi) * math.log2(math.e); c2v = c1v * 0.044715
    import struct
    f2u = lambda x: struct.unpack('<I', struct.pack('<f', x))[0]
    global V_C2
    V_C2 = 18 if pk else 11
    I(f'v_mov_b32 v{V_C1}, {f2u(c1v):#x}')
    I(f's_and_b32 s46, s{S_W}, 3\ns_lshr_b32 s47, s{S_W}, 2')
    I(f's_lshl_b32 s48, s46, 6\ns_add_u32 s48, s48, {PAR_B1}')
    I(f'v_lshlrev_b32 v{V_BIAS}, 4, v{V_Q}\nv_add_u32 v{V_BIAS}, s48, v{V_BIAS}')
    I(f's_mul_i32 s48, s47, 36864\nv_lshlrev_b32 v{V_FR}, 4, v{V_LANE}\nv_add_u32 v{V_FR}, s48, v{V_FR}')
    I(f's_lshr_b32 s48, s46, 1\ns_lshl_b32 s48, s48, 10\ns_mul_i32 s49, s47, 36864\ns_add_u32 s48, s48, s49')
    I(f's_and_b32 s49, s46, 1\ns_lshl_b32 s49, s49, 9\ns_add_u32 s48, s48, s49\ns_add_u32 s48, s48, {3*SLOT}')
    I(f'v_lshrrev_b32 v{t}, 1, v{V_Q}\nv_lshlrev_b32 v{t}, 8, v{t}\nv_lshlrev_b32 v{t+1}, 4, v{V_TL}\nv_add_u32 v{t}, v{t}, v{t+1}')
    I(f'v_and_b32 v{t+1}, 1, v{V_Q}\nv_lshlrev_b32 v{t+1}, 3, v{t+1}\nv_add_u32 v{t}, v{t}, v{t+1}\nv_add_u32 v{V_HW}, s48, v{t}')
    I(f'v_lshlrev_b32 v{V_ST}, 4, v{V_LANE}\nv_add_u32 v{V_ST}, s{S_WK}, v{V_ST}')
    I(f's_lshl_b32 s48, s{S_M}, 3\ns_add_u32 s48, s48, s{S_P}\ns_mul_i32 s{S_STN}, s48, 73728\ns_add_u32 s{S_STN}, s{S_STN}, {OFF_PART}\ns_mov_b32 s{S_ST}, 0x7ff00000')
    X, H2, PG = V_BF, V_BF + 36, V_BF + 108
    ONES, A1, A2 = V_A, V_ACC[0], V_ACC[0] + 4
    for r in range(4): I(f'v_mov_b32 v{ONES+r}, 0x3f803f80')
    I(f's_mul_i32 s48, s47, {9*4096}\nv_add_u32 v{t}, s48, v{V_RD[0]}')
    I(f'v_and_b32 v{t+1}, 3, v{V_TL}')
    I(f'v_cmp_eq_u32 s[52:53], 1, v{t+1}\nv_cmp_eq_u32 s[54:55], 2, v{t+1}\nv_cmp_eq_u32 s[56:57], 3, v{t+1}')
    I(f'v_lshrrev_b32 v{t+1}, 2, v{V_TL}\nv_cmp_eq_u32 s[58:59], v{t+1}, v{V_Q}')
    I(f's_lshl_b32 s48, s46, 8\nv_lshlrev_b32 v{t+2}, 4, v{V_TL}\nv_add_u32 v{t+2}, s48, v{t+2}\nv_add_u32 v{t+2}, {STATS1}, v{t+2}')
    I(f's_lshl_b32 s48, s47, 3\nv_add_u32 v{t+3}, s48, v{t+2}')
    k.wait(xt)
    k.waitall(vm=False)
    I('s_barrier')
    stamp()
    if prefetch and pf_late:
        save_t = [V_TMP + 2, V_TMP + 3]
        I(f'v_mov_b32 v{V_PK}, v{t+2}\nv_mov_b32 v{V_PK+1}, v{t+3}')
        do_prefetch()
        I(f'v_mov_b32 v{t+2}, v{V_PK}\nv_mov_b32 v{t+3}, v{V_PK+1}')
    if rot:
        for r in range(4): I(f'v_mov_b32 v{V_G+r}, -1')
        I(f's_lshl_b32 s48, s{S_M}, 3\ns_add_u32 s48, s48, s{S_P}\ns_mul_i32 s48, s48, 73728\ns_add_u32 s48, s48, {OFF_PART}\nv_lshlrev_b32 v{V_G+4}, 4, v0')
        for st_ in (6, 7):
            I(f's_add_u32 s49, s{S_P}, {st_}\ns_and_b32 s49, s49, 7\ns_lshl_b32 s49, s49, 13\ns_add_u32 s49, s49, s48')
            k.vm(f'buffer_store_dwordx4 {vr(V_G,4)}, v{V_G+4}, {sr(S_WS,4)}, s49 offen sc1')
        I('s_nop 1')
    toks = []
    for u in range(9):
        k.ds(f'ds_read_b64_tr_b16 {vr(X+4*u,2)}, v{t} offset:{u*4096}')
        toks.append(k.ds(f'ds_read_b64_tr_b16 {vr(X+4*u+2,2)}, v{t} offset:{u*4096+512}'))
    def stats(src, area_off):
        for u in range(9):
            if src == X and area_off == 0: k.wait(toks[u])
            I(f'v_mfma_f32_16x16x32_bf16 {vr(A1,4)}, {vr(ONES,4)}, {vr(src+4*u,4)}, {"0" if u == 0 else vr(A1,4)}')
            I(f'v_mfma_f32_16x16x32_bf16 {vr(A2,4)}, {vr(src+4*u,4)}, {vr(src+4*u,4)}, {"0" if u == 0 else vr(A2,4)}')
    stats(X, 0)
    if not ikr:
        I(f's_cmp_eq_u32 s{S_W}, s{S_P}\ns_cbranch_scc0 L_mlp_nox1')
        I(f's_lshl_b32 s48, s{S_M}, 6\ns_lshl_b32 s49, s46, 4\ns_add_u32 s48, s48, s49')
        I(f'v_add_u32 v{t+4}, s48, v{V_TL}\nv_mul_u32_u24 v{t+4}, 1152, v{t+4}\nv_lshlrev_b32 v{t+5}, 4, v{V_Q}\nv_add_u32 v{t+4}, v{t+4}, v{t+5}')
        I(f's_mul_i32 s48, s47, 576\ns_add_u32 s48, s48, {OFF_X1R}')
        for u in range(9):
            I(f'buffer_store_dwordx4 {vr(X+4*u,4)}, v{t+4}, {sr(S_WS,4)}, s48 offen offset:{u*64}')
        k.label('L_mlp_nox1')
    def finish_stats(area):
        k.nop(8)
        I(f'v_cndmask_b32 v{V_G}, v{A2}, v{A2+1}, s[52:53]\nv_cndmask_b32 v{V_G}, v{V_G}, v{A2+2}, s[54:55]\nv_cndmask_b32 v{V_G+1}, v{V_G}, v{A2+3}, s[56:57]')
        I(f'v_mov_b32 v{V_G}, v{A1}')
        I('s_mov_b64 s[50:51], exec\ns_mov_b64 exec, s[58:59]')
        k.ds(f'ds_write_b64 v{t+3}, {vr(V_G,2)} offset:{area}')
        I('s_mov_b64 exec, s[50:51]')
        k.waitall(vm=False)
        I('s_barrier')
        if fine and not ikr: stamp()
        tk = k.ds(f'ds_read_b128 {vr(V_G+4,4)}, v{t+2} offset:{area}')
        return tk
    def stats_to_rm(tk):
        k.wait(tk)
        inv = f2u(1.0 / 576.0)
        I(f'v_add_f32 v{V_G}, v{V_G+4}, v{V_G+6}\nv_add_f32 v{V_G+1}, v{V_G+5}, v{V_G+7}')
        I(f'v_mul_f32 v{V_G}, {inv:#x}, v{V_G}\nv_mul_f32 v{V_G+1}, {inv:#x}, v{V_G+1}')
        I(f'v_fma_f32 v{V_G+1}, -v{V_G}, v{V_G}, v{V_G+1}')
        I(f'v_max_f32 v{V_G+1}, 0, v{V_G+1}\nv_add_f32 v{V_G+1}, {f2u(1e-5):#x}, v{V_G+1}')
        I(f'v_rsq_f32 v{V_G+2}, v{V_G+1}\ns_nop 0')
        I(f'v_mul_f32 v{V_G+3}, v{V_G}, v{V_G+2}\nv_sub_f32 v{V_G+3}, 0, v{V_G+3}')
    tk = finish_stats(0)
    I(f's_mul_i32 s48, s47, {9*128}\ns_add_u32 s48, s48, {PAR_G2}\nv_lshlrev_b32 v{t+4}, 5, v{V_Q}\nv_add_u32 v{t+4}, s48, v{t+4}')
    def par_reads(u):
        b = PG + (u & 1) * 16
        k.ds(f'ds_read_b128 {vr(b,4)}, v{t+4} offset:{u*128}')
        k.ds(f'ds_read_b128 {vr(b+4,4)}, v{t+4} offset:{u*128+16}')
        k.ds(f'ds_read_b128 {vr(b+8,4)}, v{t+4} offset:{2304+u*128}')
        return k.ds(f'ds_read_b128 {vr(b+12,4)}, v{t+4} offset:{2304+u*128+16}')
    ptk = [par_reads(0)]
    stats_to_rm(tk)
    R, NMR = V_G + 2, V_G + 3
    for u in range(9):
        if u + 1 < 9: ptk.append(par_reads(u + 1))
        b = PG + (u & 1) * 16
        for d in range(4):
            I(f'v_lshlrev_b32 v{H2+8*u+2*d}, 16, v{X+4*u+d}\nv_and_b32 v{H2+8*u+2*d+1}, 0xffff0000, v{X+4*u+d}')
        for e in range(8): I(f'v_fma_f32 v{H2+8*u+e}, v{H2+8*u+e}, v{R}, v{NMR}')
        k.wait(ptk[u])
        for e in range(8): I(f'v_fma_f32 v{H2+8*u+e}, v{H2+8*u+e}, v{b+e}, v{b+8+e}')
        for d in range(4): I(f'v_cvt_pk_bf16_f32 v{X+4*u+d}, v{H2+8*u+2*d}, v{H2+8*u+2*d+1}')
    I('s_nop 1')
    stats(X, 1024)
    tk = finish_stats(1024)
    stats_to_rm(tk)
    I(f's_mul_i32 s48, s46, 18432\ns_mul_i32 s49, s47, 9216\ns_add_u32 s48, s48, s49\nv_lshlrev_b32 v{t+4}, 4, v{V_LANE}\nv_add_u32 v{t+4}, s48, v{t+4}')
    for u in range(9):
        for e in range(8): I(f'v_fma_f32 v{H2+8*u+e}, v{H2+8*u+e}, v{R}, v{NMR}')
        for d in range(4): I(f'v_cvt_pk_bf16_f32 v{X+4*u+d}, v{H2+8*u+2*d}, v{H2+8*u+2*d+1}')
        k.ds(f'ds_write_b128 v{t+4}, {vr(X+4*u,4)} offset:{u*1024}')
    k.waitall(vm=False)
    I('s_barrier')
    if fine and not ikr: stamp()
    def load_bfrags(base_off):
        tk = None
        for n in range(36):
            tk = k.ds(f'ds_read_b128 {vr(V_BF+4*n,4)}, v{V_FR} offset:{base_off + n*1024}') if base_off + n*1024 < 65536 else None
        return tk
    load_bfrags(0)
    btk = k.ds(f'ds_read_b128 {vr(V_B4,4)}, v{V_BIAS}')
    I(f'v_add_u32 v{V_BIAS}, 256, v{V_BIAS}')
    k.wait(c0)
    if ikr: I('s_load_dwordx2 s[8:9], s[0:1], 88\ns_load_dwordx2 s[28:29], s[0:1], 112')
    k.waitall(vm=False)
    if ikr: I('s_mov_b32 s10, 1152\ns_mov_b32 s11, 0x20000\ns_mov_b32 s30, 2359296\ns_mov_b32 s31, 0x20000')
    I('s_barrier')
    dma_chunk(0, 0); dma_chunk(1, 1)
    stamp()

    I(f'v_mov_b32 v{V_C2}, {f2u(c2v):#x}')
    NB = LA + 1
    ABUF = [V_A, V_A + 4, V_A + 8, V_TMP, V_TMP + 4][:NB]
    atok = {}
    ctr = [0]
    def a_read_parts(cnt, slot, u):
        buf = ABUF[cnt % NB]
        off = (slot & 1) * SLOT + u * 4096
        def r0(): k.ds(f'ds_read_b64_tr_b16 {vr(buf,2)}, v{V_RD[slot>>1]} offset:{off}')
        def r1(): atok[cnt % NB] = k.ds(f'ds_read_b64_tr_b16 {vr(buf+2,2)}, v{V_RD[slot>>1]} offset:{off+512}')
        return r0, r1
    def a_reads(cnt, slot, u):
        r0, r1 = a_read_parts(cnt, slot, u); r0(); r1()
    def gelu_ops(acc, dst):
        ops = []
        for h in range(2):
            x = [acc + 4*h + r for r in range(4)]; g = [V_G + 4*h + r for r in range(4)]
            if pk:
                P = (0, 2)
                ops += [f'v_pk_mul_f32 {vr(g[r],2)}, {vr(x[r],2)}, {vr(x[r],2)}' for r in P]
                ops += [f'v_pk_fma_f32 {vr(g[r],2)}, {vr(g[r],2)}, {vr(V_C2,2)}, {vr(V_C1,2)} op_sel_hi:[1,0,0]' for r in P]
                ops += [f'v_pk_mul_f32 {vr(g[r],2)}, {vr(x[r],2)}, {vr(g[r],2)}' for r in P]
                ops += [f'v_exp_f32 v{g[r]}, v{g[r]}' for r in range(4)]
                ops += [f'v_pk_add_f32 {vr(g[r],2)}, {vr(g[r],2)}, 1.0 op_sel_hi:[1,0]' for r in P]
                ops += [f'v_rcp_f32 v{g[r]}, v{g[r]}' for r in range(4)]
                ops += [f'v_pk_mul_f32 {vr(g[r],2)}, {vr(x[r],2)}, {vr(g[r],2)}' for r in P]
            else:
                ops += [f'v_mul_f32 v{g[r]}, v{x[r]}, v{x[r]}' for r in range(4)]
                ops += [f'v_fma_f32 v{g[r]}, v{g[r]}, v{V_C2}, v{V_C1}' for r in range(4)]
                ops += [f'v_mul_f32 v{g[r]}, v{x[r]}, v{g[r]}' for r in range(4)]
                ops += [f'v_exp_f32 v{g[r]}, v{g[r]}' for r in range(4)]
                ops += [f'v_add_f32 v{g[r]}, 1.0, v{g[r]}' for r in range(4)]
                ops += [f'v_rcp_f32 v{g[r]}, v{g[r]}' for r in range(4)]
                ops += [f'v_mul_f32 v{g[r]}, v{x[r]}, v{g[r]}' for r in range(4)]
            ops += dst(h, g)
        return ops
    lab = [0]
    cur = dict(cls=0)
    def group(phase, par, slots, issue, extra, last=False, vmw=(9, 9, 9), pre=None, early=False, hooks=None, prebar=None):
        acc = V_ACC[par]
        extra = list(extra)
        if no_gelu and phase == 1: extra = []
        nfill = len(extra)
        cls = cur['cls']
        dma_steps = (0, 2, 4) if cls == 0 else (1, 3, 5)
        wt = []
        for n in range(18):
            w_ = 0.0 if n == 0 else (wts[0] if (n % 6) in dma_steps else wts[1])
            if early: w_ = 1.0 if 1 <= n <= 3 else 0.0
            wt += [w_ / 2, w_ / 2]
        tot = sum(wt); cum = []; a_ = 0.0
        for w_ in wt:
            a_ += w_; cum.append(int(round(nfill * a_ / tot)))
        cum[-1] = nfill
        st = dict(done=0)
        def fill(upto):
            while st['done'] < min(upto, nfill):
                x_ = extra[st['done']]
                if callable(x_): x_()
                else: I(x_)
                st['done'] += 1
        for kc in range(3):
            if vmw[kc] is not None:
                if prebar and kc in prebar: prebar[kc]()
                if vmw[kc] != 'b': k.raw_wait(vm=vmw[kc])
                if not no_bar: I('s_barrier')
            if pre and kc in pre: pre[kc]()
            for u in range(6):
                n = kc * 6 + u
                cnt = ctr[0]; ctr[0] += 1
                buf = ABUF[cnt % NB]
                k.wait(atok[cnt % NB])
                nn = n + LA
                if nn < 18: rd = a_read_parts(cnt + LA, slots[nn // 6], nn % 6)
                elif not last: rd = a_read_parts(cnt + LA, slots[3], nn - 18)
                else: rd = (lambda: None, lambda: None)
                def mfma(h):
                    if n == 0: c = vr(V_B4, 4) if phase == 1 else '0'
                    else: c = vr(acc + 4*h, 4)
                    if not no_mfma: I(f'v_mfma_f32_16x16x32_bf16 {vr(acc+4*h,4)}, {vr(buf,4)}, {vr(V_BF+(h*18+n)*4,4)}, {c}')
                dma = issue[kc] is not None and not no_dma and u in dma_steps
                b = dma_steps.index(u) if dma else None
                mfma(0)
                rd[0](); fill(cum[2*n])
                mfma(1)
                if dma: dma_m0(issue[kc][0], b)
                rd[1]()
                if dma:
                    if nn >= 18 and last: I('s_nop 0')
                    dma_go(b, issue[kc][1])
                if phase == 1 and n == 8:
                    group.btk = k.ds(f'ds_read_b128 {vr(V_B4,4)}, v{V_BIAS}')
                    I(f'v_add_u32 v{V_BIAS}, 256, v{V_BIAS}')
                fill(cum[2*n+1])
                if hooks and n in hooks: hooks[n]()
                if phase == 1 and n == 17: k.wait(group.btk)
    group.btk = btk
    def h_dst_indexed(delta):
        def f(h, g):
            return [f'v_cvt_pk_bf16_f32 v{V_PK}, v{g[0]}, v{g[1]}', f'v_cvt_pk_bf16_f32 v{V_PK+1}, v{g[2]}, v{g[3]}',
                    f's_set_gpr_idx_on s{S_IDX}, gpr_idx(DST)', f'v_mov_b32 v{V_H+delta+2*h}, v{V_PK}', f'v_mov_b32 v{V_H+delta+2*h+1}, v{V_PK+1}', 's_set_gpr_idx_off']
        return f
    def h_dst_static(G):
        def f(h, g):
            return [f'v_cvt_pk_bf16_f32 v{V_H+4*G+2*h}, v{g[0]}, v{g[1]}', f'v_cvt_pk_bf16_f32 v{V_H+4*G+2*h+1}, v{g[2]}, v{g[3]}']
        return f
    def merge_idx(ops):
        out = []; i = 0
        while i < len(ops):
            if ops[i].startswith('s_set_gpr_idx_on'):
                out.append('\n'.join(ops[i:i+4])); i += 4
            else:
                out.append(ops[i]); i += 1
        return out
    def switch_src(to):
        def f():
            lab = f'L_sw_{to}_{cur["cls"]}'
            I(f's_cmp_eq_u32 s{S_IT}, 3\ns_cbranch_scc0 {lab}')
            if to == 'w2':
                I(f's_mov_b32 s{S_CUR}, s{S_W2}\ns_mov_b32 s{S_CUR+1}, s{S_W2+1}')
                I(f'v_mov_b32 v{VD[0]}, v{V_DMA2}\nv_add_u32 v{VD[1]}, {64*1152}, v{V_DMA2}\nv_add_u32 v{VD[2]}, {128*1152}, v{V_DMA2}')
                I(f's_mul_i32 s62, s{S_P}, 663552\ns_mov_b32 s{S_D}, {D2}\ns_mov_b32 s63, 0')
                if rot: I(f's_add_u32 s{S_OFF}, s62, {8*128}\ns_mov_b32 s60, s{S_P}\ns_mov_b32 s61, 7')
                else: I(f's_mov_b32 s{S_OFF}, s62')
            else:
                I(f's_mov_b32 s{S_OFF}, 0x7ff00000\ns_mov_b32 s62, 0x7ff00000\ns_mov_b32 s{S_D}, 0')
            k.label(lab)
        return f
    def main(cls):
        cur['cls'] = cls
        for n in range(LA): a_reads(n, 3, n)
        k.wait(btk)
        I(f's_mov_b32 s{S_IT}, 0\ns_mov_b32 s{S_IDX}, 0')
        def body1():
            group(1, 0, (3, 4, 5, 0), ((2, 2), (3, 0), (4, 1)), merge_idx(gelu_ops(V_ACC[1], h_dst_indexed(-4))))
            group(1, 1, (0, 1, 2, 3), ((5, 2), (0, 0), (1, 1)), merge_idx(gelu_ops(V_ACC[0], h_dst_indexed(0))), pre={1: switch_src('w2')})
        def loop(label, body, n):
            save = len(k.lines); l0 = lab[0]
            body(); first = k.lines[save:]; del k.lines[save:]; lab[0] = l0
            body(); second = k.lines[save:]; del k.lines[save:]; lab[0] = l0
            start = len(k.lines)
            k.label(label)
            body()
            third = k.lines[start+1:]
            assert second == third, 'loop body not a fixed point'
            strip = lambda L: [x for x in L]
            def split(L):
                body_, waits = [], {}
                for x in L:
                    if x.startswith('    s_waitcnt'): waits.setdefault(len(body_), []).append(x.strip())
                    else: body_.append(x)
                return body_, waits
            fb, fw = split(first); sb_, sw_ = split(second)
            assert fb == sb_, 'loop body differs between entry and steady state'
            import re as _re
            def cnts(ws):
                d = {}
                for w_ in ws:
                    for nm, v in _re.findall(r'(vmcnt|lgkmcnt)\((\d+)\)', w_): d[nm] = min(d.get(nm, 99), int(v))
                return d
            for pos, ws in fw.items():
                a = cnts(ws); b = cnts(sw_.get(pos, []))
                for nm, v in a.items():
                    assert nm in b and b[nm] <= v, ('steady-state wait too lax for loop entry', label, pos, ws, sw_.get(pos))
            errs = hazards(third + third, label)
            for e in errs: print('HAZARD', e)
            I(f's_add_u32 s{S_IDX}, s{S_IDX}, 8\ns_add_u32 s{S_IT}, s{S_IT}, 1\ns_cmp_lt_u32 s{S_IT}, {n}\ns_cbranch_scc1 {label}')
        loop(f'L_p1_{cls}', body1, 4)
        stamp()
        group(1, 0, (3, 4, 5, 0), ((2, 2), None, None), gelu_ops(V_ACC[1], h_dst_static(7)), vmw=(9, 9, 6))
        k.nop(8)
        for op in gelu_ops(V_ACC[0], h_dst_static(8)): I(op)
        k.raw_wait(vm=3)
        I('s_barrier')
        for G in range(9):
            for h in range(2):
                k.ds(f'ds_write_b64 v{V_HW}, {vr(V_H+4*G+2*h,2)} offset:{G*2048 + h*18432}')
        k.waitall(vm=False)
        I('s_barrier')
        I(f'v_add_u32 v{V_FR}, {3*SLOT}, v{V_FR}')
        load_bfrags(0)
        k.waitall(vm=False)
        I('s_barrier')
        dma_chunk(3, 0); dma_chunk(4, 1)
        stamp()
        stok = {}
        def store_ops(acc):
            ops = [f'v_cvt_pk_bf16_f32 v{V_PK+2*h+d}, v{acc+4*h+2*d}, v{acc+4*h+2*d+1}' for h in range(2) for d in range(2)]
            def st_():
                stok['last'] = k.vm(f'buffer_store_dwordx4 {vr(V_PK,4)}, v{V_ST}, {sr(S_WS,4)}, s{S_ST} offen {store_flags}')
                if not rot: I(f's_mov_b32 s{S_ST}, s{S_STN}\ns_add_u32 s{S_STN}, s{S_STN}, 8192')
                else: I(f's_mov_b32 s{S_ST}, s{S_STN}\ns_add_u32 s59, s59, 1\ns_add_u32 s{S_STN}, s59, s{S_P}\ns_and_b32 s{S_STN}, s{S_STN}, 7\ns_lshl_b32 s{S_STN}, s{S_STN}, 13\ns_add_u32 s{S_STN}, s{S_STN}, s32')
            ops.append(st_)
            return ops
        def run(ops):
            for op in ops:
                if callable(op): op()
                else: I(op)
        I(f's_mov_b32 s{S_IT}, 0')
        if rot: I(f's_mov_b32 s32, s{S_STN}\ns_add_u32 s{S_STN}, s{S_STN}, {8*8192}\ns_mov_b32 s59, 0')
        if not ikr:
            def body2():
                group(2, 0, (0, 1, 2, 3), ((5, 2), (0, 0), (1, 1)), store_ops(V_ACC[1]), vmw=(9, 9, 9))
                group(2, 1, (3, 4, 5, 0), ((2, 2), (3, 0), (4, 1)), store_ops(V_ACC[0]), vmw=(9, 9, 9), pre={1: switch_src('oob')})
            loop(f'L_p2_{cls}', body2, 4)
            group(2, 0, (0, 1, 2, 3), (None, None, None), store_ops(V_ACC[1]), last=True, vmw=(9, 6, None))
            k.nop(8)
            run(store_ops(V_ACC[0]))
            return
        S_FL, S_G, S_CNT = 46, 50, 51
        VF, VFA, VL16, VO, VTR, VP4 = 2, 12, 13, 8, 20, 21
        I(f's_lshl_b32 s{S_FL}, s{S_M}, 7\ns_add_u32 s{S_FL}, s{S_FL}, {OFF_FLAG}')
        I(f'v_and_b32 v{VFA}, 7, v{V_LANE}\nv_lshlrev_b32 v{VFA}, 2, v{VFA}\nv_lshlrev_b32 v{VL16}, 4, v{V_LANE}')
        I(f's_lshr_b32 s52, s{S_P}, 2\ns_and_b32 s53, s{S_P}, 3')
        I(f's_lshl_b32 s54, s{S_M}, 6\ns_lshl_b32 s55, s52, 5\ns_add_u32 s54, s54, s55\nv_add_u32 v{VO}, s54, v{V_TL}\nv_mul_u32_u24 v{VO}, 1152, v{VO}')
        I(f's_lshl_b32 s55, s53, 4\nv_lshlrev_b32 v{VP4}, 2, v{V_Q}\nv_add_u32 v{VP4}, s55, v{VP4}')
        I(f'v_lshlrev_b32 v16, 1, v{VP4}\nv_add_u32 v{VO}, v{VO}, v16')
        I(f'v_lshrrev_b32 v{VTR}, 2, v{V_TL}\nv_lshlrev_b32 v16, 2, v{V_Q}\nv_add_u32 v{VTR}, v{VTR}, v16\nv_lshlrev_b32 v{VTR}, 6, v{VTR}')
        I(f'v_and_b32 v16, 3, v{V_LANE}\nv_lshlrev_b32 v16, 3, v16\nv_add_u32 v{VTR}, v{VTR}, v16\nv_add_u32 v{VTR}, {XS}, v{VTR}')
        VXG = 19
        I(f'v_lshrrev_b32 v{VXG}, 2, v{V_LANE}\nv_lshlrev_b32 v{VXG}, 7, v{VXG}\nv_and_b32 v16, 3, v{V_LANE}\nv_lshlrev_b32 v16, 4, v16\nv_add_u32 v{VXG}, v{VXG}, v16\ns_lshl_b32 s55, s52, 6\nv_add_u32 v{VXG}, s55, v{VXG}')
        def signal(val, name, cond_it=None):
            lb = f'L_sig{name}'
            if cond_it is not None: I(f's_cmp_eq_u32 s{S_IT}, {cond_it}\ns_cbranch_scc0 {lb}')
            I(f's_cmp_eq_u32 s{S_W}, 0\ns_cbranch_scc0 {lb}')
            I(f's_lshl_b32 s52, s{S_P}, 2\ns_add_u32 s52, s52, s{S_FL}\nv_mov_b32 v16, {val}\nv_mov_b32 v17, 0\ns_mov_b64 exec, 1')
            I(f'buffer_store_dword v16, v17, {sr(S_WS,4)}, s52 offen sc1')
            I('s_mov_b64 exec, -1')
            k.label(lb)
        ftok = {}
        def flag_load(): ftok['t'] = k.vm(f'buffer_load_dword v{VF}, v{VFA}, {sr(S_WS,4)}, s{S_FL} offen sc1')
        def spin(val, name):
            I(f's_mov_b32 s{S_CNT}, 0x40000')
            k.label(f'L_spin{name}')
            I(f'v_cmp_gt_u32 vcc, {val}, v{VF}\ns_nop 4\ns_cbranch_vccz L_spun{name}')
            I(f's_sub_u32 s{S_CNT}, s{S_CNT}, 1\ns_cmp_eq_u32 s{S_CNT}, 0\ns_cbranch_scc1 L_spun{name}')
            I(f's_sleep 1\nbuffer_load_dword v{VF}, v{VFA}, {sr(S_WS,4)}, s{S_FL} offen sc1\ns_waitcnt vmcnt(0)\ns_branch L_spin{name}')
            k.label(f'L_spun{name}')
        PR = V_H
        R0, R1 = V_G, V_BF
        def statics(R, slotidx, tracked=False):
            V = k.vm if tracked else I
            I(f's_mul_i32 s52, s{S_M}, 73728\ns_lshl_b32 s54, s{S_G}, 13\ns_add_u32 s52, s52, s54\ns_lshl_b32 s54, s53, 11\ns_add_u32 s52, s52, s54\ns_add_u32 s52, s52, {OFF_X1T}')
            I(f's_lshl_b32 s54, {slotidx}, 10\ns_add_u32 m0, s54, {XS}\ns_nop 0')
            V(f'buffer_load_dwordx4 v{VXG}, {sr(S_WS,4)}, s52 offen lds')
            I(f's_lshl_b32 s54, s{S_G}, 8\ns_add_u32 s52, s54, {OFF_MODF + 3*2304}\nv_lshlrev_b32 v16, 2, v{VP4}')
            V(f'buffer_load_dwordx4 {vr(R,4)}, v16, {sr(S_WS,4)}, s52 offen')
            I(f's_lshl_b32 s54, s{S_G}, 7\nv_lshlrev_b32 v17, 1, v{VP4}')
            V(f'buffer_load_dwordx2 {vr(R+4,2)}, v17, s[8:11], s54 offen')
        def partials():
            I(f's_mul_i32 s52, s{S_M}, {8*73728}\ns_lshl_b32 s54, s{S_G}, 13\ns_add_u32 s52, s52, s54\ns_lshl_b32 s54, s{S_P}, 10\ns_add_u32 s52, s52, s54\ns_add_u32 s52, s52, {OFF_PART}')
            for p_ in range(8):
                I(f'buffer_load_dwordx4 {vr(PR+4*p_,4)}, v{VL16}, {sr(S_WS,4)}, s52 offen sc1')
                if p_ < 7: I(f's_add_u32 s52, s52, 73728')
        def finish(R, slotidx, own=None):
            I(f's_lshl_b32 s54, {slotidx}, 10\nv_add_u32 v16, s54, v{VTR}')
            I(f'ds_read_b64_tr_b16 v[36:37], v16\nds_read_b64_tr_b16 v[38:39], v16 offset:32')
            acc = [72, 73, 74, 75, 108, 109, 110, 111]
            t0, t1 = 22, 23
            if own is not None: acc = [own + e for e in range(8)]
            for p_ in range(8 if own is None else 7):
                for d in range(4):
                    lo, hi = acc[2*d], acc[2*d+1]
                    b = PR + 4*p_ + d
                    if p_ == 0 and own is None: I(f'v_lshlrev_b32 v{lo}, 16, v{b}\nv_and_b32 v{hi}, 0xffff0000, v{b}')
                    else: I(f'v_lshlrev_b32 v{t0}, 16, v{b}\nv_and_b32 v{t1}, 0xffff0000, v{b}\nv_add_f32 v{lo}, v{lo}, v{t0}\nv_add_f32 v{hi}, v{hi}, v{t1}')
            b2 = [30, 31, 32, 33]; xx = [16, 17, 18, 4]; pk = (34, 10)
            I(f'v_lshlrev_b32 v{b2[0]}, 16, v{R+4}\nv_and_b32 v{b2[1]}, 0xffff0000, v{R+4}\nv_lshlrev_b32 v{b2[2]}, 16, v{R+5}\nv_and_b32 v{b2[3]}, 0xffff0000, v{R+5}')
            finish.n += 1
            I(f's_waitcnt lgkmcnt({finish.lg})')
            I(f's_lshl_b32 s54, s{S_G}, 7')
            for h in range(2):
                x = 36 + 2*h
                I(f'v_lshlrev_b32 v{xx[0]}, 16, v{x}\nv_and_b32 v{xx[1]}, 0xffff0000, v{x}\nv_lshlrev_b32 v{xx[2]}, 16, v{x+1}\nv_and_b32 v{xx[3]}, 0xffff0000, v{x+1}')
                for r in range(4):
                    a = acc[4*h + r]
                    I(f'v_add_f32 v{a}, v{a}, v{b2[r]}\nv_fma_f32 v{a}, v{a}, v{R+r}, v{xx[r]}')
                I(f'v_cvt_pk_bf16_f32 v{pk[h]}, v{acc[4*h]}, v{acc[4*h+1]}\nv_cvt_pk_bf16_f32 v{pk[h]+1}, v{acc[4*h+2]}, v{acc[4*h+3]}')
            I(f'buffer_store_dwordx2 {vr(pk[0],2)}, v{VO}, s[28:31], s54 offen')
            I(f's_add_u32 s54, s54, {16*1152}')
            I(f'buffer_store_dwordx2 {vr(pk[1],2)}, v{VO}, s[28:31], s54 offen')
        finish.n = 0; finish.lg = 0
        if rot:
            S_PB = 56
            def body2r():
                group(2, 0, (0, 1, 2, 3), ((5, 2), (0, 0), (1, 1)), store_ops(V_ACC[1]), vmw=(9, 9, 9), early=True,
                      pre={1: lambda: signal(1, 'a', cond_it=2)})
                group(2, 1, (3, 4, 5, 0), ((2, 2), (3, 0), (4, 1)), store_ops(V_ACC[0]), vmw=(9, 9, 9), early=True)
            loop(f'L_p2_{cls}', body2r, 3)
            I(f's_mov_b32 s{S_G}, 8')
            group(2, 0, (0, 1, 2, 3), ((5, 2), (0, 0), (1, 1)), store_ops(V_ACC[1]), vmw=(9, 9, 9), early=True,
                  hooks={9: flag_load, 14: lambda: statics(R0, '8', True)})
            if fine: stamp()
            ptok = {}
            def setup8():
                k.wait(ftok['t'])
                I(f's_cmp_eq_u32 s{S_W}, 0\ns_cbranch_scc0 L_nob8')
                spin(1, 'a')
                k.label('L_nob8')
                I(f's_mul_i32 s{S_PB}, s{S_M}, {8*73728}\ns_lshl_b32 s54, s{S_P}, 10\ns_add_u32 s{S_PB}, s{S_PB}, s54\ns_add_u32 s{S_PB}, s{S_PB}, {OFF_PART + 8*8192}')
                I(f's_cmp_eq_u32 s{S_W}, 0\ns_cselect_b32 s{S_PB}, s{S_PB}, 0x7ff00000\ns_cselect_b32 s58, 73728, 0')
            def pload8(p_):
                def f():
                    ptok['t'] = k.vm(f'buffer_load_dwordx4 {vr(PR+4*p_,4)}, v{VL16}, {sr(S_WS,4)}, s{S_PB} offen sc1')
                    I(f's_add_u32 s{S_PB}, s{S_PB}, s58')
                return f
            hooks = {9: setup8}
            for p_ in range(8): hooks[10 + p_] = pload8(p_)
            h12 = hooks[12]
            ftok2 = {}
            def hook12():
                h12(); flag_load(); ftok2['t'] = ftok['t']
            hooks[12] = hook12
            group(2, 1, (3, 4, 5, 0), ((2, 2), None, None), store_ops(V_ACC[0]), vmw=(9, 9, 9), early=True,
                  pre={0: lambda: signal(2, 'b')}, hooks=hooks)
            k.wait(dma_go.last)
            def own_load(s_):
                I(f's_sub_u32 s54, s{S_P}, {s_}\ns_and_b32 s54, s54, 7\ns_mul_i32 s54, s54, 73728\ns_add_u32 s54, s54, s{S_PB}')
                return k.vm(f'buffer_load_dwordx4 {vr(PR+4*(s_-1),4)}, v{VL16}, {sr(S_WS,4)}, s54 offen sc1')
            def mid8():
                k.wait(ftok2['t'])
                spin(2, 'b')
                I(f's_cmp_eq_u32 s{S_W}, 0\ns_cbranch_scc0 L_nofin8\ns_waitcnt vmcnt(1)')
                finish(R0, '8')
                k.label('L_nofin8')
                I(f's_lshr_b32 s52, s{S_W}, 2\ns_and_b32 s53, s{S_W}, 3\ns_mov_b32 s{S_G}, s{S_P}')
                I(f's_lshl_b32 s54, s{S_M}, 6\ns_lshl_b32 s55, s52, 5\ns_add_u32 s54, s54, s55\nv_add_u32 v{VO}, s54, v{V_TL}\nv_mul_u32_u24 v{VO}, 1152, v{VO}')
                I(f's_lshl_b32 s55, s53, 4\nv_lshlrev_b32 v{VP4}, 2, v{V_Q}\nv_add_u32 v{VP4}, s55, v{VP4}')
                I(f'v_lshlrev_b32 v16, 1, v{VP4}\nv_add_u32 v{VO}, v{VO}, v16')
                I(f'v_lshrrev_b32 v{VXG}, 2, v{V_LANE}\nv_lshlrev_b32 v{VXG}, 7, v{VXG}\nv_and_b32 v16, 3, v{V_LANE}\nv_lshlrev_b32 v16, 4, v16\nv_add_u32 v{VXG}, v{VXG}, v16\ns_lshl_b32 s55, s52, 6\nv_add_u32 v{VXG}, s55, v{VXG}')
                statics(R0, f's{S_W}', True)
                I(f's_mul_i32 s{S_PB}, s{S_M}, {8*73728}\ns_lshl_b32 s54, s{S_P}, 13\ns_add_u32 s{S_PB}, s{S_PB}, s54\ns_lshl_b32 s54, s{S_W}, 10\ns_add_u32 s{S_PB}, s{S_PB}, s54\ns_add_u32 s{S_PB}, s{S_PB}, {OFF_PART}')
            hooks = {6: mid8}
            for s_ in range(1, 6): hooks[6 + 2*s_ - 1] = (lambda q_: (lambda: own_load(q_)))(s_)
            group(2, 0, (0, 1, 2, 3), (None, None, None), store_ops(V_ACC[1]), last=True, vmw=('b', 'b', None), early=True, hooks=hooks)
            if fine: stamp()
            I(f's_waitcnt vmcnt(0)\ns_mov_b32 s{S_CNT}, 0x2000')
            if fine: stamp()
            k.label('L_retry')
            own_load(6); own_load(7)
            I('s_waitcnt vmcnt(0)')
            a_, b_ = PR + 20, PR + 24
            I(f'v_max3_u32 v22, v{a_}, v{a_+1}, v{a_+2}\nv_max3_u32 v22, v22, v{a_+3}, v{b_}\nv_max3_u32 v22, v22, v{b_+1}, v{b_+2}\nv_max_u32 v22, v22, v{b_+3}')
            I(f'v_cmp_eq_u32 vcc, -1, v22\ns_sub_u32 s{S_CNT}, s{S_CNT}, 1\ns_cmp_eq_u32 s{S_CNT}, 0\ns_cbranch_scc1 L_got\ns_nop 1\ns_cbranch_vccnz L_retry')
            k.label('L_got')
            if fine: stamp()
            finish(R0, f's{S_W}', own=V_ACC[0])
            return
        def body2():
            group(2, 0, (0, 1, 2, 3), ((5, 2), (0, 0), (1, 1)), store_ops(V_ACC[1]), vmw=(9, 9, 9), early=True)
            group(2, 1, (3, 4, 5, 0), ((2, 2), (3, 0), (4, 1)), store_ops(V_ACC[0]), vmw=(9, 9, 9), early=True)
        loop(f'L_p2_{cls}', body2, 3)
        S_PB = 56
        def batch_setup(lo, hi, lvl, name):
            k.wait(ftok['t'])
            I(f's_sub_u32 s52, s{S_W}, {lo}\ns_cmp_lt_u32 s52, {hi - lo}\ns_cbranch_scc0 L_nob{name}')
            spin(lvl, name)
            k.label(f'L_nob{name}')
            I(f's_mul_i32 s{S_PB}, s{S_M}, {8*73728}\ns_lshl_b32 s54, s{S_W}, 13\ns_add_u32 s{S_PB}, s{S_PB}, s54\ns_lshl_b32 s54, s{S_P}, 10\ns_add_u32 s{S_PB}, s{S_PB}, s54\ns_add_u32 s{S_PB}, s{S_PB}, {OFF_PART}')
            I(f's_sub_u32 s52, s{S_W}, {lo}\ns_cmp_lt_u32 s52, {hi - lo}\ns_cselect_b32 s{S_PB}, s{S_PB}, 0x7ff00000\ns_cselect_b32 s58, 73728, 0')
        ptok = {}
        def pload(p_):
            def f():
                ptok['t'] = k.vm(f'buffer_load_dwordx4 {vr(PR+4*p_,4)}, v{VL16}, {sr(S_WS,4)}, s{S_PB} offen sc1')
                I(f's_add_u32 s{S_PB}, s{S_PB}, s58')
            return f
        I(f's_mov_b32 s{S_G}, s{S_W}')
        group(2, 0, (0, 1, 2, 3), ((5, 2), (0, 0), (1, 1)), store_ops(V_ACC[1]), vmw=(9, 9, 9), early=True,
              pre={1: lambda: signal(1, 'a')}, hooks={14: lambda: statics(R0, f's{S_W}', True)})
        if fine: stamp()
        hooks = {1: flag_load, 9: lambda: batch_setup(0, 5, 1, 'a')}
        for p_ in range(8): hooks[10 + p_] = pload(p_)
        group(2, 1, (3, 4, 5, 0), ((2, 2), None, None), store_ops(V_ACC[0]), vmw=(9, 9, 9), early=True, hooks=hooks)
        tok26 = dma_go.last
        k.wait(tok26)
        group(2, 0, (0, 1, 2, 3), (None, None, None), store_ops(V_ACC[1]), last=True, vmw=('b', 'b', None), early=True,
              pre={0: lambda: signal(2, 'b')}, hooks={12: flag_load})
        if fine: stamp()
        I(f's_cmp_eq_u32 s{S_W}, 0\ns_cbranch_scc0 L_nost8\ns_mov_b32 s{S_G}, 8')
        statics(R1, '8')
        I(f's_mov_b32 s{S_G}, 0')
        k.label('L_nost8')
        k.nop(7)
        run(store_ops(V_ACC[0]))
        I(f's_sub_u32 s52, s{S_W}, 5\ns_cmp_lt_u32 s52, 2\ns_cbranch_scc0 L_no6')
        I('s_waitcnt vmcnt(1)')
        spin(2, 'c')
        partials()
        I('s_waitcnt vmcnt(8)\ns_branch L_st8' if not sent else 's_branch L_st8')
        k.label('L_no6')
        if not sent:
            I('s_waitcnt vmcnt(0)')
            k.label('L_st8')
            if fine: stamp()
            I('s_barrier')
            if fine: stamp()
            signal(3, 'd')
            I(f's_cmp_eq_u32 s{S_W}, 7\ns_cbranch_scc1 L_late7')
            I(f's_cmp_ge_u32 s{S_W}, 5\ns_cbranch_scc0 L_have\ns_waitcnt vmcnt(0)')
            k.label('L_have')
            finish(R0, f's{S_W}')
            I(f's_cmp_eq_u32 s{S_W}, 0\ns_cbranch_scc0 L_ikr_done\ns_mov_b32 s{S_G}, 8')
            for e in range(6): I(f'v_mov_b32 v{R0+e}, v{R1+e}')
            I(f's_mov_b32 s57, 8\ns_branch L_late2')
            k.label('L_late7')
            I(f's_mov_b32 s57, 7')
            k.label('L_late2')
            I(f'buffer_load_dword v{VF}, v{VFA}, {sr(S_WS,4)}, s{S_FL} offen sc1\ns_waitcnt vmcnt(0)')
            spin(3, 'b')
            partials()
            I('s_waitcnt vmcnt(0)')
            finish(R0, 's57')
        else:
            k.label('L_st8')
            if fine: stamp(); stamp()
            I(f's_cmp_eq_u32 s{S_W}, 7\ns_cbranch_scc1 L_late7')
            I(f's_cmp_ge_u32 s{S_W}, 5\ns_cbranch_scc1 L_w56\ns_waitcnt vmcnt(1)\ns_branch L_have')
            k.label('L_w56')
            I('s_waitcnt vmcnt(0)')
            k.label('L_have')
            finish(R0, f's{S_W}')
            I(f's_cmp_eq_u32 s{S_W}, 0\ns_cbranch_scc0 L_ikr_done\ns_mov_b32 s{S_G}, 8')
            for e in range(6): I(f'v_mov_b32 v{R0+e}, v{R1+e}')
            I(f's_mov_b32 s57, 8\ns_branch L_late2')
            k.label('L_late7')
            I(f's_mov_b32 s57, 7')
            k.label('L_late2')
            I(f's_waitcnt vmcnt(0)\ns_mov_b32 s{S_CNT}, 0x2000')
            k.label('L_retry')
            partials()
            I('s_waitcnt vmcnt(0)')
            I(f'v_max3_u32 v22, v{PR}, v{PR+1}, v{PR+2}')
            for e in range(3, 31, 2): I(f'v_max3_u32 v22, v22, v{PR+e}, v{PR+e+1}')
            I(f'v_max_u32 v22, v22, v{PR+31}')
            I(f'v_cmp_eq_u32 vcc, -1, v22\ns_sub_u32 s{S_CNT}, s{S_CNT}, 1\ns_cmp_eq_u32 s{S_CNT}, 0\ns_cbranch_scc1 L_got\ns_nop 1\ns_cbranch_vccnz L_retry')
            k.label('L_got')
            finish(R0, 's57')
        k.label('L_ikr_done')
    if classes:
        import copy
        st0 = (dict(k.cnt), dict(k.done), dict(atok), ctr[0], nst[0], group.btk)
        I(f's_cmp_ge_u32 s{S_W}, 4\ns_cbranch_scc1 L_main1')
        if cls_prio == 0: I('s_setprio 1')
        main(0)
        I('s_branch L_main_done')
        k.label('L_main1')
        k.cnt, k.done = dict(st0[0]), dict(st0[1]); atok.clear(); atok.update(st0[2]); ctr[0] = st0[3]; nst[0] = st0[4]; group.btk = st0[5]
        if cls_prio == 1: I('s_setprio 1')
        main(1)
        k.label('L_main_done')
    else:
        main(0)
    stamp()
    I('s_waitcnt vmcnt(0)')
    stamp()
    if stamps:
        I('s_waitcnt lgkmcnt(0)')
        I(f's_lshl_b32 s46, s2, 6\ns_add_u32 s46, s46, {OFF_DBG}')
        for i in range(nst[0]):
            I(f'v_mov_b32 v2, s{64+2*i}\nv_mov_b32 v3, 0')
            I(f'buffer_store_dword v2, v3, {sr(S_WS,4)}, s46 offen offset:{4*i}')
            if not fine:
                I(f'v_mov_b32 v2, s{80+2*i}')
                I(f'buffer_store_dword v2, v3, {sr(S_WS,4)}, s46 offen offset:{32+4*i}')
        I('s_waitcnt vmcnt(0)')
    if dbgout:
        I(f's_cmp_eq_u32 s2, 0\ns_cbranch_scc0 L_mlp_end\ns_cmp_eq_u32 s{S_W}, 0\ns_cbranch_scc0 L_mlp_end')
        I('s_load_dwordx2 s[20:21], s[0:1], 120\ns_mov_b64 exec, -1\ns_waitcnt vmcnt(0) lgkmcnt(0)')
        I('s_sub_u32 s20, s20, 1024\ns_subb_u32 s21, s21, 0\ns_mov_b32 s22, 1280\ns_mov_b32 s23, 0x20000')
        I(f'v_and_b32 v2, 63, v0\nv_lshlrev_b32 v3, 2, v2')
        srcs = [OFF_DBG + 0x20000 + 4*4, OFF_DBG + 0x10000, OFF_DBG + 0x10000 + 4*5, OFF_DBG + 0x10000 + 4*6, OFF_DBG + 0x10000 + 4*9] + [OFF_DBG + 4*i for i in range(11)]
        I('v_mov_b32 v4, 0')
        for i, o in enumerate(srcs):
            I(f'v_cmp_eq_u32 vcc, {i}, v2\nv_mov_b32 v5, {o}\ns_nop 0\nv_cndmask_b32 v4, v4, v5, vcc')
        I(f'buffer_load_dword v6, v4, {sr(S_WS,4)}, 0 offen sc1')
        I(f'v_mov_b32 v7, {OFF_DBG + 0x20000}\nbuffer_load_dword v8, v7, {sr(S_WS,4)}, 0 offen sc1\ns_waitcnt vmcnt(0)')
        I('v_sub_u32 v6, v6, v8\nv_cmp_gt_u32 vcc, 16, v2\ns_nop 1\ns_and_saveexec_b64 s[50:51], vcc')
        I('buffer_store_dword v6, v3, s[20:23], 0 offen\nbuffer_store_dword v6, v3, s[20:23], 0 offen offset:1024\ns_waitcnt vmcnt(0)')
    k.label('L_mlp_end')
    I('s_endpgm')
    errs = hazards(k.lines, 'mlp')
    for e in errs: print('HAZARD', e)
    return k, LDS_BYTES

if __name__ == '__main__':
    k, lds = build()
    print(len(k.lines), 'lines; lds', lds)
```

```python
from asmlib import Kern, hazards
from layout import *
import struct, math
def vr(a, n): return f'v[{a}:{a+n-1}]'
f2u = lambda x: struct.unpack('<I', struct.pack('<f', x))[0]
N_LN, N_KG, N_MOD = 64, 576, 243
GRID = N_LN + N_KG + N_MOD
L_F = 0
L_G = 16 * 528
TB = L_F + 8
TP = 1184
T_BYTES = 32 * TP + 384
LDS_BYTES = max(T_BYTES, 64 * 528, 8192)

def build(stamps=False, prio=True, xmap=True, sent=False):
    k = Kern('prep_kernel', 128, 96)
    I = k.I
    k.stamp_init(stamps, 64, OFF_DBG + 0x20000)
    I(f's_cmp_ge_u32 s2, {GRID}\ns_cbranch_scc1 L_prep_end')
    I('s_load_dwordx2 s[26:27], s[0:1], 128')
    k.stamp()
    if stamps: I('s_mov_b32 s59, s2')
    I('v_and_b32 v1, 63, v0\nv_lshrrev_b32 v2, 6, v0')
    I('s_nop 0\nv_readfirstlane_b32 s33, v2')
    I(f's_cmp_ge_u32 s2, {N_LN + N_KG}\ns_cbranch_scc1 L_mod')
    I(f's_cmp_ge_u32 s2, {N_LN}\ns_cbranch_scc1 L_kgen')
    I('s_load_dwordx2 s[20:21], s[0:1], 0')
    if prio: I('s_setprio 3')
    I('v_lshrrev_b32 v3, 3, v0\nv_and_b32 v4, 7, v0')
    I('s_lshl_b32 s34, s2, 5\nv_add_u32 v5, s34, v3\nv_mul_u32_u24 v5, 1152, v5\nv_lshlrev_b32 v6, 4, v4\nv_add_u32 v5, v5, v6')
    I('s_waitcnt lgkmcnt(0)')
    I(f's_mov_b32 s4, s26\ns_mov_b32 s5, s27\ns_mov_b32 s6, {WS_BYTES}\ns_mov_b32 s7, 0x20000')
    I('s_mov_b32 s8, s20\ns_mov_b32 s9, s21\ns_mov_b32 s10, 2359296\ns_mov_b32 s11, 0x20000')
    U, X = 16, 52
    tk = [k.vm(f'buffer_load_dwordx4 {vr(U+4*m,4)}, v5, s[8:11], 0 offen offset:{m*128}') for m in range(9)]
    I(f'v_mul_u32_u24 v7, {TP}, v3\nv_lshrrev_b32 v8, 3, v3\nv_lshlrev_b32 v8, 7, v8\nv_add_u32 v7, v7, v8\nv_add_u32 v7, v7, v6')
    I('v_mov_b32 v10, 0\nv_mov_b32 v11, 0')
    for m in range(9):
        k.wait(tk[m])
        k.ds(f'ds_write_b128 v7, {vr(U+4*m,4)} offset:{m*128}')
        for d in range(4):
            I(f'v_lshlrev_b32 v{X+8*m+2*d}, 16, v{U+4*m+d}\nv_and_b32 v{X+8*m+2*d+1}, 0xffff0000, v{U+4*m+d}')
        for d in range(4): I(f'v_pk_add_f32 v[10:11], v[10:11], {vr(X+8*m+2*d,2)}')
    k.stamp()
    I('v_lshrrev_b32 v3, 4, v1\nv_and_b32 v4, 15, v1\nv_lshrrev_b32 v5, 2, v4\nv_and_b32 v6, 3, v1')
    I(f'v_lshlrev_b32 v14, 3, v3\nv_add_u32 v14, v14, v5\nv_mul_u32_u24 v14, {TP}, v14\nv_lshlrev_b32 v8, 7, v3\nv_add_u32 v14, v14, v8')
    I('v_lshlrev_b32 v8, 3, v6\nv_add_u32 v14, v14, v8\ns_mul_i32 s35, s33, 288\nv_add_u32 v14, s35, v14')
    I('s_mul_i32 s35, s33, 144\nv_add_u32 v8, s35, v4\nv_lshlrev_b32 v8, 6, v8\nv_lshlrev_b32 v9, 4, v3\nv_add_u32 v8, v8, v9\ns_mul_i32 s35, s2, 36864\nv_add_u32 v8, s35, v8')
    def transposed(arr, off, rb):
        tks = []
        for i in range(9):
            k.ds(f'ds_read_b64_tr_b16 {vr(rb+4*i,2)}, v14 offset:{i*32}')
            tks.append(k.ds(f'ds_read_b64_tr_b16 {vr(rb+4*i+2,2)}, v14 offset:{i*32 + 4*TP}'))
        return tks
    def stores(tks, off, rb):
        for i in range(9):
            k.wait(tks[i])
            I(f's_mov_b32 s36, {off + i*1024}')
            k.vm(f'buffer_store_dwordx4 {vr(rb+4*i,4)}, v8, s[4:7], s36 offen')
    k.waitall(vm=False)
    I('s_barrier')
    tks = transposed(0, OFF_UT, U)
    def red8(reg):
        I(f's_nop 1\nv_add_f32_dpp v{reg}, v{reg}, v{reg} quad_perm:[1,0,3,2] row_mask:0xf bank_mask:0xf')
        I(f's_nop 1\nv_add_f32_dpp v{reg}, v{reg}, v{reg} quad_perm:[2,3,0,1] row_mask:0xf bank_mask:0xf')
        I(f's_nop 1\nv_add_f32_dpp v{reg}, v{reg}, v{reg} row_half_mirror row_mask:0xf bank_mask:0xf')
    I('v_add_f32 v10, v10, v11')
    red8(10)
    I(f'v_mul_f32 v10, {f2u(-1.0/576):#x}, v10\nv_mov_b32 v12, 0\nv_mov_b32 v11, v10\nv_mov_b32 v13, 0')
    stores(tks, OFF_UT, U)
    for e in range(36): I(f'v_pk_add_f32 {vr(X+2*e,2)}, {vr(X+2*e,2)}, v[10:11]')
    for e in range(36): I(f'v_pk_fma_f32 v[12:13], {vr(X+2*e,2)}, {vr(X+2*e,2)}, v[12:13]')
    I('v_add_f32 v12, v12, v13')
    red8(12)
    I(f'v_mul_f32 v12, {f2u(1.0/576):#x}, v12\nv_add_f32 v12, {f2u(1e-5):#x}, v12\nv_rsq_f32 v12, v12\ns_nop 0\nv_mov_b32 v13, v12')
    for e in range(36):
        I(f'v_pk_mul_f32 {vr(X+2*e,2)}, {vr(X+2*e,2)}, v[12:13]')
        I(f'v_cvt_pk_bf16_f32 v{U+e}, v{X+2*e}, v{X+2*e+1}')
    I('s_barrier')
    for m in range(9): k.ds(f'ds_write_b128 v7, {vr(U+4*m,4)} offset:{m*128}')
    k.waitall(vm=False)
    I('s_barrier')
    k.stamp()
    tks = transposed(1, OFF_NT, X)
    stores(tks, OFF_NT, X)
    k.stamp()
    I('s_branch L_prep_fin')
    k.st_n = 1
    k.label('L_mod')
    I('s_load_dwordx2 s[20:21], s[0:1], 96\ns_load_dwordx2 s[22:23], s[0:1], 104')
    I(f's_sub_u32 s34, s2, {N_LN + N_KG}\ns_mul_i32 s35, s34, 2428\ns_lshr_b32 s35, s35, 16\ns_mul_i32 s36, s35, 27\ns_sub_u32 s36, s34, s36')
    I('v_and_b32 v3, 15, v0\nv_lshrrev_b32 v4, 4, v0')
    I('s_lshl_b32 s37, s35, 6\nv_add_u32 v5, s37, v4')
    I('v_mul_u32_u24 v6, 6912, v5\nv_lshlrev_b32 v7, 4, v3\nv_add_u32 v6, v6, v7\ns_lshl_b32 s37, s36, 8\nv_add_u32 v6, s37, v6')
    I('v_lshlrev_b32 v5, 1, v5')
    I('s_waitcnt lgkmcnt(0)')
    I(f's_mov_b32 s4, s26\ns_mov_b32 s5, s27\ns_mov_b32 s6, {WS_BYTES}\ns_mov_b32 s7, 0x20000')
    I('s_mov_b32 s8, s20\ns_mov_b32 s9, s21\ns_mov_b32 s10, 1152\ns_mov_b32 s11, 0x20000')
    I('s_mov_b32 s12, s22\ns_mov_b32 s13, s23\ns_mov_b32 s14, 3981312\ns_mov_b32 s15, 0x20000')
    tw = []
    for i in range(4):
        I(f's_mov_b32 s38, {i*16*6912}')
        tw.append(k.vm(f'buffer_load_dwordx4 {vr(16+4*i,4)}, v6, s[12:15], s38 offen'))
    tc = None
    for i in range(4): tc = k.vm(f'buffer_load_ushort v{32+i}, v5, s[8:11], 0 offen offset:{i*32}')
    k.wait(tc)
    k.stamp()
    for i in range(4): I(f'v_lshlrev_b32 v{32+i}, 16, v{32+i}')
    for i in range(4): I(f'v_mul_f32 v{36+i}, {f2u(-math.log2(math.e)):#x}, v{32+i}')
    for i in range(4): I(f'v_exp_f32 v{36+i}, v{36+i}')
    for i in range(4): I(f'v_add_f32 v{36+i}, 1.0, v{36+i}')
    for i in range(4): I(f'v_rcp_f32 v{36+i}, v{36+i}')
    for i in range(4): I(f'v_mul_f32 v{32+i}, v{32+i}, v{36+i}')
    for i in range(4): I(f'v_cvt_pk_bf16_f32 v{32+i}, v{32+i}, v{32+i}\nv_and_b32 v{32+i}, 0xffff0000, v{32+i}')
    for e in range(8): I(f'v_mov_b32 v{40+e}, 0')
    for i in range(4):
        for d in range(4):
            I(f'v_lshlrev_b32 v48, 16, v{16+4*i+d}\nv_and_b32 v49, 0xffff0000, v{16+4*i+d}')
            I(f'v_fmac_f32 v{40+2*d}, v48, v{32+i}\nv_fmac_f32 v{40+2*d+1}, v49, v{32+i}')
    I('v_lshlrev_b32 v6, 9, v4\nv_lshlrev_b32 v7, 5, v3\nv_add_u32 v6, v6, v7')
    I('ds_write_b128 v6, v[40:43]\nds_write_b128 v6, v[44:47] offset:16')
    I('s_waitcnt lgkmcnt(0)\ns_barrier')
    I('v_cmp_gt_u32 vcc, 128, v0\nv_lshlrev_b32 v6, 2, v0\ns_nop 0\ns_and_saveexec_b64 s[42:43], vcc\ns_cbranch_execz L_prep_fin')
    for g in range(16): I(f'ds_read_b32 v{16+g}, v6 offset:{g*512}')
    I('s_waitcnt lgkmcnt(0)')
    for g in range(1, 16): I(f'v_add_f32 v16, v16, v{16+g}')
    I(f's_mul_i32 s37, s35, 13824\ns_lshl_b32 s38, s36, 9\ns_add_u32 s37, s37, s38\ns_add_u32 s37, s37, {OFF_MODP}')
    I('buffer_store_dword v16, v6, s[4:7], s37 offen')
    k.stamp(); k.stamp()
    I('s_branch L_prep_fin')
    k.label('L_kgen')
    k.st_n = 1
    k.cnt['vm'] = k.done['vm'] = 0; k.cnt['lg'] = k.done['lg'] = 0
    I(f's_sub_u32 s2, s2, {N_LN}')
    if xmap: I('s_and_b32 s34, s2, 7\ns_mul_i32 s34, s34, 72\ns_lshr_b32 s2, s2, 3\ns_add_u32 s2, s2, s34')
    I('s_load_dwordx2 s[8:9], s[0:1], 8\ns_load_dwordx2 s[12:13], s[0:1], 16\ns_load_dwordx2 s[16:17], s[0:1], 24\ns_load_dwordx2 s[28:29], s[0:1], 32\ns_load_dwordx2 s[20:21], s[0:1], 40')
    I('v_and_b32 v3, 15, v1\nv_lshrrev_b32 v4, 4, v1')
    I('v_and_b32 v6, 127, v0\nv_lshlrev_b32 v7, 1, v6\ns_lshl_b32 s35, s2, 8\nv_add_u32 v7, s35, v7')
    I('s_and_b32 s34, s2, 0xfffffffe\ns_lshl_b32 s34, s34, 1')
    I('s_waitcnt lgkmcnt(0)')
    I('s_load_dword s36, s[20:21], s34')
    I(f's_mov_b32 s4, s26\ns_mov_b32 s5, s27\ns_mov_b32 s6, {WS_BYTES}\ns_mov_b32 s7, 0x20000')
    for b in (8, 12, 16, 28): I(f's_mov_b32 s{b+2}, 147456\ns_mov_b32 s{b+3}, 0x20000')
    tp = None
    for a, b in enumerate((8, 12, 16, 28)): tp = k.vm(f'buffer_load_ushort v{16+a}, v7, s[{b}:{b+3}], 0 offen')
    if sent:
        for r in range(4): I(f'v_mov_b32 v{60+r}, -1')
        for rnd in range(2):
            I(f's_lshl_b32 s40, s2, 8\ns_add_u32 s40, s40, {rnd*147456}\nv_add_u32 v64, s40, v0')
            I('v_lshrrev_b32 v65, 10, v64\nv_bfe_u32 v66, v64, 9, 1\nv_add_u32 v66, v66, v65\nv_add_u32 v66, 6, v66\nv_and_b32 v66, 7, v66\nv_lshlrev_b32 v66, 13, v66')
            I('v_mul_u32_u24 v65, 73728, v65\nv_and_b32 v67, 511, v64\nv_lshlrev_b32 v67, 4, v67\nv_add_u32 v65, v65, v66\nv_add_u32 v65, v65, v67')
            I('s_mov_b32 s41, 262144\nv_cmp_gt_u32 vcc, s41, v64\ns_nop 1\nv_cndmask_b32 v65, -16, v65, vcc')
            I(f's_mov_b32 s41, {OFF_PART}\nbuffer_store_dwordx4 v[60:63], v65, s[4:7], s41 offen sc1')
    if sent: k.cnt['vm'] += 2
    L2E = f2u(math.log2(math.e))
    I('s_waitcnt lgkmcnt(0)')
    k.done['lg'] = k.cnt['lg']
    I('s_bitcmp1_b32 s2, 0\ns_cselect_b32 s53, 0, 16\ns_lshl_b32 s36, s36, s53\ns_and_b32 s36, s36, 0xffff0000')
    I(f'v_mov_b32 v10, s36\nv_mul_f32 v10, {L2E:#x}, v10\nv_exp_f32 v10, v10\ns_nop 0\nv_cvt_pk_bf16_f32 v10, v10, v10\nv_and_b32 v10, 0xffff0000, v10')
    I('v_lshlrev_b32 v11, 2, v6')
    k.wait(tp)
    k.stamp()
    AR, AI, CC, T0 = 20, 21, 22, 24
    for r in range(16, 20): I(f'v_lshlrev_b32 v{r}, 16, v{r}')
    I(f'v_mul_f32 v16, {L2E:#x}, v16\nv_exp_f32 v16, v16\ns_nop 0\nv_cvt_pk_bf16_f32 v16, v16, v16\nv_and_b32 v16, 0xffff0000, v16')
    I(f'v_mul_f32 v16, v16, v10\nv_mul_f32 v{AR}, {f2u(-math.log2(math.e)):#x}, v16')
    I(f'v_mul_f32 v17, v17, v10\nv_mul_f32 v{AI}, {f2u(1.0/(2*math.pi)):#x}, v17')
    I(f'v_mul_f32 v18, v18, v10\nv_mul_f32 v19, v19, v10\nv_add_f32 v{CC}, v18, v18\nv_add_f32 v{CC+1}, v19, v19')
    def direct(dst, p):
        I(f'v_mul_f32 v{T0}, {f2u(float(p)):#x}, v{AR}\nv_mul_f32 v{T0+1}, {f2u(float(p)):#x}, v{AI}')
        I(f'v_exp_f32 v{T0}, v{T0}\nv_fract_f32 v{T0+1}, v{T0+1}\ns_nop 0\nv_cos_f32 v{T0+2}, v{T0+1}\nv_sin_f32 v{T0+3}, v{T0+1}\ns_nop 0')
        I(f'v_mul_f32 v{dst}, v{T0}, v{T0+2}\nv_mul_f32 v{dst+1}, v{T0}, v{T0+3}')
    def cmul(dst, a, b):
        I(f'v_pk_mul_f32 {vr(dst,2)}, {vr(a,2)}, {vr(b,2)} op_sel:[0,0] op_sel_hi:[1,0]')
        I(f'v_pk_fma_f32 {vr(dst,2)}, {vr(a,2)}, {vr(b,2)}, {vr(dst,2)} op_sel:[1,1,0] op_sel_hi:[0,1,1] neg_lo:[1,0,0]')
    pp = [0]
    def put(base, row, src, neg):
        t = T0 + 4 + (pp[0] & 1); pp[0] += 1
        I(f'v_cvt_pk_bf16_f32 v{t}, v{src}, {"-" if neg else ""}v{src+1}')
        k.ds(f'ds_write_b32 v11, v{t} offset:{base + row*528}')
    Z, Z8, Z128, P0, P1, U0, U1 = 32, 46, 48, 50, 52, 54, 56
    I('s_cmp_ge_u32 s33, 2\ns_cbranch_scc1 L_kg_b')
    direct(Z, 1); direct(Z8, 8); direct(Z128, 128)
    I(f'v_mov_b32 v{P0}, 1.0\nv_mov_b32 v{P0+1}, 0')
    put(L_F, 0, P0, False); put(L_F, 1, Z8, False)
    cur = Z8
    for beta in range(2, 16):
        dst = P0 if cur != P0 else P1
        cmul(dst, cur, Z8); cur = dst
        put(L_F, beta, dst, False)
        if beta - 2 < 6: cmul(Z + 2*(beta-1), Z + 2*(beta-2), Z)
    cmul(U1, CC, Z128)
    for al, U in ((0, CC), (1, U1)):
        put(L_G, 8*al, U, True)
        for e in range(1, 8):
            dst = (P0, P1)[e & 1]
            cmul(dst, U, Z + 2*(e-1)); put(L_G, 8*al + e, dst, True)
    I('s_branch L_kg_done')
    k.label('L_kg_b')
    Z2, Z4, Z6 = Z, Z + 2, Z + 4
    direct(Z2, 2); direct(Z128, 128); direct(P0, 256)
    cmul(Z4, Z2, Z2); cmul(U0, CC, P0); cmul(Z6, Z4, Z2)
    Uc = U0; row = 16
    for al in range(2, 17):
        if al > 2:
            dst = U1 if Uc == U0 else U0
            cmul(dst, Uc, Z128); Uc = dst
        eps = (0, 2, 4, 6) if al < 4 else ((0, 4) if al < 8 else (0,))
        for e in eps:
            if e == 0: put(L_G, row, Uc, True)
            else:
                dst = (P0, P1)[row & 1]
                cmul(dst, Uc, {2: Z2, 4: Z4, 6: Z6}[e]); put(L_G, row, dst, True)
            row += 1
    k.label('L_kg_done')
    k.waitall(vm=False)
    I('s_barrier')
    k.stamp()
    I(f'v_mul_u32_u24 v12, 528, v3\nv_lshlrev_b32 v13, 4, v4\nv_add_u32 v12, v12, v13')
    I(f's_mul_i32 s52, s33, {16*528}\ns_add_u32 s52, s52, {L_G}\nv_add_u32 v13, s52, v12')
    I('s_cmp_lt_u32 s33, 3\ns_cbranch_scc0 L_nomm')
    at = []
    for s in range(8):
        I(f'ds_read_b128 {vr(32+8*s,4)}, v13 offset:{s*64}\nds_read_b128 {vr(36+8*s,4)}, v12 offset:{L_F + s*64}')
    for s in range(8):
        I(f's_waitcnt lgkmcnt({14 - 2*s})')
        I(f'v_mfma_f32_16x16x32_bf16 v[96:99], {vr(32+8*s,4)}, {vr(36+8*s,4)}, {"0" if s == 0 else "v[96:99]"}')
    k.label('L_nomm')
    I('s_barrier')
    I('v_lshlrev_b32 v9, 4, v3')
    I('s_cmp_lt_u32 s33, 3\ns_cbranch_scc0 L_notab')
    I('s_cmp_eq_u32 s33, 1\ns_cbranch_scc1 L_tab1\ns_cmp_eq_u32 s33, 2\ns_cbranch_scc1 L_tab2')
    def tput(addr, r, off):
        I(f'v_cvt_pk_bf16_f32 v{24+r}, v{96+r}, v{96+r}')
        I(f'ds_write_b16 v{addr}, v{24+r} offset:{TB + off}')
    I('v_lshrrev_b32 v14, 1, v4\nv_lshlrev_b32 v14, 8, v14\nv_and_b32 v15, 1, v4\nv_lshlrev_b32 v15, 3, v15\nv_add_u32 v14, v14, v15\nv_add_u32 v14, v14, v9')
    for r in range(4): tput(14, r, 2*r)
    I('s_branch L_notab')
    k.label('L_tab1')
    I('v_cmp_gt_u32 vcc, 2, v4\nv_lshlrev_b32 v14, 8, v4\nv_add_u32 v14, 512, v14\nv_lshlrev_b32 v15, 9, v4')
    I('v_cndmask_b32 v14, v15, v14, vcc\nv_add_u32 v14, v14, v9')
    for r in range(4):
        lo, hi = 4*r, 256*(r >> 1) + 8*(r & 1)
        I(f'v_mov_b32 v15, {hi}\nv_cndmask_b32 v15, v15, {lo}, vcc\nv_add_u32 v15, v15, v14')
        tput(15, r, 0)
    I('s_branch L_notab')
    k.label('L_tab2')
    for r in range(4):
        I(f'v_lshlrev_b32 v14, 2, v4\nv_add_u32 v14, {8 + r}, v14\nv_min_u32 v14, 17, v14\nv_lshlrev_b32 v14, 8, v14\nv_add_u32 v14, v14, v9')
        tput(14, r, 0)
    k.label('L_notab')
    I(f'v_mov_b32 v14, {L_F}\nv_mov_b32 v24, 0\nv_mov_b32 v25, 0\nv_cmp_eq_u32 vcc, 192, v0\ns_nop 1\ns_and_saveexec_b64 s[42:43], vcc')
    I('ds_write_b64 v14, v[24:25]')
    I('s_mov_b64 exec, s[42:43]')
    I('s_waitcnt lgkmcnt(0)\ns_barrier')
    k.stamp()
    I('v_lshlrev_b32 v14, 4, v0\nv_add_u32 v14, 14, v14\nv_cvt_f32_i32 v14, v14')
    I(f'v_mov_b32 v15, {TB}')
    X = 32
    for j in range(0, 8, 2):
        I(f'v_add_f32 v24, {f2u(-2.0*j):#x}, v14' if j else 'v_mov_b32 v24, v14')
        I(f'v_add_f32 v25, {f2u(-2.0*(j+1)):#x}, v14')
        I('v_cvt_pk_bf16_f32 v26, v24, v25\nv_lshlrev_b32 v24, 16, v26\nv_and_b32 v25, 0xffff0000, v26')
        I('v_cvt_i32_f32 v24, v24\nv_cvt_i32_f32 v25, v25\nv_add_u32 v24, v24, v15\nv_add_u32 v25, v25, v15')
        I(f'ds_read_u16 v{X+j}, v24')
        I(f'ds_read_u16 v{X+j+1}, v25')
    I(f's_mul_i32 s40, s2, {KG_PITCH}\ns_add_u32 s40, s40, {OFF_KG}')
    I('v_sub_u32 v9, 255, v0\nv_lshlrev_b32 v9, 4, v9')
    for r in range(4): I(f'v_mov_b32 v{44+r}, 0')
    I('v_lshlrev_b32 v12, 4, v0\nv_cmp_gt_u32 vcc, 16, v0')
    I('s_waitcnt lgkmcnt(0)')
    for d in range(4): I(f'v_lshl_or_b32 v{48+d}, v{X+2*d+1}, 16, v{X+2*d}')
    I('buffer_store_dwordx4 v[48:51], v9, s[4:7], s40 offen')
    I('s_and_saveexec_b64 s[42:43], vcc\ns_add_u32 s41, s40, 4096')
    I('buffer_store_dwordx4 v[44:47], v12, s[4:7], s41 offen')
    I('s_mov_b64 exec, s[42:43]')
    k.stamp()
    k.label('L_prep_fin')
    I('s_waitcnt vmcnt(0)')
    k.st_n = 4; k.stamp()
    if stamps: I('s_mov_b32 s2, s59')
    k.stamp_store('s[4:7]', nmax=5)
    k.label('L_prep_end')
    I('s_endpgm')
    for e in hazards(k.lines, 'prep'): print('HAZARD', e)
    return k, LDS_BYTES
if __name__ == '__main__':
    k, lds = build(); print(len(k.lines), lds)
```

```python
from asmlib import Kern, hazards
from layout import *
import struct
def vr(a, n): return f'v[{a}:{a+n-1}]'
KC = 4416
L_H = 28672
L_U = L_H + 48 * 160
LDS_CH = L_U + 32 * 160
LDS_BYTES = 3 * LDS_CH
XT_PITCH = 4096

def build(stamps=False, wpf=True, xmap=True, no_mfma=False, no_a=False, no_b=False, prio=True, sent=False, wpf_early=False, ulate=True):
    NCH = 3
    LB = 's61'
    k = Kern('conv_kernel', 128, 96)
    I = k.I
    k.stamp_init(stamps, 64, OFF_DBG + 0x10000)
    I('s_cmp_ge_u32 s2, 192\ns_cbranch_scc1 L_conv_end')
    I('s_mov_b32 s55, s2')
    if xmap: I('s_and_b32 s34, s2, 7\ns_mul_i32 s34, s34, 24\ns_lshr_b32 s2, s2, 3\ns_add_u32 s2, s2, s34')
    I('s_load_dwordx2 s[20:21], s[0:1], 48\ns_load_dwordx2 s[26:27], s[0:1], 128')
    I('s_cmp_lt_u32 s55, 96\ns_cselect_b32 s54, 64, 80\ns_load_dwordx2 s[56:57], s[0:1], s54')
    k.stamp()
    I('v_mov_b32 v42, v0\nv_lshrrev_b32 v2, 6, v0\nv_and_b32 v0, 255, v0\nv_and_b32 v1, 63, v0\nv_and_b32 v3, 15, v1\nv_lshrrev_b32 v4, 4, v1')
    I('v_readfirstlane_b32 s33, v2')
    I(f's_nop 3\ns_lshr_b32 s34, s33, 2\ns_and_b32 s33, s33, 3\ns_mul_i32 s2, s2, 3\ns_add_u32 s2, s2, s34\ns_mul_i32 {LB}, s34, {LDS_CH}')
    I('v_lshlrev_b32 v5, 4, v0')
    I('s_waitcnt lgkmcnt(0)')
    I(f's_mov_b32 s4, s26\ns_mov_b32 s5, s27\ns_mov_b32 s6, {WS_BYTES}\ns_mov_b32 s7, 0x20000')
    I('s_and_b32 s34, s2, 0xfffffffe\ns_lshl_b32 s34, s34, 1\ns_load_dword s35, s[20:21], s34')
    I('v_lshrrev_b32 v6, 2, v0\nv_mul_u32_u24 v6, 36864, v6\nv_and_b32 v7, 3, v0\nv_lshlrev_b32 v7, 4, v7\nv_add_u32 v30, v6, v7')
    I(f's_lshl_b32 s36, s2, 6\ns_add_u32 s37, s36, {OFF_NT}\ns_add_u32 s36, s36, {OFF_UT}')
    tn = k.vm('buffer_load_dwordx4 v[16:19], v30, s[4:7], s37 offen')
    I(f's_mul_i32 s38, s2, {KG_PITCH}\ns_add_u32 s38, s38, {OFF_KG}')
    k.vm('buffer_load_dwordx4 v[24:27], v5, s[4:7], s38 offen')
    tkk = k.vm('buffer_load_dwordx2 v[28:29], v5, s[4:7], s38 offen offset:16')
    if not ulate: tu = k.vm('buffer_load_dwordx4 v[20:23], v30, s[4:7], s36 offen')
    I(f'v_mul_u32_u24 v6, 2304, v1\ns_lshl_b32 s39, s2, 2\ns_add_u32 s39, s39, {OFF_MODP}')
    tm = None
    I('v_cmp_gt_u32 vcc, 6, v1\ns_nop 1\ns_and_saveexec_b64 s[42:43], vcc')
    for p in range(9):
        I(f's_add_u32 s40, s39, {p*13824}')
        tm = k.vm(f'buffer_load_dword v{32+p}, v6, s[4:7], s40 offen')
    I('s_mov_b64 exec, s[42:43]')
    def do_wpf():
        I('s_mov_b32 s58, 5308416\ns_mov_b32 s59, 0x20000')
        I('s_cmp_lt_u32 s55, 96\ns_cselect_b32 s54, 0, 96\ns_sub_u32 s54, s55, s54\ns_mul_i32 s54, s54, 55296')
        I('v_lshlrev_b32 v10, 7, v42\nv_add_u32 v10, s54, v10\nv_cmp_gt_u32 vcc, 432, v42\ns_nop 1\nv_cndmask_b32 v10, -16, v10, vcc')
        k.vm('buffer_load_dword v31, v10, s[56:59], 0 offen')
    if wpf and wpf_early: do_wpf()
    I(f's_cmp_lt_u32 s2, 32\ns_cbranch_scc0 L_conv_nofl\ns_lshl_b32 s40, s2, 7\ns_add_u32 s40, s40, {OFF_FLAG}')
    I('v_mov_b32 v44, 0\nv_lshlrev_b32 v7, 2, v0\nv_cmp_gt_u32 vcc, 32, v0\ns_nop 1\ns_and_saveexec_b64 s[42:43], vcc')
    I('buffer_store_dword v44, v7, s[4:7], s40 offen')
    I('s_mov_b64 exec, s[42:43]')
    k.label('L_conv_nofl')
    for r in range(4): I(f'v_mov_b32 v{44+r}, 0')
    I(f'v_cmp_gt_u32 vcc, 160, v0\nv_add_u32 v7, {L_H}, v5\nv_add_u32 v7, {LB}, v7\ns_and_saveexec_b64 s[42:43], vcc')
    k.ds('ds_write_b128 v7, v[44:47]')
    I('s_mov_b64 exec, s[42:43]')
    I(f'v_lshrrev_b32 v7, 3, v0\nv_mul_u32_u24 v7, {KC}, v7\nv_and_b32 v8, 7, v0\nv_lshlrev_b32 v8, 4, v8\nv_add_u32 v7, v7, v8\nv_add_u32 v7, 4096, v7\nv_add_u32 v7, {LB}, v7\nv_add_u32 v43, {LB}, v5')
    I('v_cmp_gt_u32 vcc, 32, v0\ns_nop 1\ns_and_saveexec_b64 s[42:43], vcc')
    k.ds('ds_write_b128 v7, v[44:47]')
    I('s_mov_b64 exec, s[42:43]')
    k.wait(tkk)
    k.stamp()
    W = [24, 25, 26, 27, 28, 29]
    k.ds('ds_write_b128 v43, v[24:27]')
    for j in range(4): I(f'v_alignbit_b32 v{48+j}, v{W[j+1]}, v{W[j]}, 16')
    k.ds(f'ds_write_b128 v43, v[48:51] offset:{KC}')
    for j in range(4): I(f'v_mov_b32 v{52+j}, v{W[j+1]}')
    k.ds(f'ds_write_b128 v43, v[52:55] offset:{2*KC}')
    for j in range(4): I(f'v_alignbit_b32 v{56+j}, v{W[j+2]}, v{W[j+1]}, 16')
    k.ds(f'ds_write_b128 v43, v[56:59] offset:{3*KC}')
    k.wait(tm)
    k.stamp()
    for p in range(1, 9): I(f'v_add_f32 v32, v32, v{32+p}')
    I('v_cvt_pk_bf16_f32 v32, v32, v32\nv_and_b32 v32, 0xffff0000, v32')
    I('v_add_f32 v33, 1.0, v32\nv_cvt_pk_bf16_f32 v33, v33, v33\nv_and_b32 v33, 0xffff0000, v33')
    I('v_cmp_eq_u32 vcc, 1, v1\nv_cmp_eq_u32 s[42:43], 4, v1\ns_nop 1\ns_or_b64 vcc, vcc, s[42:43]\ns_nop 1')
    I('v_cndmask_b32 v32, v32, v33, vcc\ns_nop 1')
    I('v_readlane_b32 s44, v32, 0\nv_readlane_b32 s45, v32, 1\nv_readlane_b32 s46, v32, 2')
    I('s_cmp_eq_u32 s33, 0\ns_cbranch_scc0 L_conv_nomod')
    I('v_sub_u32 v34, 8, v1\nv_cmp_gt_u32 vcc, 3, v1\ns_nop 1\nv_cndmask_b32 v34, v34, v1, vcc')
    I(f'v_mul_u32_u24 v34, 2304, v34\ns_lshl_b32 s40, s2, 2\ns_add_u32 s40, s40, {OFF_MODF}')
    I('v_cmp_gt_u32 vcc, 6, v1\ns_nop 1\ns_and_saveexec_b64 s[42:43], vcc')
    I('buffer_store_dword v32, v34, s[4:7], s40 offen')
    I('s_mov_b64 exec, s[42:43]')
    k.label('L_conv_nomod')
    k.wait(tn)
    k.stamp()
    I('v_mov_b32 v38, s45\nv_mov_b32 v39, s44')
    for j in range(4):
        I(f'v_lshlrev_b32 v36, 16, v{16+j}\nv_and_b32 v37, 0xffff0000, v{16+j}')
        I(f'v_fma_f32 v36, v36, v38, v39\nv_fma_f32 v37, v37, v38, v39\nv_cvt_pk_bf16_f32 v{16+j}, v36, v37')
    I(f'v_lshrrev_b32 v7, 3, v0\nv_mul_u32_u24 v7, 160, v7\nv_and_b32 v8, 7, v0\nv_lshlrev_b32 v8, 4, v8\nv_add_u32 v7, v7, v8\nv_add_u32 v7, {LB}, v7')
    k.ds(f'ds_write_b128 v7, v[16:19] offset:{L_H + 16*160}')
    if not ulate:
        k.wait(tu)
        k.ds(f'ds_write_b128 v7, v[20:23] offset:{L_U}')
    else: I('v_mov_b32 v29, v7')
    k.stamp()
    VA, VB = 8, 9
    I('v_sub_u32 v10, 3, v3\nv_and_b32 v10, 3, v10')
    I(f'v_mul_u32_u24 v11, {KC}, v10\nv_lshlrev_b32 v12, 3, v4\nv_sub_u32 v12, v12, v3\nv_sub_u32 v12, v12, v10\nv_add_u32 v12, 2047, v12\nv_lshlrev_b32 v12, 1, v12\nv_add_u32 v14, v11, v12\nv_add_u32 v14, {LB}, v14')
    I(f'v_mul_u32_u24 v11, 160, v3\nv_lshlrev_b32 v12, 4, v4\nv_add_u32 v11, v11, v12\nv_add_u32 v15, {L_H + 16*160}, v11\nv_add_u32 v15, {LB}, v15')
    I('s_mul_i32 s48, s33, 6\ns_mov_b32 s49, 3\ns_mov_b32 s50, 16\ns_mov_b32 s51, 0')
    I('s_cmp_eq_u32 s33, 2\ns_cselect_b32 s49, 2, s49\ns_cselect_b32 s51, 2, s51')
    I('s_cmp_eq_u32 s33, 3\ns_cselect_b32 s49, 0, s49\ns_cselect_b32 s50, 20, s50\ns_cselect_b32 s51, 6, s51')
    ACC = (64, 80); AF = 96
    BF = 32
    for r in range(32): I(f'v_mov_b32 v{64+r}, 0')
    k.waitall()
    I('s_barrier')
    k.stamp()
    if sent:
        for r in range(4): I(f'v_mov_b32 v{16+r}, -1')
        for rnd in range(2):
            I(f's_mul_i32 s40, s55, 768\ns_add_u32 s40, s40, {rnd*147456}\nv_add_u32 v20, s40, v42')
            I(f'v_lshrrev_b32 v21, 10, v20\nv_mul_u32_u24 v21, 73728, v21\nv_and_b32 v22, 1023, v20\nv_lshlrev_b32 v22, 4, v22\nv_add_u32 v21, v21, v22')
            I('v_cmp_gt_u32 vcc, 262144, v20\ns_nop 1' if False else f's_mov_b32 s41, 262144\nv_cmp_gt_u32 vcc, s41, v20\ns_nop 1')
            I('v_cndmask_b32 v21, -16, v21, vcc')
            I(f's_mov_b32 s41, {OFF_PART + 7*8192}')
            I('buffer_store_dwordx4 v[16:19], v21, s[4:7], s41 offen sc1')
        I('s_nop 1')
    if ulate: tu = k.vm('buffer_load_dwordx4 v[20:23], v30, s[4:7], s36 offen')
    if wpf and not wpf_early: do_wpf()
    def a_read(slot, o):
        off = 32 * (3 - o)
        if no_a and a_read.inloop: return None
        k.ds(f'ds_read_b64 {vr(AF+4*slot,2)}, v{VA} offset:{off}')
        return k.ds(f'ds_read_b64 {vr(AF+4*slot+2,2)}, v{VA} offset:{off+8}')
    a_read.inloop = False
    def b_read(buf, j, s, dual):
        if no_b and a_read.inloop: return None
        off = 64 * s + (2560 * j if dual else 0)
        return k.ds(f'ds_read_b128 {vr(BF+16*buf+8*j+4*s,4)}, v{VB} offset:{off}')
    def segment(name, dual, s_d0, s_n):
        js = (0, 1) if dual else (1,)
        I(f's_cmp_eq_u32 s{s_n}, 0\ns_cbranch_scc1 L_{name}_skip')
        I(f's_lshl_b32 s52, s{s_d0}, 7\ns_add_u32 s52, s52, 96\nv_subrev_u32 v{VA}, s52, v14')
        I(f's_mul_i32 s52, s{s_d0}, 160\ns_sub_u32 s52, {0 if dual else 2560}, s52\nv_add_u32 v{VB}, s52, v15')
        tok = {}
        for o in (-2, -1):
            slot = o % 8
            k.ds(f'ds_read_b64 {vr(AF+4*slot,2)}, v{VA} offset:{32*(3-o)}')
            tok[slot] = k.ds(f'ds_read_b64 {vr(AF+4*slot+2,2)}, v{VA} offset:{32*(3-o)+8}')
        for o in range(4): tok[o] = a_read(o, o)
        btok = {0: None, 1: None}
        for j in js:
            for s in range(2): btok[0] = b_read(0, j, s, dual)
        k.waitall(vm=False)
        state = dict(tok=tok, btok=btok)
        def unit(par):
            sl = lambda o: (4 * par + o) % 8
            nb = 1 - par
            def mm(j, i, s):
                if not no_mfma: I(f'v_mfma_f32_16x16x32_bf16 {vr(ACC[j]+4*i,4)}, {vr(AF+4*sl(i-2*s),4)}, {vr(BF+16*par+8*j+4*s,4)}, {vr(ACC[j]+4*i,4)}')
            def an(o): state['tok'][sl(4 + o)] = a_read(sl(4 + o), o)
            def bn(j, s): state['btok'][nb] = b_read(nb, j, s, dual)
            k.wait(state['btok'][par], *[state['tok'][sl(o)] for o in (-2, -1, 0, 1)])
            t2 = state['tok'][sl(2)]; t3 = state['tok'][sl(3)]
            if dual:
                mm(0, 0, 1)
                I(f'v_subrev_u32 v{VA}, 128, v{VA}\nv_subrev_u32 v{VB}, 160, v{VB}')
                mm(1, 0, 1); bn(0, 0)
                mm(0, 1, 1); bn(0, 1)
                mm(1, 1, 1); bn(1, 0)
                mm(0, 2, 1); bn(1, 1)
                mm(1, 2, 1); an(0)
                mm(0, 3, 1)
                mm(1, 3, 1); an(1)
                mm(0, 0, 0)
                mm(1, 0, 0); an(2)
                mm(0, 1, 0)
                mm(1, 1, 0)
                k.wait(t2, t3)
                mm(0, 2, 0); an(3)
                mm(1, 2, 0)
                mm(0, 3, 0)
                mm(1, 3, 0)
            else:
                mm(1, 0, 1)
                I(f'v_subrev_u32 v{VA}, 128, v{VA}\nv_subrev_u32 v{VB}, 160, v{VB}')
                mm(1, 1, 1); bn(1, 0)
                mm(1, 2, 1); bn(1, 1)
                mm(1, 3, 1); an(0)
                mm(1, 0, 0); an(1)
                mm(1, 1, 0); an(2)
                k.wait(t2, t3)
                mm(1, 2, 0); an(3)
                mm(1, 3, 0)
        def body():
            a_read.inloop = True
            unit(0); unit(1)
            a_read.inloop = False
        save = len(k.lines)
        body(); del k.lines[save:]
        body(); second = k.lines[save:]; del k.lines[save:]
        k.label(f'L_{name}_loop')
        st = len(k.lines)
        body()
        assert k.lines[st:] == second
        for e in hazards(second + second, name): print('HAZARD', e)
        I(f's_sub_u32 s{s_n}, s{s_n}, 1\ns_cmp_lg_u32 s{s_n}, 0\ns_cbranch_scc1 L_{name}_loop')
        k.waitall(vm=False)
        k.label(f'L_{name}_skip')
    segment('segA', True, 48, 49)
    segment('segB', False, 50, 51)
    if ulate:
        k.wait(tu)
        I(f'ds_write_b128 v29, v[20:23] offset:{L_U}')
    k.stamp()
    I('s_barrier')
    k.stamp()
    I(f'v_lshlrev_b32 v10, 4, v1\nv_add_u32 v10, {LB}, v10')
    I('s_lshl_b32 s52, s33, 12\nv_add_u32 v11, s52, v10')
    I('s_cmp_lt_u32 s33, 3\ns_cbranch_scc0 L_conv_noA\ns_nop 4')
    for i in range(4): I(f'ds_write_b128 v11, {vr(ACC[0]+4*i,4)} offset:{i*1024}')
    k.label('L_conv_noA')
    I('s_nop 4')
    for i in range(4): I(f'ds_write_b128 v11, {vr(ACC[1]+4*i,4)} offset:{3*4096 + i*1024}')
    I('s_waitcnt lgkmcnt(0)\ns_barrier')
    I('s_lshl_b32 s52, s33, 10\nv_add_u32 v11, s52, v10')
    for s_ in range(7): I(f'ds_read_b128 {vr(64+4*s_,4)}, v11 offset:{s_*4096}')
    I(f'v_mul_u32_u24 v12, 160, v3\nv_lshlrev_b32 v13, 3, v4\nv_add_u32 v12, v12, v13\ns_lshl_b32 s52, s33, 5\ns_add_u32 s52, s52, {LB}\nv_add_u32 v12, s52, v12')
    for j in range(2): I(f'ds_read_b64 {vr(96+2*j,2)}, v12 offset:{L_H + 16*160 + j*16*160}')
    for j in range(2): I(f'ds_read_b64 {vr(100+2*j,2)}, v12 offset:{L_U + j*16*160}')
    I('s_bitcmp1_b32 s2, 0\ns_cselect_b32 s53, 0, 16\ns_lshl_b32 s35, s35, s53\ns_and_b32 s35, s35, 0xffff0000')
    I('v_mov_b32 v22, s35\nv_mov_b32 v23, s46')
    I('v_mul_u32_u24 v13, 73728, v3\nv_lshlrev_b32 v12, 3, v4\nv_add_u32 v13, v13, v12\ns_lshl_b32 s52, s33, 5\nv_add_u32 v13, s52, v13')
    I(f's_lshl_b32 s52, s2, 7\ns_add_u32 s52, s52, {OFF_X1T}\ns_add_u32 s53, s52, {16*73728}')
    I('s_waitcnt lgkmcnt(0)')
    for r in range(4):
        I(f'v_add_f32 v{64+r}, v{64+r}, v{68+r}\nv_add_f32 v{76+r}, v{76+r}, v{80+r}\nv_add_f32 v{84+r}, v{84+r}, v{88+r}')
    for r in range(4):
        I(f'v_add_f32 v{64+r}, v{64+r}, v{72+r}\nv_add_f32 v{76+r}, v{76+r}, v{84+r}')
    for j in range(2):
        y = (64, 76)[j]
        for d in range(2):
            hreg, ureg = 96 + 2*j + d, 100 + 2*j + d
            y0, y1 = y + 2*d, y + 2*d + 1
            I(f'v_lshlrev_b32 v17, 16, v{hreg}\nv_and_b32 v18, 0xffff0000, v{hreg}\nv_lshlrev_b32 v20, 16, v{ureg}\nv_and_b32 v21, 0xffff0000, v{ureg}')
            I(f'v_fma_f32 v17, v17, v22, v{y0}\nv_fma_f32 v18, v18, v22, v{y1}')
            I(f'v_fma_f32 v17, v17, v23, v20\nv_fma_f32 v18, v18, v23, v21\nv_cvt_pk_bf16_f32 v{24+2*j+d}, v17, v18')
        I(f'buffer_store_dwordx2 {vr(24+2*j,2)}, v13, s[4:7], s{52+j} offen')
    k.stamp()
    I('s_waitcnt vmcnt(0)')
    k.stamp()
    k.stamp_store('s[4:7]', idreg='s55')
    k.label('L_conv_end')
    I('s_endpgm')
    for e in hazards(k.lines, 'conv'): print('HAZARD', e)
    return k, LDS_BYTES
if __name__ == '__main__':
    k, lds = build(); print(len(k.lines), lds)
```

```python
from asmlib import Kern, hazards
from layout import *
import math

SLOT = 24576
PAR_G2 = 6 * SLOT
PAR_B1 = PAR_G2 + 4608
STATS1 = PAR_G2 + 6912
STATS2 = STATS1 + 1024
XS = PAR_G2
LDS_BYTES = max(STATS2 + 1024, XS + 9216)


V_TID, V_LANE = 0, 1
V_T0 = 2
V_DMA, V_DMA2 = 3, 4
V_RD = (5, 6, 7)
V_BIAS, V_ST, V_C1, V_C2, V_FR, V_HW = 8, 9, 10, 11, 12, 13
V_TL, V_Q = 14, 15
V_TMP = 16
V_G = 24
V_B4 = 36
V_PK = 40
V_A = 44
V_ACC = (56, 64)
V_H = 76
V_BF = 112
S_WS, S_W1, S_W2, S_CUR, S_B1 = 4, 8, 12, 16, 28
S_W, S_M, S_P, S_IT, S_OFF, S_D, S_G2, S_B, S_WK, S_T, S_ST, S_STN, S_IDX = 33, 34, 35, 36, 37, 38, 39, 40, 41, 42, 43, 44, 45

def vr(a, n): return f'v[{a}:{a+n-1}]'
def sr(a, n): return f's[{a}:{a+n-1}]'

def build(store_flags='', prefetch=True, stamps=False, no_gelu=False, no_dma=False, no_bar=False, no_mfma=False, no_tr=False, prio=None, nF=2, LA=2, inter=False, stagger=False, pf_late=True, fine=False, classes=False, lean=True, wts=(1.0, 1.0), cls_prio=None, ikr=False, pk=False, dmaf='', dbgout=False, sent=False, rot=False, wlate=False):
    k = Kern('mlp_kernel', 256, 96)
    I = k.I
    nst = [0]
    def stamp():
        if stamps:
            I(f's_memrealtime s[{64+2*nst[0]}:{65+2*nst[0]}]')
            if not fine: I(f's_memtime s[{80+2*nst[0]}:{81+2*nst[0]}]')
            nst[0] += 1
    I('s_cmp_ge_u32 s2, 256\ns_cbranch_scc1 L_mlp_end')
    I('s_load_dwordx2 s[20:21], s[0:1], 64\ns_load_dwordx2 s[22:23], s[0:1], 72\ns_load_dwordx2 s[24:25], s[0:1], 80\ns_load_dwordx2 s[26:27], s[0:1], 128')
    if ikr:
        store_flags = 'sc1'
        pass
    stamp()
    I(f'v_and_b32 v{V_LANE}, 63, v0\nv_lshrrev_b32 v{V_T0}, 6, v0')
    lg = {1: 0, 2: 1, 4: 2, 8: 3}[nF]
    I(f's_and_b32 s46, s2, 7\ns_lshr_b32 s47, s2, 3')
    I(f's_and_b32 s{S_P}, s46, {8//nF - 1}\ns_lshl_b32 s{S_P}, s{S_P}, {lg}\ns_and_b32 s48, s47, {nF - 1}\ns_add_u32 s{S_P}, s{S_P}, s48')
    I(f's_lshr_b32 s{S_M}, s46, {3 - lg}\ns_mul_i32 s{S_M}, s{S_M}, {32//nF}\ns_lshr_b32 s48, s47, {lg}\ns_add_u32 s{S_M}, s{S_M}, s48')
    I(f'v_readfirstlane_b32 s{S_W}, v{V_T0}')
    I(f'v_and_b32 v{V_TL}, 15, v{V_LANE}\nv_lshrrev_b32 v{V_Q}, 4, v{V_LANE}')
    t = V_TMP
    I(f'v_lshrrev_b32 v{t}, 3, v{V_LANE}')
    I(f'v_and_b32 v{t+1}, 7, v{V_LANE}')
    I(f'v_and_b32 v{t+2}, 2, v{t}')
    I(f's_and_b32 s46, s{S_W}, 1\ns_lshl_b32 s46, s46, 2')
    I(f'v_or_b32 v{t+2}, s46, v{t+2}')
    I(f'v_xor_b32 v{t+1}, v{t+1}, v{t+2}')
    I(f'v_lshlrev_b32 v{t+1}, 4, v{t+1}')
    I(f's_lshl_b32 s47, s{S_W}, 3')
    I(f'v_add_u32 v{t}, s47, v{t}')
    I(f'v_lshlrev_b32 v{t+3}, 7, v{t}\nv_add_u32 v{V_T0}, v{t+3}, v{t+1}')
    I(f'v_mul_u32_u24 v{t+3}, 9216, v{t}\nv_add_u32 v{V_DMA}, v{t+3}, v{t+1}')
    I(f'v_mul_u32_u24 v{t+3}, 1152, v{t}\nv_add_u32 v{V_DMA2}, v{t+3}, v{t+1}')
    I(f's_lshl_b32 s{S_WK}, s{S_W}, 10')
    I('s_waitcnt lgkmcnt(0)')
    for base, ptr, size in ((S_WS, 26, WS_BYTES), (S_W1, 20, 5308416), (S_W2, 24, 5308416), (S_CUR, 20, 5308416), (S_B1, 22, 9216)):
        I(f's_mov_b32 s{base}, s{ptr}\ns_mov_b32 s{base+1}, s{ptr+1}\ns_mov_b32 s{base+2}, {size}\ns_mov_b32 s{base+3}, 0x20000')
    I(f's_mul_i32 s46, s{S_M}, 73728\ns_add_u32 s46, s46, {OFF_X1T}')
    xt = None
    for b in range(9):
        I(f's_add_u32 m0, s{S_WK}, {b*8192}')
        I(f's_add_u32 s47, s46, {b*64*128}')
        xt = k.vm(f'buffer_load_dwordx4 v{V_T0}, {sr(S_WS,4)}, s47 offen nt lds')
    I(f'v_lshlrev_b32 v{t}, 4, v0')
    I(f's_mov_b32 s46, {OFF_MODF + 4*2304}')
    pa = k.vm(f'buffer_load_dwordx4 {vr(V_G,4)}, v{t}, {sr(S_WS,4)}, s46 offen')
    I(f'v_subrev_u32 v{t+1}, 288, v0\nv_lshlrev_b32 v{t+1}, 3, v{t+1}')
    I(f's_mul_i32 s46, s{S_P}, 1152')
    I(f'v_cmp_gt_u32 vcc, 288, v0')
    I(f'v_add_u32 v{t+1}, s46, v{t+1}\ns_nop 0')
    I(f'v_cndmask_b32 v{t+1}, v{t+1}, -16, vcc')
    pb = k.vm(f'buffer_load_dwordx2 {vr(V_G+4,2)}, v{t+1}, {sr(S_B1,4)}, 0 offen')
    def do_prefetch():
        G = 32 // nF; per = 5184 // G; rows = 576 // G
        I(f's_and_b32 s60, s{S_M}, {G - 1}')
        for rep in range((per + 511) // 512):
            I(f'v_add_u32 v{t+4}, {rep*512}, v0')
            I(f'v_mul_u32_u24 v{t+2}, 7282, v{t+4}\nv_lshrrev_b32 v{t+2}, 16, v{t+2}')
            I(f'v_mul_u32_u24 v{t+3}, 9, v{t+2}\nv_sub_u32 v{t+3}, v{t+4}, v{t+3}')
            I(f's_mul_i32 s61, s60, {rows}\nv_add_u32 v{t+2}, s61, v{t+2}')
            I(f'v_mul_u32_u24 v{t+2}, 9216, v{t+2}\nv_lshlrev_b32 v{t+3}, 7, v{t+3}')
            I(f'v_add_u32 v{t+2}, v{t+2}, v{t+3}')
            I(f's_mul_i32 s61, s{S_P}, 1152\nv_add_u32 v{t+2}, s61, v{t+2}')
            I(f'v_cmp_gt_u32 vcc, {per}, v{t+4}\ns_nop 1\nv_cndmask_b32 v{t+2}, -16, v{t+2}, vcc')
            k.vm(f'buffer_load_dword v{V_H-4}, v{t+2}, {sr(S_W1,4)}, 0 offen')
            I(f'v_lshlrev_b32 v{t+2}, 7, v{t+4}')
            I(f's_mul_i32 s61, s{S_P}, 663552\ns_mul_i32 s62, s60, {per*128}\ns_add_u32 s61, s61, s62')
            I(f'v_add_u32 v{t+2}, s61, v{t+2}')
            I(f'v_cndmask_b32 v{t+2}, -16, v{t+2}, vcc')
            k.vm(f'buffer_load_dword v{V_H-3}, v{t+2}, {sr(S_W2,4)}, 0 offen')
    if prefetch and not pf_late: do_prefetch()
    D1, D2 = 192 * 9216, 192 * 1152
    I(f's_mul_i32 s{S_OFF}, s{S_P}, 1152\ns_mov_b32 s{S_D}, {D1}\ns_mov_b32 s{S_G2}, {(128 - 2*D1) & 0xffffffff}\ns_mov_b32 s{S_B}, {64*9216}')
    I(f's_mov_b32 s63, 0\ns_mov_b32 s60, 0\ns_mov_b32 s61, 15\ns_mov_b32 s62, s{S_OFF}')
    VD = (V_DMA, 22, 23)
    I(f'v_add_u32 v{VD[1]}, {64*9216}, v{V_DMA}\nv_add_u32 v{VD[2]}, {128*9216}, v{V_DMA}')
    def dma_m0(slot, b): I(f's_add_u32 m0, s{S_WK}, {slot*SLOT + b*8192}')
    def dma_go(b, kc):
        tok = k.vm(f'buffer_load_dwordx4 v{VD[b]}, {sr(S_CUR,4)}, s{S_OFF} offen {dmaf} lds')
        if b == 2:
            if kc == 2:
                I(f's_add_u32 s63, s63, 1\ns_add_u32 s{S_T}, s63, s60\ns_and_b32 s{S_T}, s{S_T}, s61\ns_lshl_b32 s{S_T}, s{S_T}, 7\ns_add_u32 s{S_OFF}, s62, s{S_T}')
            else: I(f's_add_u32 s{S_OFF}, s{S_OFF}, s{S_D}')
        dma_go.last = tok
        return tok
    def dma_chunk(slot, kc):
        tok = None
        for b in range(3):
            dma_m0(slot, b); I('s_nop 0'); tok = dma_go(b, kc)
        return tok
    if not wlate: c0 = dma_chunk(3, 0); c1 = dma_chunk(4, 1); c2 = dma_chunk(5, 2)
    I(f'v_lshrrev_b32 v{t}, 2, v{V_TL}')
    I(f'v_and_b32 v{t+1}, 3, v{V_LANE}')
    I(f'v_lshlrev_b32 v{t+2}, 3, v{V_Q}\nv_add_u32 v{t+2}, v{t+2}, v{t}\nv_lshlrev_b32 v{t+2}, 7, v{t+2}')
    I(f'v_and_b32 v{t+3}, 2, v{t}')
    I(f'v_and_b32 v{t+4}, 1, v{V_Q}\nv_lshlrev_b32 v{t+4}, 2, v{t+4}\nv_or_b32 v{t+3}, v{t+3}, v{t+4}')
    I(f's_and_b32 s46, s{S_W}, 3\ns_lshl_b32 s46, s46, 1')
    I(f'v_lshrrev_b32 v{t+4}, 1, v{t+1}\nv_add_u32 v{t+4}, s46, v{t+4}\nv_xor_b32 v{t+4}, v{t+4}, v{t+3}\nv_lshlrev_b32 v{t+4}, 4, v{t+4}')
    I(f'v_and_b32 v{t+1}, 1, v{t+1}\nv_lshlrev_b32 v{t+1}, 3, v{t+1}')
    I(f'v_add_u32 v{t+2}, v{t+2}, v{t+4}\nv_add_u32 v{V_RD[0]}, v{t+2}, v{t+1}')
    I(f'v_add_u32 v{V_RD[1]}, {2*SLOT}, v{V_RD[0]}\nv_add_u32 v{V_RD[2]}, {4*SLOT}, v{V_RD[0]}')
    k.wait(pb)
    I(f'v_lshlrev_b32 v{V_G+8}, 16, v{V_G+4}\nv_and_b32 v{V_G+9}, 0xffff0000, v{V_G+4}\nv_lshlrev_b32 v{V_G+10}, 16, v{V_G+5}\nv_and_b32 v{V_G+11}, 0xffff0000, v{V_G+5}')
    I(f'v_cmp_gt_u32 vcc, 288, v0\ns_nop 1')
    for r in range(4): I(f'v_cndmask_b32 v{V_G+r}, v{V_G+8+r}, v{V_G+r}, vcc')
    I(f'v_lshlrev_b32 v{t}, 4, v0\nv_add_u32 v{t}, {PAR_G2}, v{t}')
    I(f'v_cmp_gt_u32 vcc, 432, v0\ns_nop 1\ns_and_saveexec_b64 s[50:51], vcc')
    k.ds(f'ds_write_b128 v{t}, {vr(V_G,4)}')
    I('s_mov_b64 exec, s[50:51]')
    c1v = -2.0 * math.sqrt(2.0 / math.pi) * math.log2(math.e); c2v = c1v * 0.044715
    import struct
    f2u = lambda x: struct.unpack('<I', struct.pack('<f', x))[0]
    global V_C2
    V_C2 = 18 if pk else 11
    I(f'v_mov_b32 v{V_C1}, {f2u(c1v):#x}')
    I(f's_and_b32 s46, s{S_W}, 3\ns_lshr_b32 s47, s{S_W}, 2')
    I(f's_lshl_b32 s48, s46, 6\ns_add_u32 s48, s48, {PAR_B1}')
    I(f'v_lshlrev_b32 v{V_BIAS}, 4, v{V_Q}\nv_add_u32 v{V_BIAS}, s48, v{V_BIAS}')
    I(f's_mul_i32 s48, s47, 36864\nv_lshlrev_b32 v{V_FR}, 4, v{V_LANE}\nv_add_u32 v{V_FR}, s48, v{V_FR}')
    I(f's_lshr_b32 s48, s46, 1\ns_lshl_b32 s48, s48, 10\ns_mul_i32 s49, s47, 36864\ns_add_u32 s48, s48, s49')
    I(f's_and_b32 s49, s46, 1\ns_lshl_b32 s49, s49, 9\ns_add_u32 s48, s48, s49\ns_add_u32 s48, s48, {3*SLOT}')
    I(f'v_lshrrev_b32 v{t}, 1, v{V_Q}\nv_lshlrev_b32 v{t}, 8, v{t}\nv_lshlrev_b32 v{t+1}, 4, v{V_TL}\nv_add_u32 v{t}, v{t}, v{t+1}')
    I(f'v_and_b32 v{t+1}, 1, v{V_Q}\nv_lshlrev_b32 v{t+1}, 3, v{t+1}\nv_add_u32 v{t}, v{t}, v{t+1}\nv_add_u32 v{V_HW}, s48, v{t}')
    I(f'v_lshlrev_b32 v{V_ST}, 4, v{V_LANE}\nv_add_u32 v{V_ST}, s{S_WK}, v{V_ST}')
    I(f's_lshl_b32 s48, s{S_M}, 3\ns_add_u32 s48, s48, s{S_P}\ns_mul_i32 s{S_STN}, s48, 73728\ns_add_u32 s{S_STN}, s{S_STN}, {OFF_PART}\ns_mov_b32 s{S_ST}, 0x7ff00000')
    X, H2, PG = V_BF, V_BF + 36, V_BF + 108
    ONES, A1, A2 = V_A, V_ACC[0], V_ACC[0] + 4
    for r in range(4): I(f'v_mov_b32 v{ONES+r}, 0x3f803f80')
    I(f's_mul_i32 s48, s47, {9*4096}\nv_add_u32 v{t}, s48, v{V_RD[0]}')
    I(f'v_and_b32 v{t+1}, 3, v{V_TL}')
    I(f'v_cmp_eq_u32 s[52:53], 1, v{t+1}\nv_cmp_eq_u32 s[54:55], 2, v{t+1}\nv_cmp_eq_u32 s[56:57], 3, v{t+1}')
    I(f'v_lshrrev_b32 v{t+1}, 2, v{V_TL}\nv_cmp_eq_u32 s[58:59], v{t+1}, v{V_Q}')
    I(f's_lshl_b32 s48, s46, 8\nv_lshlrev_b32 v{t+2}, 4, v{V_TL}\nv_add_u32 v{t+2}, s48, v{t+2}\nv_add_u32 v{t+2}, {STATS1}, v{t+2}')
    I(f's_lshl_b32 s48, s47, 3\nv_add_u32 v{t+3}, s48, v{t+2}')
    k.wait(xt)
    k.waitall(vm=False)
    I('s_barrier')
    stamp()
    if prefetch and pf_late:
        save_t = [V_TMP + 2, V_TMP + 3]
        I(f'v_mov_b32 v{V_PK}, v{t+2}\nv_mov_b32 v{V_PK+1}, v{t+3}')
        do_prefetch()
        I(f'v_mov_b32 v{t+2}, v{V_PK}\nv_mov_b32 v{t+3}, v{V_PK+1}')
    if wlate: c0 = dma_chunk(3, 0); c1 = dma_chunk(4, 1); c2 = dma_chunk(5, 2)
    if rot:
        for r in range(4): I(f'v_mov_b32 v{V_G+r}, -1')
        I(f's_lshl_b32 s48, s{S_M}, 3\ns_add_u32 s48, s48, s{S_P}\ns_mul_i32 s48, s48, 73728\ns_add_u32 s48, s48, {OFF_PART}\nv_lshlrev_b32 v{V_G+4}, 4, v0')
        for st_ in (6, 7):
            I(f's_add_u32 s49, s{S_P}, {st_}\ns_and_b32 s49, s49, 7\ns_lshl_b32 s49, s49, 13\ns_add_u32 s49, s49, s48')
            k.vm(f'buffer_store_dwordx4 {vr(V_G,4)}, v{V_G+4}, {sr(S_WS,4)}, s49 offen sc1')
        I('s_nop 1')
    toks = []
    for u in range(9):
        k.ds(f'ds_read_b64_tr_b16 {vr(X+4*u,2)}, v{t} offset:{u*4096}')
        toks.append(k.ds(f'ds_read_b64_tr_b16 {vr(X+4*u+2,2)}, v{t} offset:{u*4096+512}'))
    def stats(src, area_off):
        for u in range(9):
            if src == X and area_off == 0: k.wait(toks[u])
            I(f'v_mfma_f32_16x16x32_bf16 {vr(A1,4)}, {vr(ONES,4)}, {vr(src+4*u,4)}, {"0" if u == 0 else vr(A1,4)}')
            I(f'v_mfma_f32_16x16x32_bf16 {vr(A2,4)}, {vr(src+4*u,4)}, {vr(src+4*u,4)}, {"0" if u == 0 else vr(A2,4)}')
    stats(X, 0)
    if not ikr:
        I(f's_cmp_eq_u32 s{S_W}, s{S_P}\ns_cbranch_scc0 L_mlp_nox1')
        I(f's_lshl_b32 s48, s{S_M}, 6\ns_lshl_b32 s49, s46, 4\ns_add_u32 s48, s48, s49')
        I(f'v_add_u32 v{t+4}, s48, v{V_TL}\nv_mul_u32_u24 v{t+4}, 1152, v{t+4}\nv_lshlrev_b32 v{t+5}, 4, v{V_Q}\nv_add_u32 v{t+4}, v{t+4}, v{t+5}')
        I(f's_mul_i32 s48, s47, 576\ns_add_u32 s48, s48, {OFF_X1R}')
        for u in range(9):
            I(f'buffer_store_dwordx4 {vr(X+4*u,4)}, v{t+4}, {sr(S_WS,4)}, s48 offen offset:{u*64}')
        k.label('L_mlp_nox1')
    def finish_stats(area):
        k.nop(8)
        I(f'v_cndmask_b32 v{V_G}, v{A2}, v{A2+1}, s[52:53]\nv_cndmask_b32 v{V_G}, v{V_G}, v{A2+2}, s[54:55]\nv_cndmask_b32 v{V_G+1}, v{V_G}, v{A2+3}, s[56:57]')
        I(f'v_mov_b32 v{V_G}, v{A1}')
        I('s_mov_b64 s[50:51], exec\ns_mov_b64 exec, s[58:59]')
        k.ds(f'ds_write_b64 v{t+3}, {vr(V_G,2)} offset:{area}')
        I('s_mov_b64 exec, s[50:51]')
        k.waitall(vm=False)
        I('s_barrier')
        if fine and not ikr: stamp()
        tk = k.ds(f'ds_read_b128 {vr(V_G+4,4)}, v{t+2} offset:{area}')
        return tk
    def stats_to_rm(tk):
        k.wait(tk)
        inv = f2u(1.0 / 576.0)
        I(f'v_add_f32 v{V_G}, v{V_G+4}, v{V_G+6}\nv_add_f32 v{V_G+1}, v{V_G+5}, v{V_G+7}')
        I(f'v_mul_f32 v{V_G}, {inv:#x}, v{V_G}\nv_mul_f32 v{V_G+1}, {inv:#x}, v{V_G+1}')
        I(f'v_fma_f32 v{V_G+1}, -v{V_G}, v{V_G}, v{V_G+1}')
        I(f'v_max_f32 v{V_G+1}, 0, v{V_G+1}\nv_add_f32 v{V_G+1}, {f2u(1e-5):#x}, v{V_G+1}')
        I(f'v_rsq_f32 v{V_G+2}, v{V_G+1}\ns_nop 0')
        I(f'v_mul_f32 v{V_G+3}, v{V_G}, v{V_G+2}\nv_sub_f32 v{V_G+3}, 0, v{V_G+3}')
    tk = finish_stats(0)
    I(f's_mul_i32 s48, s47, {9*128}\ns_add_u32 s48, s48, {PAR_G2}\nv_lshlrev_b32 v{t+4}, 5, v{V_Q}\nv_add_u32 v{t+4}, s48, v{t+4}')
    def par_reads(u):
        b = PG + (u & 1) * 16
        k.ds(f'ds_read_b128 {vr(b,4)}, v{t+4} offset:{u*128}')
        k.ds(f'ds_read_b128 {vr(b+4,4)}, v{t+4} offset:{u*128+16}')
        k.ds(f'ds_read_b128 {vr(b+8,4)}, v{t+4} offset:{2304+u*128}')
        return k.ds(f'ds_read_b128 {vr(b+12,4)}, v{t+4} offset:{2304+u*128+16}')
    ptk = [par_reads(0)]
    stats_to_rm(tk)
    R, NMR = V_G + 2, V_G + 3
    for u in range(9):
        if u + 1 < 9: ptk.append(par_reads(u + 1))
        b = PG + (u & 1) * 16
        for d in range(4):
            I(f'v_lshlrev_b32 v{H2+8*u+2*d}, 16, v{X+4*u+d}\nv_and_b32 v{H2+8*u+2*d+1}, 0xffff0000, v{X+4*u+d}')
        for e in range(8): I(f'v_fma_f32 v{H2+8*u+e}, v{H2+8*u+e}, v{R}, v{NMR}')
        k.wait(ptk[u])
        for e in range(8): I(f'v_fma_f32 v{H2+8*u+e}, v{H2+8*u+e}, v{b+e}, v{b+8+e}')
        for d in range(4): I(f'v_cvt_pk_bf16_f32 v{X+4*u+d}, v{H2+8*u+2*d}, v{H2+8*u+2*d+1}')
    I('s_nop 1')
    stats(X, 1024)
    tk = finish_stats(1024)
    stats_to_rm(tk)
    I(f's_mul_i32 s48, s46, 18432\ns_mul_i32 s49, s47, 9216\ns_add_u32 s48, s48, s49\nv_lshlrev_b32 v{t+4}, 4, v{V_LANE}\nv_add_u32 v{t+4}, s48, v{t+4}')
    for u in range(9):
        for e in range(8): I(f'v_fma_f32 v{H2+8*u+e}, v{H2+8*u+e}, v{R}, v{NMR}')
        for d in range(4): I(f'v_cvt_pk_bf16_f32 v{X+4*u+d}, v{H2+8*u+2*d}, v{H2+8*u+2*d+1}')
        k.ds(f'ds_write_b128 v{t+4}, {vr(X+4*u,4)} offset:{u*1024}')
    k.waitall(vm=False)
    I('s_barrier')
    if fine and not ikr: stamp()
    def load_bfrags(base_off):
        tk = None
        for n in range(36):
            tk = k.ds(f'ds_read_b128 {vr(V_BF+4*n,4)}, v{V_FR} offset:{base_off + n*1024}') if base_off + n*1024 < 65536 else None
        return tk
    load_bfrags(0)
    btk = k.ds(f'ds_read_b128 {vr(V_B4,4)}, v{V_BIAS}')
    I(f'v_add_u32 v{V_BIAS}, 256, v{V_BIAS}')
    k.wait(c0)
    if ikr: I('s_load_dwordx2 s[8:9], s[0:1], 88\ns_load_dwordx2 s[28:29], s[0:1], 112')
    k.waitall(vm=False)
    if ikr: I('s_mov_b32 s10, 1152\ns_mov_b32 s11, 0x20000\ns_mov_b32 s30, 2359296\ns_mov_b32 s31, 0x20000')
    I('s_barrier')
    dma_chunk(0, 0); dma_chunk(1, 1)
    stamp()

    I(f'v_mov_b32 v{V_C2}, {f2u(c2v):#x}')
    NB = LA + 1
    ABUF = [V_A, V_A + 4, V_A + 8, V_TMP, V_TMP + 4][:NB]
    atok = {}
    ctr = [0]
    def a_read_parts(cnt, slot, u):
        buf = ABUF[cnt % NB]
        off = (slot & 1) * SLOT + u * 4096
        def r0(): k.ds(f'ds_read_b64_tr_b16 {vr(buf,2)}, v{V_RD[slot>>1]} offset:{off}')
        def r1(): atok[cnt % NB] = k.ds(f'ds_read_b64_tr_b16 {vr(buf+2,2)}, v{V_RD[slot>>1]} offset:{off+512}')
        return r0, r1
    def a_reads(cnt, slot, u):
        r0, r1 = a_read_parts(cnt, slot, u); r0(); r1()
    def gelu_ops(acc, dst):
        ops = []
        for h in range(2):
            x = [acc + 4*h + r for r in range(4)]; g = [V_G + 4*h + r for r in range(4)]
            if pk:
                P = (0, 2)
                ops += [f'v_pk_mul_f32 {vr(g[r],2)}, {vr(x[r],2)}, {vr(x[r],2)}' for r in P]
                ops += [f'v_pk_fma_f32 {vr(g[r],2)}, {vr(g[r],2)}, {vr(V_C2,2)}, {vr(V_C1,2)} op_sel_hi:[1,0,0]' for r in P]
                ops += [f'v_pk_mul_f32 {vr(g[r],2)}, {vr(x[r],2)}, {vr(g[r],2)}' for r in P]
                ops += [f'v_exp_f32 v{g[r]}, v{g[r]}' for r in range(4)]
                ops += [f'v_pk_add_f32 {vr(g[r],2)}, {vr(g[r],2)}, 1.0 op_sel_hi:[1,0]' for r in P]
                ops += [f'v_rcp_f32 v{g[r]}, v{g[r]}' for r in range(4)]
                ops += [f'v_pk_mul_f32 {vr(g[r],2)}, {vr(x[r],2)}, {vr(g[r],2)}' for r in P]
            else:
                ops += [f'v_mul_f32 v{g[r]}, v{x[r]}, v{x[r]}' for r in range(4)]
                ops += [f'v_fma_f32 v{g[r]}, v{g[r]}, v{V_C2}, v{V_C1}' for r in range(4)]
                ops += [f'v_mul_f32 v{g[r]}, v{x[r]}, v{g[r]}' for r in range(4)]
                ops += [f'v_exp_f32 v{g[r]}, v{g[r]}' for r in range(4)]
                ops += [f'v_add_f32 v{g[r]}, 1.0, v{g[r]}' for r in range(4)]
                ops += [f'v_rcp_f32 v{g[r]}, v{g[r]}' for r in range(4)]
                ops += [f'v_mul_f32 v{g[r]}, v{x[r]}, v{g[r]}' for r in range(4)]
            ops += dst(h, g)
        return ops
    lab = [0]
    cur = dict(cls=0)
    def group(phase, par, slots, issue, extra, last=False, vmw=(9, 9, 9), pre=None, early=False, hooks=None, prebar=None):
        acc = V_ACC[par]
        extra = list(extra)
        if no_gelu and phase == 1: extra = []
        nfill = len(extra)
        cls = cur['cls']
        dma_steps = (0, 2, 4) if cls == 0 else (1, 3, 5)
        wt = []
        for n in range(18):
            w_ = 0.0 if n == 0 else (wts[0] if (n % 6) in dma_steps else wts[1])
            if early: w_ = 1.0 if 1 <= n <= 3 else 0.0
            wt += [w_ / 2, w_ / 2]
        tot = sum(wt); cum = []; a_ = 0.0
        for w_ in wt:
            a_ += w_; cum.append(int(round(nfill * a_ / tot)))
        cum[-1] = nfill
        st = dict(done=0)
        def fill(upto):
            while st['done'] < min(upto, nfill):
                x_ = extra[st['done']]
                if callable(x_): x_()
                else: I(x_)
                st['done'] += 1
        for kc in range(3):
            if vmw[kc] is not None:
                if prebar and kc in prebar: prebar[kc]()
                if vmw[kc] != 'b': k.raw_wait(vm=vmw[kc])
                if not no_bar: I('s_barrier')
            if pre and kc in pre: pre[kc]()
            for u in range(6):
                n = kc * 6 + u
                cnt = ctr[0]; ctr[0] += 1
                buf = ABUF[cnt % NB]
                k.wait(atok[cnt % NB])
                nn = n + LA
                if nn < 18: rd = a_read_parts(cnt + LA, slots[nn // 6], nn % 6)
                elif not last: rd = a_read_parts(cnt + LA, slots[3], nn - 18)
                else: rd = (lambda: None, lambda: None)
                def mfma(h):
                    if n == 0: c = vr(V_B4, 4) if phase == 1 else '0'
                    else: c = vr(acc + 4*h, 4)
                    if not no_mfma: I(f'v_mfma_f32_16x16x32_bf16 {vr(acc+4*h,4)}, {vr(buf,4)}, {vr(V_BF+(h*18+n)*4,4)}, {c}')
                dma = issue[kc] is not None and not no_dma and u in dma_steps
                b = dma_steps.index(u) if dma else None
                mfma(0)
                rd[0](); fill(cum[2*n])
                mfma(1)
                if dma: dma_m0(issue[kc][0], b)
                rd[1]()
                if dma:
                    if nn >= 18 and last: I('s_nop 0')
                    dma_go(b, issue[kc][1])
                if phase == 1 and n == 8:
                    group.btk = k.ds(f'ds_read_b128 {vr(V_B4,4)}, v{V_BIAS}')
                    I(f'v_add_u32 v{V_BIAS}, 256, v{V_BIAS}')
                fill(cum[2*n+1])
                if hooks and n in hooks: hooks[n]()
                if phase == 1 and n == 17: k.wait(group.btk)
    group.btk = btk
    def h_dst_indexed(delta):
        def f(h, g):
            return [f'v_cvt_pk_bf16_f32 v{V_PK}, v{g[0]}, v{g[1]}', f'v_cvt_pk_bf16_f32 v{V_PK+1}, v{g[2]}, v{g[3]}',
                    f's_set_gpr_idx_on s{S_IDX}, gpr_idx(DST)', f'v_mov_b32 v{V_H+delta+2*h}, v{V_PK}', f'v_mov_b32 v{V_H+delta+2*h+1}, v{V_PK+1}', 's_set_gpr_idx_off']
        return f
    def h_dst_static(G):
        def f(h, g):
            return [f'v_cvt_pk_bf16_f32 v{V_H+4*G+2*h}, v{g[0]}, v{g[1]}', f'v_cvt_pk_bf16_f32 v{V_H+4*G+2*h+1}, v{g[2]}, v{g[3]}']
        return f
    def merge_idx(ops):
        out = []; i = 0
        while i < len(ops):
            if ops[i].startswith('s_set_gpr_idx_on'):
                out.append('\n'.join(ops[i:i+4])); i += 4
            else:
                out.append(ops[i]); i += 1
        return out
    def switch_src(to):
        def f():
            lab = f'L_sw_{to}_{cur["cls"]}'
            I(f's_cmp_eq_u32 s{S_IT}, 3\ns_cbranch_scc0 {lab}')
            if to == 'w2':
                I(f's_mov_b32 s{S_CUR}, s{S_W2}\ns_mov_b32 s{S_CUR+1}, s{S_W2+1}')
                I(f'v_mov_b32 v{VD[0]}, v{V_DMA2}\nv_add_u32 v{VD[1]}, {64*1152}, v{V_DMA2}\nv_add_u32 v{VD[2]}, {128*1152}, v{V_DMA2}')
                I(f's_mul_i32 s62, s{S_P}, 663552\ns_mov_b32 s{S_D}, {D2}\ns_mov_b32 s63, 0')
                if rot: I(f's_add_u32 s{S_OFF}, s62, {8*128}\ns_mov_b32 s60, s{S_P}\ns_mov_b32 s61, 7')
                else: I(f's_mov_b32 s{S_OFF}, s62')
            else:
                I(f's_mov_b32 s{S_OFF}, 0x7ff00000\ns_mov_b32 s62, 0x7ff00000\ns_mov_b32 s{S_D}, 0')
            k.label(lab)
        return f
    def main(cls):
        cur['cls'] = cls
        for n in range(LA): a_reads(n, 3, n)
        k.wait(btk)
        I(f's_mov_b32 s{S_IT}, 0\ns_mov_b32 s{S_IDX}, 0')
        def body1():
            group(1, 0, (3, 4, 5, 0), ((2, 2), (3, 0), (4, 1)), merge_idx(gelu_ops(V_ACC[1], h_dst_indexed(-4))))
            group(1, 1, (0, 1, 2, 3), ((5, 2), (0, 0), (1, 1)), merge_idx(gelu_ops(V_ACC[0], h_dst_indexed(0))), pre={1: switch_src('w2')})
        def loop(label, body, n):
            save = len(k.lines); l0 = lab[0]
            body(); first = k.lines[save:]; del k.lines[save:]; lab[0] = l0
            body(); second = k.lines[save:]; del k.lines[save:]; lab[0] = l0
            start = len(k.lines)
            k.label(label)
            body()
            third = k.lines[start+1:]
            assert second == third, 'loop body not a fixed point'
            strip = lambda L: [x for x in L]
            def split(L):
                body_, waits = [], {}
                for x in L:
                    if x.startswith('    s_waitcnt'): waits.setdefault(len(body_), []).append(x.strip())
                    else: body_.append(x)
                return body_, waits
            fb, fw = split(first); sb_, sw_ = split(second)
            assert fb == sb_, 'loop body differs between entry and steady state'
            import re as _re
            def cnts(ws):
                d = {}
                for w_ in ws:
                    for nm, v in _re.findall(r'(vmcnt|lgkmcnt)\((\d+)\)', w_): d[nm] = min(d.get(nm, 99), int(v))
                return d
            for pos, ws in fw.items():
                a = cnts(ws); b = cnts(sw_.get(pos, []))
                for nm, v in a.items():
                    assert nm in b and b[nm] <= v, ('steady-state wait too lax for loop entry', label, pos, ws, sw_.get(pos))
            errs = hazards(third + third, label)
            for e in errs: print('HAZARD', e)
            I(f's_add_u32 s{S_IDX}, s{S_IDX}, 8\ns_add_u32 s{S_IT}, s{S_IT}, 1\ns_cmp_lt_u32 s{S_IT}, {n}\ns_cbranch_scc1 {label}')
        loop(f'L_p1_{cls}', body1, 4)
        stamp()
        group(1, 0, (3, 4, 5, 0), ((2, 2), None, None), gelu_ops(V_ACC[1], h_dst_static(7)), vmw=(9, 9, 6))
        k.raw_wait(vm=3)
        I('s_barrier')
        k.nop(4)
        g8 = gelu_ops(V_ACC[0], h_dst_static(8))
        wr = [(G, h) for G in range(8) for h in range(2)]
        gi = 0
        for n_, (G, h) in enumerate(wr):
            k.ds(f'ds_write_b64 v{V_HW}, {vr(V_H+4*G+2*h,2)} offset:{G*2048 + h*18432}')
            upto = len(g8) * (n_ + 1) // len(wr)
            while gi < upto:
                I(g8[gi]); gi += 1
        for h in range(2):
            k.ds(f'ds_write_b64 v{V_HW}, {vr(V_H+32+2*h,2)} offset:{8*2048 + h*18432}')
        k.waitall(vm=False)
        I('s_barrier')
        I(f'v_add_u32 v{V_FR}, {3*SLOT}, v{V_FR}')
        load_bfrags(0)
        k.waitall(vm=False)
        I('s_barrier')
        dma_chunk(3, 0); dma_chunk(4, 1)
        stamp()
        stok = {}
        def store_ops(acc):
            ops = [f'v_cvt_pk_bf16_f32 v{V_PK+2*h+d}, v{acc+4*h+2*d}, v{acc+4*h+2*d+1}' for h in range(2) for d in range(2)]
            def st_():
                stok['last'] = k.vm(f'buffer_store_dwordx4 {vr(V_PK,4)}, v{V_ST}, {sr(S_WS,4)}, s{S_ST} offen {store_flags}')
                if not rot: I(f's_mov_b32 s{S_ST}, s{S_STN}\ns_add_u32 s{S_STN}, s{S_STN}, 8192')
                else: I(f's_mov_b32 s{S_ST}, s{S_STN}\ns_add_u32 s59, s59, 1\ns_add_u32 s{S_STN}, s59, s{S_P}\ns_and_b32 s{S_STN}, s{S_STN}, 7\ns_lshl_b32 s{S_STN}, s{S_STN}, 13\ns_add_u32 s{S_STN}, s{S_STN}, s32')
            ops.append(st_)
            return ops
        def run(ops):
            for op in ops:
                if callable(op): op()
                else: I(op)
        I(f's_mov_b32 s{S_IT}, 0')
        if rot: I(f's_mov_b32 s32, s{S_STN}\ns_add_u32 s{S_STN}, s{S_STN}, {8*8192}\ns_mov_b32 s59, 0')
        if not ikr:
            def body2():
                group(2, 0, (0, 1, 2, 3), ((5, 2), (0, 0), (1, 1)), store_ops(V_ACC[1]), vmw=(9, 9, 9))
                group(2, 1, (3, 4, 5, 0), ((2, 2), (3, 0), (4, 1)), store_ops(V_ACC[0]), vmw=(9, 9, 9), pre={1: switch_src('oob')})
            loop(f'L_p2_{cls}', body2, 4)
            group(2, 0, (0, 1, 2, 3), (None, None, None), store_ops(V_ACC[1]), last=True, vmw=(9, 6, None))
            k.nop(8)
            run(store_ops(V_ACC[0]))
            return
        S_FL, S_G, S_CNT = 46, 50, 51
        VF, VFA, VL16, VO, VTR, VP4 = 2, 12, 13, 8, 20, 21
        I(f's_lshl_b32 s{S_FL}, s{S_M}, 7\ns_add_u32 s{S_FL}, s{S_FL}, {OFF_FLAG}')
        I(f'v_and_b32 v{VFA}, 7, v{V_LANE}\nv_lshlrev_b32 v{VFA}, 2, v{VFA}\nv_lshlrev_b32 v{VL16}, 4, v{V_LANE}')
        I(f's_lshr_b32 s52, s{S_P}, 2\ns_and_b32 s53, s{S_P}, 3')
        I(f's_lshl_b32 s54, s{S_M}, 6\ns_lshl_b32 s55, s52, 5\ns_add_u32 s54, s54, s55\nv_add_u32 v{VO}, s54, v{V_TL}\nv_mul_u32_u24 v{VO}, 1152, v{VO}')
        I(f's_lshl_b32 s55, s53, 4\nv_lshlrev_b32 v{VP4}, 2, v{V_Q}\nv_add_u32 v{VP4}, s55, v{VP4}')
        I(f'v_lshlrev_b32 v16, 1, v{VP4}\nv_add_u32 v{VO}, v{VO}, v16')
        I(f'v_lshrrev_b32 v{VTR}, 2, v{V_TL}\nv_lshlrev_b32 v16, 2, v{V_Q}\nv_add_u32 v{VTR}, v{VTR}, v16\nv_lshlrev_b32 v{VTR}, 6, v{VTR}')
        I(f'v_and_b32 v16, 3, v{V_LANE}\nv_lshlrev_b32 v16, 3, v16\nv_add_u32 v{VTR}, v{VTR}, v16\nv_add_u32 v{VTR}, {XS}, v{VTR}')
        VXG = 19
        I(f'v_lshrrev_b32 v{VXG}, 2, v{V_LANE}\nv_lshlrev_b32 v{VXG}, 7, v{VXG}\nv_and_b32 v16, 3, v{V_LANE}\nv_lshlrev_b32 v16, 4, v16\nv_add_u32 v{VXG}, v{VXG}, v16\ns_lshl_b32 s55, s52, 6\nv_add_u32 v{VXG}, s55, v{VXG}')
        def signal(val, name, cond_it=None):
            lb = f'L_sig{name}'
            if cond_it is not None: I(f's_cmp_eq_u32 s{S_IT}, {cond_it}\ns_cbranch_scc0 {lb}')
            I(f's_cmp_eq_u32 s{S_W}, 0\ns_cbranch_scc0 {lb}')
            I(f's_lshl_b32 s52, s{S_P}, 2\ns_add_u32 s52, s52, s{S_FL}\nv_mov_b32 v16, {val}\nv_mov_b32 v17, 0\ns_mov_b64 exec, 1')
            I(f'buffer_store_dword v16, v17, {sr(S_WS,4)}, s52 offen sc1')
            I('s_mov_b64 exec, -1')
            k.label(lb)
        ftok = {}
        def flag_load(): ftok['t'] = k.vm(f'buffer_load_dword v{VF}, v{VFA}, {sr(S_WS,4)}, s{S_FL} offen sc1')
        def spin(val, name):
            I(f's_mov_b32 s{S_CNT}, 0x40000')
            k.label(f'L_spin{name}')
            I(f'v_cmp_gt_u32 vcc, {val}, v{VF}\ns_nop 4\ns_cbranch_vccz L_spun{name}')
            I(f's_sub_u32 s{S_CNT}, s{S_CNT}, 1\ns_cmp_eq_u32 s{S_CNT}, 0\ns_cbranch_scc1 L_spun{name}')
            I(f's_sleep 1\nbuffer_load_dword v{VF}, v{VFA}, {sr(S_WS,4)}, s{S_FL} offen sc1\ns_waitcnt vmcnt(0)\ns_branch L_spin{name}')
            k.label(f'L_spun{name}')
        PR = V_H
        R0, R1 = V_G, V_BF
        def statics(R, slotidx, tracked=False):
            V = k.vm if tracked else I
            I(f's_mul_i32 s52, s{S_M}, 73728\ns_lshl_b32 s54, s{S_G}, 13\ns_add_u32 s52, s52, s54\ns_lshl_b32 s54, s53, 11\ns_add_u32 s52, s52, s54\ns_add_u32 s52, s52, {OFF_X1T}')
            I(f's_lshl_b32 s54, {slotidx}, 10\ns_add_u32 m0, s54, {XS}\ns_nop 0')
            V(f'buffer_load_dwordx4 v{VXG}, {sr(S_WS,4)}, s52 offen lds')
            I(f's_lshl_b32 s54, s{S_G}, 8\ns_add_u32 s52, s54, {OFF_MODF + 3*2304}\nv_lshlrev_b32 v16, 2, v{VP4}')
            V(f'buffer_load_dwordx4 {vr(R,4)}, v16, {sr(S_WS,4)}, s52 offen')
            I(f's_lshl_b32 s54, s{S_G}, 7\nv_lshlrev_b32 v17, 1, v{VP4}')
            V(f'buffer_load_dwordx2 {vr(R+4,2)}, v17, s[8:11], s54 offen')
        def partials():
            I(f's_mul_i32 s52, s{S_M}, {8*73728}\ns_lshl_b32 s54, s{S_G}, 13\ns_add_u32 s52, s52, s54\ns_lshl_b32 s54, s{S_P}, 10\ns_add_u32 s52, s52, s54\ns_add_u32 s52, s52, {OFF_PART}')
            for p_ in range(8):
                I(f'buffer_load_dwordx4 {vr(PR+4*p_,4)}, v{VL16}, {sr(S_WS,4)}, s52 offen sc1')
                if p_ < 7: I(f's_add_u32 s52, s52, 73728')
        def finish(R, slotidx, own=None):
            I(f's_lshl_b32 s54, {slotidx}, 10\nv_add_u32 v16, s54, v{VTR}')
            I(f'ds_read_b64_tr_b16 v[36:37], v16\nds_read_b64_tr_b16 v[38:39], v16 offset:32')
            acc = [72, 73, 74, 75, 108, 109, 110, 111]
            t0, t1 = 22, 23
            if own is not None: acc = [own + e for e in range(8)]
            for p_ in range(8 if own is None else 7):
                for d in range(4):
                    lo, hi = acc[2*d], acc[2*d+1]
                    b = PR + 4*p_ + d
                    if p_ == 0 and own is None: I(f'v_lshlrev_b32 v{lo}, 16, v{b}\nv_and_b32 v{hi}, 0xffff0000, v{b}')
                    else: I(f'v_lshlrev_b32 v{t0}, 16, v{b}\nv_and_b32 v{t1}, 0xffff0000, v{b}\nv_add_f32 v{lo}, v{lo}, v{t0}\nv_add_f32 v{hi}, v{hi}, v{t1}')
            b2 = [30, 31, 32, 33]; xx = [16, 17, 18, 4]; pk = (34, 10)
            I(f'v_lshlrev_b32 v{b2[0]}, 16, v{R+4}\nv_and_b32 v{b2[1]}, 0xffff0000, v{R+4}\nv_lshlrev_b32 v{b2[2]}, 16, v{R+5}\nv_and_b32 v{b2[3]}, 0xffff0000, v{R+5}')
            finish.n += 1
            I(f's_waitcnt lgkmcnt({finish.lg})')
            I(f's_lshl_b32 s54, s{S_G}, 7')
            for h in range(2):
                x = 36 + 2*h
                I(f'v_lshlrev_b32 v{xx[0]}, 16, v{x}\nv_and_b32 v{xx[1]}, 0xffff0000, v{x}\nv_lshlrev_b32 v{xx[2]}, 16, v{x+1}\nv_and_b32 v{xx[3]}, 0xffff0000, v{x+1}')
                for r in range(4):
                    a = acc[4*h + r]
                    I(f'v_add_f32 v{a}, v{a}, v{b2[r]}\nv_fma_f32 v{a}, v{a}, v{R+r}, v{xx[r]}')
                I(f'v_cvt_pk_bf16_f32 v{pk[h]}, v{acc[4*h]}, v{acc[4*h+1]}\nv_cvt_pk_bf16_f32 v{pk[h]+1}, v{acc[4*h+2]}, v{acc[4*h+3]}')
            I(f'buffer_store_dwordx2 {vr(pk[0],2)}, v{VO}, s[28:31], s54 offen')
            I(f's_add_u32 s54, s54, {16*1152}')
            I(f'buffer_store_dwordx2 {vr(pk[1],2)}, v{VO}, s[28:31], s54 offen')
        finish.n = 0; finish.lg = 0
        if rot:
            S_PB = 56
            def body2r():
                group(2, 0, (0, 1, 2, 3), ((5, 2), (0, 0), (1, 1)), store_ops(V_ACC[1]), vmw=(9, 9, 9), early=True,
                      pre={1: lambda: signal(1, 'a', cond_it=2)})
                group(2, 1, (3, 4, 5, 0), ((2, 2), (3, 0), (4, 1)), store_ops(V_ACC[0]), vmw=(9, 9, 9), early=True)
            loop(f'L_p2_{cls}', body2r, 3)
            I(f's_mov_b32 s{S_G}, 8')
            group(2, 0, (0, 1, 2, 3), ((5, 2), (0, 0), (1, 1)), store_ops(V_ACC[1]), vmw=(9, 9, 9), early=True,
                  hooks={9: flag_load, 14: lambda: statics(R0, '8', True)})
            if fine: stamp()
            ptok = {}
            def setup8():
                k.wait(ftok['t'])
                I(f's_cmp_eq_u32 s{S_W}, 0\ns_cbranch_scc0 L_nob8')
                spin(1, 'a')
                k.label('L_nob8')
                I(f's_mul_i32 s{S_PB}, s{S_M}, {8*73728}\ns_lshl_b32 s54, s{S_P}, 10\ns_add_u32 s{S_PB}, s{S_PB}, s54\ns_add_u32 s{S_PB}, s{S_PB}, {OFF_PART + 8*8192}')
                I(f's_cmp_eq_u32 s{S_W}, 0\ns_cselect_b32 s{S_PB}, s{S_PB}, 0x7ff00000\ns_cselect_b32 s58, 73728, 0')
            def pload8(p_):
                def f():
                    ptok['t'] = k.vm(f'buffer_load_dwordx4 {vr(PR+4*p_,4)}, v{VL16}, {sr(S_WS,4)}, s{S_PB} offen sc1')
                    I(f's_add_u32 s{S_PB}, s{S_PB}, s58')
                return f
            hooks = {9: setup8}
            for p_ in range(8): hooks[10 + p_] = pload8(p_)
            h12 = hooks[12]
            ftok2 = {}
            def hook12():
                h12(); flag_load(); ftok2['t'] = ftok['t']
            hooks[12] = hook12
            group(2, 1, (3, 4, 5, 0), ((2, 2), None, None), store_ops(V_ACC[0]), vmw=(9, 9, 9), early=True,
                  pre={0: lambda: signal(2, 'b')}, hooks=hooks)
            k.wait(dma_go.last)
            def own_load(s_):
                I(f's_sub_u32 s54, s{S_P}, {s_}\ns_and_b32 s54, s54, 7\ns_mul_i32 s54, s54, 73728\ns_add_u32 s54, s54, s{S_PB}')
                return k.vm(f'buffer_load_dwordx4 {vr(PR+4*(s_-1),4)}, v{VL16}, {sr(S_WS,4)}, s54 offen sc1')
            def mid8():
                k.wait(ftok2['t'])
                spin(2, 'b')
                I(f's_cmp_eq_u32 s{S_W}, 0\ns_cbranch_scc0 L_nofin8\ns_waitcnt vmcnt(1)')
                finish(R0, '8')
                k.label('L_nofin8')
                I(f's_lshr_b32 s52, s{S_W}, 2\ns_and_b32 s53, s{S_W}, 3\ns_mov_b32 s{S_G}, s{S_P}')
                I(f's_lshl_b32 s54, s{S_M}, 6\ns_lshl_b32 s55, s52, 5\ns_add_u32 s54, s54, s55\nv_add_u32 v{VO}, s54, v{V_TL}\nv_mul_u32_u24 v{VO}, 1152, v{VO}')
                I(f's_lshl_b32 s55, s53, 4\nv_lshlrev_b32 v{VP4}, 2, v{V_Q}\nv_add_u32 v{VP4}, s55, v{VP4}')
                I(f'v_lshlrev_b32 v16, 1, v{VP4}\nv_add_u32 v{VO}, v{VO}, v16')
                I(f'v_lshrrev_b32 v{VXG}, 2, v{V_LANE}\nv_lshlrev_b32 v{VXG}, 7, v{VXG}\nv_and_b32 v16, 3, v{V_LANE}\nv_lshlrev_b32 v16, 4, v16\nv_add_u32 v{VXG}, v{VXG}, v16\ns_lshl_b32 s55, s52, 6\nv_add_u32 v{VXG}, s55, v{VXG}')
                statics(R0, f's{S_W}', True)
                I(f's_mul_i32 s{S_PB}, s{S_M}, {8*73728}\ns_lshl_b32 s54, s{S_P}, 13\ns_add_u32 s{S_PB}, s{S_PB}, s54\ns_lshl_b32 s54, s{S_W}, 10\ns_add_u32 s{S_PB}, s{S_PB}, s54\ns_add_u32 s{S_PB}, s{S_PB}, {OFF_PART}')
            hooks = {6: mid8}
            for s_ in range(1, 6): hooks[6 + 2*s_ - 1] = (lambda q_: (lambda: own_load(q_)))(s_)
            group(2, 0, (0, 1, 2, 3), (None, None, None), store_ops(V_ACC[1]), last=True, vmw=('b', 'b', None), early=True, hooks=hooks)
            if fine: stamp()
            I(f's_waitcnt vmcnt(0)\ns_mov_b32 s{S_CNT}, 0x2000')
            if fine: stamp()
            k.label('L_retry')
            own_load(6); own_load(7)
            I('s_waitcnt vmcnt(0)')
            a_, b_ = PR + 20, PR + 24
            I(f'v_max3_u32 v22, v{a_}, v{a_+1}, v{a_+2}\nv_max3_u32 v22, v22, v{a_+3}, v{b_}\nv_max3_u32 v22, v22, v{b_+1}, v{b_+2}\nv_max_u32 v22, v22, v{b_+3}')
            I(f'v_cmp_eq_u32 vcc, -1, v22\ns_sub_u32 s{S_CNT}, s{S_CNT}, 1\ns_cmp_eq_u32 s{S_CNT}, 0\ns_cbranch_scc1 L_got\ns_nop 1\ns_cbranch_vccnz L_retry')
            k.label('L_got')
            if fine: stamp()
            finish(R0, f's{S_W}', own=V_ACC[0])
            return
        def body2():
            group(2, 0, (0, 1, 2, 3), ((5, 2), (0, 0), (1, 1)), store_ops(V_ACC[1]), vmw=(9, 9, 9), early=True)
            group(2, 1, (3, 4, 5, 0), ((2, 2), (3, 0), (4, 1)), store_ops(V_ACC[0]), vmw=(9, 9, 9), early=True)
        loop(f'L_p2_{cls}', body2, 3)
        S_PB = 56
        def batch_setup(lo, hi, lvl, name):
            k.wait(ftok['t'])
            I(f's_sub_u32 s52, s{S_W}, {lo}\ns_cmp_lt_u32 s52, {hi - lo}\ns_cbranch_scc0 L_nob{name}')
            spin(lvl, name)
            k.label(f'L_nob{name}')
            I(f's_mul_i32 s{S_PB}, s{S_M}, {8*73728}\ns_lshl_b32 s54, s{S_W}, 13\ns_add_u32 s{S_PB}, s{S_PB}, s54\ns_lshl_b32 s54, s{S_P}, 10\ns_add_u32 s{S_PB}, s{S_PB}, s54\ns_add_u32 s{S_PB}, s{S_PB}, {OFF_PART}')
            I(f's_sub_u32 s52, s{S_W}, {lo}\ns_cmp_lt_u32 s52, {hi - lo}\ns_cselect_b32 s{S_PB}, s{S_PB}, 0x7ff00000\ns_cselect_b32 s58, 73728, 0')
        ptok = {}
        def pload(p_):
            def f():
                ptok['t'] = k.vm(f'buffer_load_dwordx4 {vr(PR+4*p_,4)}, v{VL16}, {sr(S_WS,4)}, s{S_PB} offen sc1')
                I(f's_add_u32 s{S_PB}, s{S_PB}, s58')
            return f
        I(f's_mov_b32 s{S_G}, s{S_W}')
        group(2, 0, (0, 1, 2, 3), ((5, 2), (0, 0), (1, 1)), store_ops(V_ACC[1]), vmw=(9, 9, 9), early=True,
              pre={1: lambda: signal(1, 'a')}, hooks={14: lambda: statics(R0, f's{S_W}', True)})
        if fine: stamp()
        hooks = {1: flag_load, 9: lambda: batch_setup(0, 5, 1, 'a')}
        for p_ in range(8): hooks[10 + p_] = pload(p_)
        group(2, 1, (3, 4, 5, 0), ((2, 2), None, None), store_ops(V_ACC[0]), vmw=(9, 9, 9), early=True, hooks=hooks)
        tok26 = dma_go.last
        k.wait(tok26)
        group(2, 0, (0, 1, 2, 3), (None, None, None), store_ops(V_ACC[1]), last=True, vmw=('b', 'b', None), early=True,
              pre={0: lambda: signal(2, 'b')}, hooks={12: flag_load})
        if fine: stamp()
        I(f's_cmp_eq_u32 s{S_W}, 0\ns_cbranch_scc0 L_nost8\ns_mov_b32 s{S_G}, 8')
        statics(R1, '8')
        I(f's_mov_b32 s{S_G}, 0')
        k.label('L_nost8')
        k.nop(7)
        run(store_ops(V_ACC[0]))
        I(f's_sub_u32 s52, s{S_W}, 5\ns_cmp_lt_u32 s52, 2\ns_cbranch_scc0 L_no6')
        I('s_waitcnt vmcnt(1)')
        spin(2, 'c')
        partials()
        I('s_waitcnt vmcnt(8)\ns_branch L_st8' if not sent else 's_branch L_st8')
        k.label('L_no6')
        if not sent:
            I('s_waitcnt vmcnt(0)')
            k.label('L_st8')
            if fine: stamp()
            I('s_barrier')
            if fine: stamp()
            signal(3, 'd')
            I(f's_cmp_eq_u32 s{S_W}, 7\ns_cbranch_scc1 L_late7')
            I(f's_cmp_ge_u32 s{S_W}, 5\ns_cbranch_scc0 L_have\ns_waitcnt vmcnt(0)')
            k.label('L_have')
            finish(R0, f's{S_W}')
            I(f's_cmp_eq_u32 s{S_W}, 0\ns_cbranch_scc0 L_ikr_done\ns_mov_b32 s{S_G}, 8')
            for e in range(6): I(f'v_mov_b32 v{R0+e}, v{R1+e}')
            I(f's_mov_b32 s57, 8\ns_branch L_late2')
            k.label('L_late7')
            I(f's_mov_b32 s57, 7')
            k.label('L_late2')
            I(f'buffer_load_dword v{VF}, v{VFA}, {sr(S_WS,4)}, s{S_FL} offen sc1\ns_waitcnt vmcnt(0)')
            spin(3, 'b')
            partials()
            I('s_waitcnt vmcnt(0)')
            finish(R0, 's57')
        else:
            k.label('L_st8')
            if fine: stamp(); stamp()
            I(f's_cmp_eq_u32 s{S_W}, 7\ns_cbranch_scc1 L_late7')
            I(f's_cmp_ge_u32 s{S_W}, 5\ns_cbranch_scc1 L_w56\ns_waitcnt vmcnt(1)\ns_branch L_have')
            k.label('L_w56')
            I('s_waitcnt vmcnt(0)')
            k.label('L_have')
            finish(R0, f's{S_W}')
            I(f's_cmp_eq_u32 s{S_W}, 0\ns_cbranch_scc0 L_ikr_done\ns_mov_b32 s{S_G}, 8')
            for e in range(6): I(f'v_mov_b32 v{R0+e}, v{R1+e}')
            I(f's_mov_b32 s57, 8\ns_branch L_late2')
            k.label('L_late7')
            I(f's_mov_b32 s57, 7')
            k.label('L_late2')
            I(f's_waitcnt vmcnt(0)\ns_mov_b32 s{S_CNT}, 0x2000')
            k.label('L_retry')
            partials()
            I('s_waitcnt vmcnt(0)')
            I(f'v_max3_u32 v22, v{PR}, v{PR+1}, v{PR+2}')
            for e in range(3, 31, 2): I(f'v_max3_u32 v22, v22, v{PR+e}, v{PR+e+1}')
            I(f'v_max_u32 v22, v22, v{PR+31}')
            I(f'v_cmp_eq_u32 vcc, -1, v22\ns_sub_u32 s{S_CNT}, s{S_CNT}, 1\ns_cmp_eq_u32 s{S_CNT}, 0\ns_cbranch_scc1 L_got\ns_nop 1\ns_cbranch_vccnz L_retry')
            k.label('L_got')
            finish(R0, 's57')
        k.label('L_ikr_done')
    if classes:
        import copy
        st0 = (dict(k.cnt), dict(k.done), dict(atok), ctr[0], nst[0], group.btk)
        I(f's_cmp_ge_u32 s{S_W}, 4\ns_cbranch_scc1 L_main1')
        if cls_prio == 0: I('s_setprio 1')
        main(0)
        I('s_branch L_main_done')
        k.label('L_main1')
        k.cnt, k.done = dict(st0[0]), dict(st0[1]); atok.clear(); atok.update(st0[2]); ctr[0] = st0[3]; nst[0] = st0[4]; group.btk = st0[5]
        if cls_prio == 1: I('s_setprio 1')
        main(1)
        k.label('L_main_done')
    else:
        main(0)
    stamp()
    I('s_waitcnt vmcnt(0)')
    stamp()
    if stamps:
        I('s_waitcnt lgkmcnt(0)')
        I(f's_lshl_b32 s46, s2, 6\ns_add_u32 s46, s46, {OFF_DBG}')
        for i in range(nst[0]):
            I(f'v_mov_b32 v2, s{64+2*i}\nv_mov_b32 v3, 0')
            I(f'buffer_store_dword v2, v3, {sr(S_WS,4)}, s46 offen offset:{4*i}')
            if not fine:
                I(f'v_mov_b32 v2, s{80+2*i}')
                I(f'buffer_store_dword v2, v3, {sr(S_WS,4)}, s46 offen offset:{32+4*i}')
        I('s_waitcnt vmcnt(0)')
    if dbgout:
        I(f's_cmp_eq_u32 s2, 0\ns_cbranch_scc0 L_mlp_end\ns_cmp_eq_u32 s{S_W}, 0\ns_cbranch_scc0 L_mlp_end')
        I('s_load_dwordx2 s[20:21], s[0:1], 120\ns_mov_b64 exec, -1\ns_waitcnt vmcnt(0) lgkmcnt(0)')
        I('s_sub_u32 s20, s20, 1024\ns_subb_u32 s21, s21, 0\ns_mov_b32 s22, 1280\ns_mov_b32 s23, 0x20000')
        I(f'v_and_b32 v2, 63, v0\nv_lshlrev_b32 v3, 2, v2')
        srcs = [OFF_DBG + 0x20000 + 4*4, OFF_DBG + 0x10000, OFF_DBG + 0x10000 + 4*5, OFF_DBG + 0x10000 + 4*6, OFF_DBG + 0x10000 + 4*9] + [OFF_DBG + 4*i for i in range(11)]
        I('v_mov_b32 v4, 0')
        for i, o in enumerate(srcs):
            I(f'v_cmp_eq_u32 vcc, {i}, v2\nv_mov_b32 v5, {o}\ns_nop 0\nv_cndmask_b32 v4, v4, v5, vcc')
        I(f'buffer_load_dword v6, v4, {sr(S_WS,4)}, 0 offen sc1')
        I(f'v_mov_b32 v7, {OFF_DBG + 0x20000}\nbuffer_load_dword v8, v7, {sr(S_WS,4)}, 0 offen sc1\ns_waitcnt vmcnt(0)')
        I('v_sub_u32 v6, v6, v8\nv_cmp_gt_u32 vcc, 16, v2\ns_nop 1\ns_and_saveexec_b64 s[50:51], vcc')
        I('buffer_store_dword v6, v3, s[20:23], 0 offen\nbuffer_store_dword v6, v3, s[20:23], 0 offen offset:1024\ns_waitcnt vmcnt(0)')
    k.label('L_mlp_end')
    I('s_endpgm')
    errs = hazards(k.lines, 'mlp')
    for e in errs: print('HAZARD', e)
    return k, LDS_BYTES

if __name__ == '__main__':
    k, lds = build()
    print(len(k.lines), 'lines; lds', lds)
```

```python
from asmlib import Kern, hazards
from layout import *
import struct, math
def vr(a, n): return f'v[{a}:{a+n-1}]'
f2u = lambda x: struct.unpack('<I', struct.pack('<f', x))[0]
N_LN, N_KG, N_MOD = 64, 576, 243
GRID = N_LN + N_KG + N_MOD
L_F = 0
L_G = 16 * 528
TB = L_F + 8
TP = 1184
T_BYTES = 32 * TP + 384
LDS_BYTES = max(T_BYTES, 64 * 528, 8192)

def build(stamps=False, prio=True, xmap=True, sent=False, stf='', mlate=True):
    k = Kern('prep_kernel', 128, 96)
    I = k.I
    k.stamp_init(stamps, 64, OFF_DBG + 0x20000)
    I(f's_cmp_ge_u32 s2, {GRID}\ns_cbranch_scc1 L_prep_end')
    I('s_load_dwordx2 s[26:27], s[0:1], 128')
    k.stamp()
    if stamps: I('s_mov_b32 s59, s2')
    I('v_and_b32 v1, 63, v0\nv_lshrrev_b32 v2, 6, v0')
    I('s_nop 0\nv_readfirstlane_b32 s33, v2')
    I(f's_cmp_ge_u32 s2, {N_LN + N_KG}\ns_cbranch_scc1 L_mod')
    I(f's_cmp_ge_u32 s2, {N_LN}\ns_cbranch_scc1 L_kgen')
    I('s_load_dwordx2 s[20:21], s[0:1], 0')
    if prio: I('s_setprio 3')
    I('v_lshrrev_b32 v3, 3, v0\nv_and_b32 v4, 7, v0')
    I('s_lshl_b32 s34, s2, 5\nv_add_u32 v5, s34, v3\nv_mul_u32_u24 v5, 1152, v5\nv_lshlrev_b32 v6, 4, v4\nv_add_u32 v5, v5, v6')
    I('s_waitcnt lgkmcnt(0)')
    I(f's_mov_b32 s4, s26\ns_mov_b32 s5, s27\ns_mov_b32 s6, {WS_BYTES}\ns_mov_b32 s7, 0x20000')
    I('s_mov_b32 s8, s20\ns_mov_b32 s9, s21\ns_mov_b32 s10, 2359296\ns_mov_b32 s11, 0x20000')
    U, X = 16, 52
    tk = [k.vm(f'buffer_load_dwordx4 {vr(U+4*m,4)}, v5, s[8:11], 0 offen offset:{m*128}') for m in range(9)]
    I(f'v_mul_u32_u24 v7, {TP}, v3\nv_lshrrev_b32 v8, 3, v3\nv_lshlrev_b32 v8, 7, v8\nv_add_u32 v7, v7, v8\nv_add_u32 v7, v7, v6')
    I('v_mov_b32 v10, 0\nv_mov_b32 v11, 0')
    for m in range(9):
        k.wait(tk[m])
        k.ds(f'ds_write_b128 v7, {vr(U+4*m,4)} offset:{m*128}')
        for d in range(4):
            I(f'v_lshlrev_b32 v{X+8*m+2*d}, 16, v{U+4*m+d}\nv_and_b32 v{X+8*m+2*d+1}, 0xffff0000, v{U+4*m+d}')
        for d in range(4): I(f'v_pk_add_f32 v[10:11], v[10:11], {vr(X+8*m+2*d,2)}')
    k.stamp()
    I('v_lshrrev_b32 v3, 4, v1\nv_and_b32 v4, 15, v1\nv_lshrrev_b32 v5, 2, v4\nv_and_b32 v6, 3, v1')
    I(f'v_lshlrev_b32 v14, 3, v3\nv_add_u32 v14, v14, v5\nv_mul_u32_u24 v14, {TP}, v14\nv_lshlrev_b32 v8, 7, v3\nv_add_u32 v14, v14, v8')
    I('v_lshlrev_b32 v8, 3, v6\nv_add_u32 v14, v14, v8\ns_mul_i32 s35, s33, 288\nv_add_u32 v14, s35, v14')
    I('s_mul_i32 s35, s33, 144\nv_add_u32 v8, s35, v4\nv_lshlrev_b32 v8, 6, v8\nv_lshlrev_b32 v9, 4, v3\nv_add_u32 v8, v8, v9\ns_mul_i32 s35, s2, 36864\nv_add_u32 v8, s35, v8')
    def transposed(arr, off, rb):
        tks = []
        for i in range(9):
            k.ds(f'ds_read_b64_tr_b16 {vr(rb+4*i,2)}, v14 offset:{i*32}')
            tks.append(k.ds(f'ds_read_b64_tr_b16 {vr(rb+4*i+2,2)}, v14 offset:{i*32 + 4*TP}'))
        return tks
    def stores(tks, off, rb):
        for i in range(9):
            k.wait(tks[i])
            I(f's_mov_b32 s36, {off + i*1024}')
            k.vm(f'buffer_store_dwordx4 {vr(rb+4*i,4)}, v8, s[4:7], s36 offen {stf}')
    k.waitall(vm=False)
    I('s_barrier')
    tks = transposed(0, OFF_UT, U)
    def red8(reg):
        I(f's_nop 1\nv_add_f32_dpp v{reg}, v{reg}, v{reg} quad_perm:[1,0,3,2] row_mask:0xf bank_mask:0xf')
        I(f's_nop 1\nv_add_f32_dpp v{reg}, v{reg}, v{reg} quad_perm:[2,3,0,1] row_mask:0xf bank_mask:0xf')
        I(f's_nop 1\nv_add_f32_dpp v{reg}, v{reg}, v{reg} row_half_mirror row_mask:0xf bank_mask:0xf')
    I('v_add_f32 v10, v10, v11')
    red8(10)
    I(f'v_mul_f32 v10, {f2u(-1.0/576):#x}, v10\nv_mov_b32 v12, 0\nv_mov_b32 v11, v10\nv_mov_b32 v13, 0')
    stores(tks, OFF_UT, U)
    for e in range(36): I(f'v_pk_add_f32 {vr(X+2*e,2)}, {vr(X+2*e,2)}, v[10:11]')
    for e in range(36): I(f'v_pk_fma_f32 v[12:13], {vr(X+2*e,2)}, {vr(X+2*e,2)}, v[12:13]')
    I('v_add_f32 v12, v12, v13')
    red8(12)
    I(f'v_mul_f32 v12, {f2u(1.0/576):#x}, v12\nv_add_f32 v12, {f2u(1e-5):#x}, v12\nv_rsq_f32 v12, v12\ns_nop 0\nv_mov_b32 v13, v12')
    for e in range(36):
        I(f'v_pk_mul_f32 {vr(X+2*e,2)}, {vr(X+2*e,2)}, v[12:13]')
        I(f'v_cvt_pk_bf16_f32 v{U+e}, v{X+2*e}, v{X+2*e+1}')
    I('s_barrier')
    for m in range(9): k.ds(f'ds_write_b128 v7, {vr(U+4*m,4)} offset:{m*128}')
    k.waitall(vm=False)
    I('s_barrier')
    k.stamp()
    tks = transposed(1, OFF_NT, X)
    stores(tks, OFF_NT, X)
    k.stamp()
    I('s_branch L_prep_fin')
    k.st_n = 1
    k.label('L_mod')
    I('s_load_dwordx2 s[20:21], s[0:1], 96\ns_load_dwordx2 s[22:23], s[0:1], 104')
    I(f's_sub_u32 s34, s2, {N_LN + N_KG}\ns_mul_i32 s35, s34, 2428\ns_lshr_b32 s35, s35, 16\ns_mul_i32 s36, s35, 27\ns_sub_u32 s36, s34, s36')
    I('v_and_b32 v3, 15, v0\nv_lshrrev_b32 v4, 4, v0')
    I('s_lshl_b32 s37, s35, 6\nv_add_u32 v5, s37, v4')
    I('v_mul_u32_u24 v6, 6912, v5\nv_lshlrev_b32 v7, 4, v3\nv_add_u32 v6, v6, v7\ns_lshl_b32 s37, s36, 8\nv_add_u32 v6, s37, v6')
    I('v_lshlrev_b32 v5, 1, v5')
    I('s_waitcnt lgkmcnt(0)')
    I(f's_mov_b32 s4, s26\ns_mov_b32 s5, s27\ns_mov_b32 s6, {WS_BYTES}\ns_mov_b32 s7, 0x20000')
    I('s_mov_b32 s8, s20\ns_mov_b32 s9, s21\ns_mov_b32 s10, 1152\ns_mov_b32 s11, 0x20000')
    I('s_mov_b32 s12, s22\ns_mov_b32 s13, s23\ns_mov_b32 s14, 3981312\ns_mov_b32 s15, 0x20000')
    def wloads():
        for i in range(4):
            I(f's_mov_b32 s38, {i*16*6912}')
            k.vm(f'buffer_load_dwordx4 {vr(16+4*i,4)}, v6, s[12:15], s38 offen')
    if not mlate: wloads()
    tc = None
    for i in range(4): tc = k.vm(f'buffer_load_ushort v{32+i}, v5, s[8:11], 0 offen offset:{i*32}')
    k.wait(tc)
    if mlate: wloads()
    k.stamp()
    for i in range(4): I(f'v_lshlrev_b32 v{32+i}, 16, v{32+i}')
    for i in range(4): I(f'v_mul_f32 v{36+i}, {f2u(-math.log2(math.e)):#x}, v{32+i}')
    for i in range(4): I(f'v_exp_f32 v{36+i}, v{36+i}')
    for i in range(4): I(f'v_add_f32 v{36+i}, 1.0, v{36+i}')
    for i in range(4): I(f'v_rcp_f32 v{36+i}, v{36+i}')
    for i in range(4): I(f'v_mul_f32 v{32+i}, v{32+i}, v{36+i}')
    for i in range(4): I(f'v_cvt_pk_bf16_f32 v{32+i}, v{32+i}, v{32+i}\nv_and_b32 v{32+i}, 0xffff0000, v{32+i}')
    for e in range(8): I(f'v_mov_b32 v{40+e}, 0')
    k.waitall(lg=False)
    for i in range(4):
        for d in range(4):
            I(f'v_lshlrev_b32 v48, 16, v{16+4*i+d}\nv_and_b32 v49, 0xffff0000, v{16+4*i+d}')
            I(f'v_fmac_f32 v{40+2*d}, v48, v{32+i}\nv_fmac_f32 v{40+2*d+1}, v49, v{32+i}')
    I('v_lshlrev_b32 v6, 9, v4\nv_lshlrev_b32 v7, 5, v3\nv_add_u32 v6, v6, v7')
    I('ds_write_b128 v6, v[40:43]\nds_write_b128 v6, v[44:47] offset:16')
    I('s_waitcnt lgkmcnt(0)\ns_barrier')
    I('v_cmp_gt_u32 vcc, 128, v0\nv_lshlrev_b32 v6, 2, v0\ns_nop 0\ns_and_saveexec_b64 s[42:43], vcc\ns_cbranch_execz L_prep_fin')
    for g in range(16): I(f'ds_read_b32 v{16+g}, v6 offset:{g*512}')
    I('s_waitcnt lgkmcnt(0)')
    for g in range(1, 16): I(f'v_add_f32 v16, v16, v{16+g}')
    I(f's_mul_i32 s37, s35, 13824\ns_lshl_b32 s38, s36, 9\ns_add_u32 s37, s37, s38\ns_add_u32 s37, s37, {OFF_MODP}')
    I('buffer_store_dword v16, v6, s[4:7], s37 offen')
    k.stamp(); k.stamp()
    I('s_branch L_prep_fin')
    k.label('L_kgen')
    k.st_n = 1
    k.cnt['vm'] = k.done['vm'] = 0; k.cnt['lg'] = k.done['lg'] = 0
    I(f's_sub_u32 s2, s2, {N_LN}')
    if xmap: I('s_and_b32 s34, s2, 7\ns_mul_i32 s34, s34, 72\ns_lshr_b32 s2, s2, 3\ns_add_u32 s2, s2, s34')
    I('s_load_dwordx2 s[8:9], s[0:1], 8\ns_load_dwordx2 s[12:13], s[0:1], 16\ns_load_dwordx2 s[16:17], s[0:1], 24\ns_load_dwordx2 s[28:29], s[0:1], 32\ns_load_dwordx2 s[20:21], s[0:1], 40')
    I('v_and_b32 v3, 15, v1\nv_lshrrev_b32 v4, 4, v1')
    I('v_and_b32 v6, 127, v0\nv_lshlrev_b32 v7, 1, v6\ns_lshl_b32 s35, s2, 8\nv_add_u32 v7, s35, v7')
    I('s_and_b32 s34, s2, 0xfffffffe\ns_lshl_b32 s34, s34, 1')
    I('s_waitcnt lgkmcnt(0)')
    I('s_load_dword s36, s[20:21], s34')
    I(f's_mov_b32 s4, s26\ns_mov_b32 s5, s27\ns_mov_b32 s6, {WS_BYTES}\ns_mov_b32 s7, 0x20000')
    for b in (8, 12, 16, 28): I(f's_mov_b32 s{b+2}, 147456\ns_mov_b32 s{b+3}, 0x20000')
    tp = None
    for a, b in enumerate((8, 12, 16, 28)): tp = k.vm(f'buffer_load_ushort v{16+a}, v7, s[{b}:{b+3}], 0 offen')
    if sent:
        for r in range(4): I(f'v_mov_b32 v{60+r}, -1')
        for rnd in range(2):
            I(f's_lshl_b32 s40, s2, 8\ns_add_u32 s40, s40, {rnd*147456}\nv_add_u32 v64, s40, v0')
            I('v_lshrrev_b32 v65, 10, v64\nv_bfe_u32 v66, v64, 9, 1\nv_add_u32 v66, v66, v65\nv_add_u32 v66, 6, v66\nv_and_b32 v66, 7, v66\nv_lshlrev_b32 v66, 13, v66')
            I('v_mul_u32_u24 v65, 73728, v65\nv_and_b32 v67, 511, v64\nv_lshlrev_b32 v67, 4, v67\nv_add_u32 v65, v65, v66\nv_add_u32 v65, v65, v67')
            I('s_mov_b32 s41, 262144\nv_cmp_gt_u32 vcc, s41, v64\ns_nop 1\nv_cndmask_b32 v65, -16, v65, vcc')
            I(f's_mov_b32 s41, {OFF_PART}\nbuffer_store_dwordx4 v[60:63], v65, s[4:7], s41 offen sc1')
    if sent: k.cnt['vm'] += 2
    L2E = f2u(math.log2(math.e))
    I('s_waitcnt lgkmcnt(0)')
    k.done['lg'] = k.cnt['lg']
    I('s_bitcmp1_b32 s2, 0\ns_cselect_b32 s53, 0, 16\ns_lshl_b32 s36, s36, s53\ns_and_b32 s36, s36, 0xffff0000')
    I(f'v_mov_b32 v10, s36\nv_mul_f32 v10, {L2E:#x}, v10\nv_exp_f32 v10, v10\ns_nop 0\nv_cvt_pk_bf16_f32 v10, v10, v10\nv_and_b32 v10, 0xffff0000, v10')
    I('v_lshlrev_b32 v11, 2, v6')
    k.wait(tp)
    k.stamp()
    AR, AI, CC, T0 = 20, 21, 22, 24
    for r in range(16, 20): I(f'v_lshlrev_b32 v{r}, 16, v{r}')
    I(f'v_mul_f32 v16, {L2E:#x}, v16\nv_exp_f32 v16, v16\ns_nop 0\nv_cvt_pk_bf16_f32 v16, v16, v16\nv_and_b32 v16, 0xffff0000, v16')
    I(f'v_mul_f32 v16, v16, v10\nv_mul_f32 v{AR}, {f2u(-math.log2(math.e)):#x}, v16')
    I(f'v_mul_f32 v17, v17, v10\nv_mul_f32 v{AI}, {f2u(1.0/(2*math.pi)):#x}, v17')
    I(f'v_mul_f32 v18, v18, v10\nv_mul_f32 v19, v19, v10\nv_add_f32 v{CC}, v18, v18\nv_add_f32 v{CC+1}, v19, v19')
    def direct(dst, p):
        I(f'v_mul_f32 v{T0}, {f2u(float(p)):#x}, v{AR}\nv_mul_f32 v{T0+1}, {f2u(float(p)):#x}, v{AI}')
        I(f'v_exp_f32 v{T0}, v{T0}\nv_fract_f32 v{T0+1}, v{T0+1}\ns_nop 0\nv_cos_f32 v{T0+2}, v{T0+1}\nv_sin_f32 v{T0+3}, v{T0+1}\ns_nop 0')
        I(f'v_mul_f32 v{dst}, v{T0}, v{T0+2}\nv_mul_f32 v{dst+1}, v{T0}, v{T0+3}')
    def cmul(dst, a, b):
        I(f'v_pk_mul_f32 {vr(dst,2)}, {vr(a,2)}, {vr(b,2)} op_sel:[0,0] op_sel_hi:[1,0]')
        I(f'v_pk_fma_f32 {vr(dst,2)}, {vr(a,2)}, {vr(b,2)}, {vr(dst,2)} op_sel:[1,1,0] op_sel_hi:[0,1,1] neg_lo:[1,0,0]')
    pp = [0]
    def put(base, row, src, neg):
        t = T0 + 4 + (pp[0] & 1); pp[0] += 1
        I(f'v_cvt_pk_bf16_f32 v{t}, v{src}, {"-" if neg else ""}v{src+1}')
        k.ds(f'ds_write_b32 v11, v{t} offset:{base + row*528}')
    Z, Z8, Z128, P0, P1, U0, U1 = 32, 46, 48, 50, 52, 54, 56
    I('s_cmp_ge_u32 s33, 2\ns_cbranch_scc1 L_kg_b')
    direct(Z, 1); direct(Z8, 8); direct(Z128, 128)
    I(f'v_mov_b32 v{P0}, 1.0\nv_mov_b32 v{P0+1}, 0')
    put(L_F, 0, P0, False); put(L_F, 1, Z8, False)
    cur = Z8
    for beta in range(2, 16):
        dst = P0 if cur != P0 else P1
        cmul(dst, cur, Z8); cur = dst
        put(L_F, beta, dst, False)
        if beta - 2 < 6: cmul(Z + 2*(beta-1), Z + 2*(beta-2), Z)
    cmul(U1, CC, Z128)
    for al, U in ((0, CC), (1, U1)):
        put(L_G, 8*al, U, True)
        for e in range(1, 8):
            dst = (P0, P1)[e & 1]
            cmul(dst, U, Z + 2*(e-1)); put(L_G, 8*al + e, dst, True)
    I('s_branch L_kg_done')
    k.label('L_kg_b')
    Z2, Z4, Z6 = Z, Z + 2, Z + 4
    direct(Z2, 2); direct(Z128, 128); direct(P0, 256)
    cmul(Z4, Z2, Z2); cmul(U0, CC, P0); cmul(Z6, Z4, Z2)
    Uc = U0; row = 16
    for al in range(2, 17):
        if al > 2:
            dst = U1 if Uc == U0 else U0
            cmul(dst, Uc, Z128); Uc = dst
        eps = (0, 2, 4, 6) if al < 4 else ((0, 4) if al < 8 else (0,))
        for e in eps:
            if e == 0: put(L_G, row, Uc, True)
            else:
                dst = (P0, P1)[row & 1]
                cmul(dst, Uc, {2: Z2, 4: Z4, 6: Z6}[e]); put(L_G, row, dst, True)
            row += 1
    k.label('L_kg_done')
    k.waitall(vm=False)
    I('s_barrier')
    k.stamp()
    I(f'v_mul_u32_u24 v12, 528, v3\nv_lshlrev_b32 v13, 4, v4\nv_add_u32 v12, v12, v13')
    I(f's_mul_i32 s52, s33, {16*528}\ns_add_u32 s52, s52, {L_G}\nv_add_u32 v13, s52, v12')
    I('s_cmp_lt_u32 s33, 3\ns_cbranch_scc0 L_nomm')
    at = []
    for s in range(8):
        I(f'ds_read_b128 {vr(32+8*s,4)}, v13 offset:{s*64}\nds_read_b128 {vr(36+8*s,4)}, v12 offset:{L_F + s*64}')
    for s in range(8):
        I(f's_waitcnt lgkmcnt({14 - 2*s})')
        I(f'v_mfma_f32_16x16x32_bf16 v[96:99], {vr(32+8*s,4)}, {vr(36+8*s,4)}, {"0" if s == 0 else "v[96:99]"}')
    k.label('L_nomm')
    I('s_barrier')
    I('v_lshlrev_b32 v9, 4, v3')
    I('s_cmp_lt_u32 s33, 3\ns_cbranch_scc0 L_notab')
    I('s_cmp_eq_u32 s33, 1\ns_cbranch_scc1 L_tab1\ns_cmp_eq_u32 s33, 2\ns_cbranch_scc1 L_tab2')
    def tput(addr, r, off):
        I(f'v_cvt_pk_bf16_f32 v{24+r}, v{96+r}, v{96+r}')
        I(f'ds_write_b16 v{addr}, v{24+r} offset:{TB + off}')
    I('v_lshrrev_b32 v14, 1, v4\nv_lshlrev_b32 v14, 8, v14\nv_and_b32 v15, 1, v4\nv_lshlrev_b32 v15, 3, v15\nv_add_u32 v14, v14, v15\nv_add_u32 v14, v14, v9')
    for r in range(4): tput(14, r, 2*r)
    I('s_branch L_notab')
    k.label('L_tab1')
    I('v_cmp_gt_u32 vcc, 2, v4\nv_lshlrev_b32 v14, 8, v4\nv_add_u32 v14, 512, v14\nv_lshlrev_b32 v15, 9, v4')
    I('v_cndmask_b32 v14, v15, v14, vcc\nv_add_u32 v14, v14, v9')
    for r in range(4):
        lo, hi = 4*r, 256*(r >> 1) + 8*(r & 1)
        I(f'v_mov_b32 v15, {hi}\nv_cndmask_b32 v15, v15, {lo}, vcc\nv_add_u32 v15, v15, v14')
        tput(15, r, 0)
    I('s_branch L_notab')
    k.label('L_tab2')
    for r in range(4):
        I(f'v_lshlrev_b32 v14, 2, v4\nv_add_u32 v14, {8 + r}, v14\nv_min_u32 v14, 17, v14\nv_lshlrev_b32 v14, 8, v14\nv_add_u32 v14, v14, v9')
        tput(14, r, 0)
    k.label('L_notab')
    I(f'v_mov_b32 v14, {L_F}\nv_mov_b32 v24, 0\nv_mov_b32 v25, 0\nv_cmp_eq_u32 vcc, 192, v0\ns_nop 1\ns_and_saveexec_b64 s[42:43], vcc')
    I('ds_write_b64 v14, v[24:25]')
    I('s_mov_b64 exec, s[42:43]')
    I('s_waitcnt lgkmcnt(0)\ns_barrier')
    k.stamp()
    I('v_lshlrev_b32 v14, 4, v0\nv_add_u32 v14, 14, v14\nv_cvt_f32_i32 v14, v14')
    I(f'v_mov_b32 v15, {TB}')
    X = 32
    for j in range(0, 8, 2):
        I(f'v_add_f32 v24, {f2u(-2.0*j):#x}, v14' if j else 'v_mov_b32 v24, v14')
        I(f'v_add_f32 v25, {f2u(-2.0*(j+1)):#x}, v14')
        I('v_cvt_pk_bf16_f32 v26, v24, v25\nv_lshlrev_b32 v24, 16, v26\nv_and_b32 v25, 0xffff0000, v26')
        I('v_cvt_i32_f32 v24, v24\nv_cvt_i32_f32 v25, v25\nv_add_u32 v24, v24, v15\nv_add_u32 v25, v25, v15')
        I(f'ds_read_u16 v{X+j}, v24')
        I(f'ds_read_u16 v{X+j+1}, v25')
    I(f's_mul_i32 s40, s2, {KG_PITCH}\ns_add_u32 s40, s40, {OFF_KG}')
    I('v_sub_u32 v9, 255, v0\nv_lshlrev_b32 v9, 4, v9')
    for r in range(4): I(f'v_mov_b32 v{44+r}, 0')
    I('v_lshlrev_b32 v12, 4, v0\nv_cmp_gt_u32 vcc, 16, v0')
    I('s_waitcnt lgkmcnt(0)')
    for d in range(4): I(f'v_lshl_or_b32 v{48+d}, v{X+2*d+1}, 16, v{X+2*d}')
    I(f'buffer_store_dwordx4 v[48:51], v9, s[4:7], s40 offen {stf}')
    I('s_and_saveexec_b64 s[42:43], vcc\ns_add_u32 s41, s40, 4096')
    I('buffer_store_dwordx4 v[44:47], v12, s[4:7], s41 offen')
    I('s_mov_b64 exec, s[42:43]')
    k.stamp()
    k.label('L_prep_fin')
    I('s_waitcnt vmcnt(0)')
    k.st_n = 4; k.stamp()
    if stamps: I('s_mov_b32 s2, s59')
    k.stamp_store('s[4:7]', nmax=5)
    k.label('L_prep_end')
    I('s_endpgm')
    for e in hazards(k.lines, 'prep'): print('HAZARD', e)
    return k, LDS_BYTES
if __name__ == '__main__':
    k, lds = build(); print(len(k.lines), lds)
```

```python
from asmlib import Kern, hazards
from layout import *
import struct, math
def vr(a, n): return f'v[{a}:{a+n-1}]'
f2u = lambda x: struct.unpack('<I', struct.pack('<f', x))[0]
N_LN, N_KG, N_MOD = 64, 576, 243
GRID = N_LN + N_KG + N_MOD
L_F = 0
L_G = 16 * 528
TB = L_F + 8
TP = 1184
T_BYTES = 32 * TP + 384
LDS_BYTES = max(T_BYTES, 64 * 528, 8192)

def build(stamps=False, prio=True, xmap=True, sent=False, stf='', mlate=True, bal=True):
    k = Kern('prep_kernel', 128, 96)
    I = k.I
    k.stamp_init(stamps, 64, OFF_DBG + 0x20000)
    I(f's_cmp_ge_u32 s2, {GRID}\ns_cbranch_scc1 L_prep_end')
    I('s_load_dwordx2 s[26:27], s[0:1], 128')
    k.stamp()
    if stamps: I('s_mov_b32 s59, s2')
    I('v_and_b32 v1, 63, v0\nv_lshrrev_b32 v2, 6, v0')
    I('s_nop 0\nv_readfirstlane_b32 s33, v2')
    if not bal:
        I(f's_cmp_ge_u32 s2, {N_LN + N_KG}\ns_cbranch_scc1 L_mod')
        I(f's_cmp_ge_u32 s2, {N_LN}\ns_cbranch_scc1 L_kgen')
    else:
        I('s_lshr_b32 s34, s2, 3\ns_and_b32 s35, s2, 7')
        I('s_cmp_lt_u32 s34, 8\ns_cbranch_scc1 L_ln')
        I('s_sub_u32 s36, s34, 8\ns_cmp_lt_u32 s34, 64\ns_cbranch_scc1 L_kmap')
        I('s_sub_u32 s36, s34, 16\ns_sub_u32 s37, s34, 72\ns_cmp_lt_u32 s37, 16\ns_cbranch_scc1 L_kmap')
        I('s_sub_u32 s36, s34, 64\ns_sub_u32 s37, s34, 80\ns_cmp_lt_u32 s34, 72\ns_cselect_b32 s36, s36, s37')
        I(f's_lshl_b32 s36, s36, 3\ns_add_u32 s36, s36, s35\ns_add_u32 s2, s36, {N_LN + N_KG}\ns_branch L_mod')
        k.label('L_kmap')
        I(f's_lshl_b32 s36, s36, 3\ns_add_u32 s36, s36, s35\ns_add_u32 s2, s36, {N_LN}\ns_branch L_kgen')
        k.label('L_ln')
    I('s_load_dwordx2 s[20:21], s[0:1], 0')
    if prio: I('s_setprio 3')
    I('v_lshrrev_b32 v3, 3, v0\nv_and_b32 v4, 7, v0')
    I('s_lshl_b32 s34, s2, 5\nv_add_u32 v5, s34, v3\nv_mul_u32_u24 v5, 1152, v5\nv_lshlrev_b32 v6, 4, v4\nv_add_u32 v5, v5, v6')
    I('s_waitcnt lgkmcnt(0)')
    I(f's_mov_b32 s4, s26\ns_mov_b32 s5, s27\ns_mov_b32 s6, {WS_BYTES}\ns_mov_b32 s7, 0x20000')
    I('s_mov_b32 s8, s20\ns_mov_b32 s9, s21\ns_mov_b32 s10, 2359296\ns_mov_b32 s11, 0x20000')
    U, X = 16, 52
    tk = [k.vm(f'buffer_load_dwordx4 {vr(U+4*m,4)}, v5, s[8:11], 0 offen offset:{m*128}') for m in range(9)]
    I(f'v_mul_u32_u24 v7, {TP}, v3\nv_lshrrev_b32 v8, 3, v3\nv_lshlrev_b32 v8, 7, v8\nv_add_u32 v7, v7, v8\nv_add_u32 v7, v7, v6')
    I('v_mov_b32 v10, 0\nv_mov_b32 v11, 0')
    for m in range(9):
        k.wait(tk[m])
        k.ds(f'ds_write_b128 v7, {vr(U+4*m,4)} offset:{m*128}')
        for d in range(4):
            I(f'v_lshlrev_b32 v{X+8*m+2*d}, 16, v{U+4*m+d}\nv_and_b32 v{X+8*m+2*d+1}, 0xffff0000, v{U+4*m+d}')
        for d in range(4): I(f'v_pk_add_f32 v[10:11], v[10:11], {vr(X+8*m+2*d,2)}')
    k.stamp()
    I('v_lshrrev_b32 v3, 4, v1\nv_and_b32 v4, 15, v1\nv_lshrrev_b32 v5, 2, v4\nv_and_b32 v6, 3, v1')
    I(f'v_lshlrev_b32 v14, 3, v3\nv_add_u32 v14, v14, v5\nv_mul_u32_u24 v14, {TP}, v14\nv_lshlrev_b32 v8, 7, v3\nv_add_u32 v14, v14, v8')
    I('v_lshlrev_b32 v8, 3, v6\nv_add_u32 v14, v14, v8\ns_mul_i32 s35, s33, 288\nv_add_u32 v14, s35, v14')
    I('s_mul_i32 s35, s33, 144\nv_add_u32 v8, s35, v4\nv_lshlrev_b32 v8, 6, v8\nv_lshlrev_b32 v9, 4, v3\nv_add_u32 v8, v8, v9\ns_mul_i32 s35, s2, 36864\nv_add_u32 v8, s35, v8')
    def transposed(arr, off, rb):
        tks = []
        for i in range(9):
            k.ds(f'ds_read_b64_tr_b16 {vr(rb+4*i,2)}, v14 offset:{i*32}')
            tks.append(k.ds(f'ds_read_b64_tr_b16 {vr(rb+4*i+2,2)}, v14 offset:{i*32 + 4*TP}'))
        return tks
    def stores(tks, off, rb):
        for i in range(9):
            k.wait(tks[i])
            I(f's_mov_b32 s36, {off + i*1024}')
            k.vm(f'buffer_store_dwordx4 {vr(rb+4*i,4)}, v8, s[4:7], s36 offen {stf}')
    k.waitall(vm=False)
    I('s_barrier')
    tks = transposed(0, OFF_UT, U)
    def red8(reg):
        I(f's_nop 1\nv_add_f32_dpp v{reg}, v{reg}, v{reg} quad_perm:[1,0,3,2] row_mask:0xf bank_mask:0xf')
        I(f's_nop 1\nv_add_f32_dpp v{reg}, v{reg}, v{reg} quad_perm:[2,3,0,1] row_mask:0xf bank_mask:0xf')
        I(f's_nop 1\nv_add_f32_dpp v{reg}, v{reg}, v{reg} row_half_mirror row_mask:0xf bank_mask:0xf')
    I('v_add_f32 v10, v10, v11')
    red8(10)
    I(f'v_mul_f32 v10, {f2u(-1.0/576):#x}, v10\nv_mov_b32 v12, 0\nv_mov_b32 v11, v10\nv_mov_b32 v13, 0')
    utks = tks
    for e in range(36): I(f'v_pk_add_f32 {vr(X+2*e,2)}, {vr(X+2*e,2)}, v[10:11]')
    for e in range(36): I(f'v_pk_fma_f32 v[12:13], {vr(X+2*e,2)}, {vr(X+2*e,2)}, v[12:13]')
    I('v_add_f32 v12, v12, v13')
    red8(12)
    I(f'v_mul_f32 v12, {f2u(1.0/576):#x}, v12\nv_add_f32 v12, {f2u(1e-5):#x}, v12\nv_rsq_f32 v12, v12\ns_nop 0\nv_mov_b32 v13, v12')
    for e in range(36):
        I(f'v_pk_mul_f32 {vr(X+2*e,2)}, {vr(X+2*e,2)}, v[12:13]')
        I(f'v_cvt_pk_bf16_f32 v{X+e}, v{X+2*e}, v{X+2*e+1}')
    k.waitall(vm=False)
    I('s_barrier')
    for m in range(9): k.ds(f'ds_write_b128 v7, {vr(X+4*m,4)} offset:{m*128}')
    k.waitall(vm=False)
    I('s_barrier')
    k.stamp()
    tks = transposed(1, OFF_NT, X + 36)
    stores(tks, OFF_NT, X + 36)
    stores(utks, OFF_UT, U)
    k.stamp()
    I('s_branch L_prep_fin')
    k.st_n = 1
    k.label('L_mod')
    I('s_load_dwordx2 s[20:21], s[0:1], 96\ns_load_dwordx2 s[22:23], s[0:1], 104')
    I(f's_sub_u32 s34, s2, {N_LN + N_KG}\ns_mul_i32 s35, s34, 2428\ns_lshr_b32 s35, s35, 16\ns_mul_i32 s36, s35, 27\ns_sub_u32 s36, s34, s36')
    I('v_and_b32 v3, 15, v0\nv_lshrrev_b32 v4, 4, v0')
    I('s_lshl_b32 s37, s35, 6\nv_add_u32 v5, s37, v4')
    I('v_mul_u32_u24 v6, 6912, v5\nv_lshlrev_b32 v7, 4, v3\nv_add_u32 v6, v6, v7\ns_lshl_b32 s37, s36, 8\nv_add_u32 v6, s37, v6')
    I('v_lshlrev_b32 v5, 1, v5')
    I('s_waitcnt lgkmcnt(0)')
    I(f's_mov_b32 s4, s26\ns_mov_b32 s5, s27\ns_mov_b32 s6, {WS_BYTES}\ns_mov_b32 s7, 0x20000')
    I('s_mov_b32 s8, s20\ns_mov_b32 s9, s21\ns_mov_b32 s10, 1152\ns_mov_b32 s11, 0x20000')
    I('s_mov_b32 s12, s22\ns_mov_b32 s13, s23\ns_mov_b32 s14, 3981312\ns_mov_b32 s15, 0x20000')
    def wloads():
        for i in range(4):
            I(f's_mov_b32 s38, {i*16*6912}')
            k.vm(f'buffer_load_dwordx4 {vr(16+4*i,4)}, v6, s[12:15], s38 offen')
    if not mlate: wloads()
    tc = None
    for i in range(4): tc = k.vm(f'buffer_load_ushort v{32+i}, v5, s[8:11], 0 offen offset:{i*32}')
    k.wait(tc)
    if mlate: wloads()
    k.stamp()
    for i in range(4): I(f'v_lshlrev_b32 v{32+i}, 16, v{32+i}')
    for i in range(4): I(f'v_mul_f32 v{36+i}, {f2u(-math.log2(math.e)):#x}, v{32+i}')
    for i in range(4): I(f'v_exp_f32 v{36+i}, v{36+i}')
    for i in range(4): I(f'v_add_f32 v{36+i}, 1.0, v{36+i}')
    for i in range(4): I(f'v_rcp_f32 v{36+i}, v{36+i}')
    for i in range(4): I(f'v_mul_f32 v{32+i}, v{32+i}, v{36+i}')
    for i in range(4): I(f'v_cvt_pk_bf16_f32 v{32+i}, v{32+i}, v{32+i}\nv_and_b32 v{32+i}, 0xffff0000, v{32+i}')
    for e in range(8): I(f'v_mov_b32 v{40+e}, 0')
    k.waitall(lg=False)
    for i in range(4):
        for d in range(4):
            I(f'v_lshlrev_b32 v48, 16, v{16+4*i+d}\nv_and_b32 v49, 0xffff0000, v{16+4*i+d}')
            I(f'v_fmac_f32 v{40+2*d}, v48, v{32+i}\nv_fmac_f32 v{40+2*d+1}, v49, v{32+i}')
    I('v_lshlrev_b32 v6, 9, v4\nv_lshlrev_b32 v7, 5, v3\nv_add_u32 v6, v6, v7')
    I('ds_write_b128 v6, v[40:43]\nds_write_b128 v6, v[44:47] offset:16')
    I('s_waitcnt lgkmcnt(0)\ns_barrier')
    I('v_cmp_gt_u32 vcc, 128, v0\nv_lshlrev_b32 v6, 2, v0\ns_nop 0\ns_and_saveexec_b64 s[42:43], vcc\ns_cbranch_execz L_prep_fin')
    for g in range(16): I(f'ds_read_b32 v{16+g}, v6 offset:{g*512}')
    I('s_waitcnt lgkmcnt(0)')
    for g in range(1, 16): I(f'v_add_f32 v16, v16, v{16+g}')
    I(f's_mul_i32 s37, s35, 13824\ns_lshl_b32 s38, s36, 9\ns_add_u32 s37, s37, s38\ns_add_u32 s37, s37, {OFF_MODP}')
    I('buffer_store_dword v16, v6, s[4:7], s37 offen')
    k.stamp(); k.stamp()
    I('s_branch L_prep_fin')
    k.label('L_kgen')
    k.st_n = 1
    k.cnt['vm'] = k.done['vm'] = 0; k.cnt['lg'] = k.done['lg'] = 0
    I(f's_sub_u32 s2, s2, {N_LN}')
    if xmap: I('s_and_b32 s34, s2, 7\ns_mul_i32 s34, s34, 72\ns_lshr_b32 s2, s2, 3\ns_add_u32 s2, s2, s34')
    I('s_load_dwordx2 s[8:9], s[0:1], 8\ns_load_dwordx2 s[12:13], s[0:1], 16\ns_load_dwordx2 s[16:17], s[0:1], 24\ns_load_dwordx2 s[28:29], s[0:1], 32\ns_load_dwordx2 s[20:21], s[0:1], 40')
    I('v_and_b32 v3, 15, v1\nv_lshrrev_b32 v4, 4, v1')
    I('v_and_b32 v6, 127, v0\nv_lshlrev_b32 v7, 1, v6\ns_lshl_b32 s35, s2, 8\nv_add_u32 v7, s35, v7')
    I('s_and_b32 s34, s2, 0xfffffffe\ns_lshl_b32 s34, s34, 1')
    I('s_waitcnt lgkmcnt(0)')
    I('s_load_dword s36, s[20:21], s34')
    I(f's_mov_b32 s4, s26\ns_mov_b32 s5, s27\ns_mov_b32 s6, {WS_BYTES}\ns_mov_b32 s7, 0x20000')
    for b in (8, 12, 16, 28): I(f's_mov_b32 s{b+2}, 147456\ns_mov_b32 s{b+3}, 0x20000')
    tp = None
    for a, b in enumerate((8, 12, 16, 28)): tp = k.vm(f'buffer_load_ushort v{16+a}, v7, s[{b}:{b+3}], 0 offen')
    if sent:
        for r in range(4): I(f'v_mov_b32 v{60+r}, -1')
        for rnd in range(2):
            I(f's_lshl_b32 s40, s2, 8\ns_add_u32 s40, s40, {rnd*147456}\nv_add_u32 v64, s40, v0')
            I('v_lshrrev_b32 v65, 10, v64\nv_bfe_u32 v66, v64, 9, 1\nv_add_u32 v66, v66, v65\nv_add_u32 v66, 6, v66\nv_and_b32 v66, 7, v66\nv_lshlrev_b32 v66, 13, v66')
            I('v_mul_u32_u24 v65, 73728, v65\nv_and_b32 v67, 511, v64\nv_lshlrev_b32 v67, 4, v67\nv_add_u32 v65, v65, v66\nv_add_u32 v65, v65, v67')
            I('s_mov_b32 s41, 262144\nv_cmp_gt_u32 vcc, s41, v64\ns_nop 1\nv_cndmask_b32 v65, -16, v65, vcc')
            I(f's_mov_b32 s41, {OFF_PART}\nbuffer_store_dwordx4 v[60:63], v65, s[4:7], s41 offen sc1')
    if sent: k.cnt['vm'] += 2
    L2E = f2u(math.log2(math.e))
    I('s_waitcnt lgkmcnt(0)')
    k.done['lg'] = k.cnt['lg']
    I('s_bitcmp1_b32 s2, 0\ns_cselect_b32 s53, 0, 16\ns_lshl_b32 s36, s36, s53\ns_and_b32 s36, s36, 0xffff0000')
    I(f'v_mov_b32 v10, s36\nv_mul_f32 v10, {L2E:#x}, v10\nv_exp_f32 v10, v10\ns_nop 0\nv_cvt_pk_bf16_f32 v10, v10, v10\nv_and_b32 v10, 0xffff0000, v10')
    I('v_lshlrev_b32 v11, 2, v6')
    k.wait(tp)
    k.stamp()
    AR, AI, CC, T0 = 20, 21, 22, 24
    for r in range(16, 20): I(f'v_lshlrev_b32 v{r}, 16, v{r}')
    I(f'v_mul_f32 v16, {L2E:#x}, v16\nv_exp_f32 v16, v16\ns_nop 0\nv_cvt_pk_bf16_f32 v16, v16, v16\nv_and_b32 v16, 0xffff0000, v16')
    I(f'v_mul_f32 v16, v16, v10\nv_mul_f32 v{AR}, {f2u(-math.log2(math.e)):#x}, v16')
    I(f'v_mul_f32 v17, v17, v10\nv_mul_f32 v{AI}, {f2u(1.0/(2*math.pi)):#x}, v17')
    I(f'v_mul_f32 v18, v18, v10\nv_mul_f32 v19, v19, v10\nv_add_f32 v{CC}, v18, v18\nv_add_f32 v{CC+1}, v19, v19')
    def direct(dst, p):
        I(f'v_mul_f32 v{T0}, {f2u(float(p)):#x}, v{AR}\nv_mul_f32 v{T0+1}, {f2u(float(p)):#x}, v{AI}')
        I(f'v_exp_f32 v{T0}, v{T0}\nv_fract_f32 v{T0+1}, v{T0+1}\ns_nop 0\nv_cos_f32 v{T0+2}, v{T0+1}\nv_sin_f32 v{T0+3}, v{T0+1}\ns_nop 0')
        I(f'v_mul_f32 v{dst}, v{T0}, v{T0+2}\nv_mul_f32 v{dst+1}, v{T0}, v{T0+3}')
    def cmul(dst, a, b):
        I(f'v_pk_mul_f32 {vr(dst,2)}, {vr(a,2)}, {vr(b,2)} op_sel:[0,0] op_sel_hi:[1,0]')
        I(f'v_pk_fma_f32 {vr(dst,2)}, {vr(a,2)}, {vr(b,2)}, {vr(dst,2)} op_sel:[1,1,0] op_sel_hi:[0,1,1] neg_lo:[1,0,0]')
    pp = [0]
    def put(base, row, src, neg):
        t = T0 + 4 + (pp[0] & 1); pp[0] += 1
        I(f'v_cvt_pk_bf16_f32 v{t}, v{src}, {"-" if neg else ""}v{src+1}')
        k.ds(f'ds_write_b32 v11, v{t} offset:{base + row*528}')
    Z, Z8, Z128, P0, P1, U0, U1 = 32, 46, 48, 50, 52, 54, 56
    I('s_cmp_ge_u32 s33, 2\ns_cbranch_scc1 L_kg_b')
    direct(Z, 1); direct(Z8, 8); direct(Z128, 128)
    I(f'v_mov_b32 v{P0}, 1.0\nv_mov_b32 v{P0+1}, 0')
    put(L_F, 0, P0, False); put(L_F, 1, Z8, False)
    cur = Z8
    for beta in range(2, 16):
        dst = P0 if cur != P0 else P1
        cmul(dst, cur, Z8); cur = dst
        put(L_F, beta, dst, False)
        if beta - 2 < 6: cmul(Z + 2*(beta-1), Z + 2*(beta-2), Z)
    cmul(U1, CC, Z128)
    for al, U in ((0, CC), (1, U1)):
        put(L_G, 8*al, U, True)
        for e in range(1, 8):
            dst = (P0, P1)[e & 1]
            cmul(dst, U, Z + 2*(e-1)); put(L_G, 8*al + e, dst, True)
    I('s_branch L_kg_done')
    k.label('L_kg_b')
    Z2, Z4, Z6 = Z, Z + 2, Z + 4
    direct(Z2, 2); direct(Z128, 128); direct(P0, 256)
    cmul(Z4, Z2, Z2); cmul(U0, CC, P0); cmul(Z6, Z4, Z2)
    Uc = U0; row = 16
    for al in range(2, 17):
        if al > 2:
            dst = U1 if Uc == U0 else U0
            cmul(dst, Uc, Z128); Uc = dst
        eps = (0, 2, 4, 6) if al < 4 else ((0, 4) if al < 8 else (0,))
        for e in eps:
            if e == 0: put(L_G, row, Uc, True)
            else:
                dst = (P0, P1)[row & 1]
                cmul(dst, Uc, {2: Z2, 4: Z4, 6: Z6}[e]); put(L_G, row, dst, True)
            row += 1
    k.label('L_kg_done')
    k.waitall(vm=False)
    I('s_barrier')
    k.stamp()
    I(f'v_mul_u32_u24 v12, 528, v3\nv_lshlrev_b32 v13, 4, v4\nv_add_u32 v12, v12, v13')
    I(f's_mul_i32 s52, s33, {16*528}\ns_add_u32 s52, s52, {L_G}\nv_add_u32 v13, s52, v12')
    I('s_cmp_lt_u32 s33, 3\ns_cbranch_scc0 L_nomm')
    at = []
    for s in range(8):
        I(f'ds_read_b128 {vr(32+8*s,4)}, v13 offset:{s*64}\nds_read_b128 {vr(36+8*s,4)}, v12 offset:{L_F + s*64}')
    for s in range(8):
        I(f's_waitcnt lgkmcnt({14 - 2*s})')
        I(f'v_mfma_f32_16x16x32_bf16 v[96:99], {vr(32+8*s,4)}, {vr(36+8*s,4)}, {"0" if s == 0 else "v[96:99]"}')
    k.label('L_nomm')
    I('s_barrier')
    I('v_lshlrev_b32 v9, 4, v3')
    I('s_cmp_lt_u32 s33, 3\ns_cbranch_scc0 L_notab')
    I('s_cmp_eq_u32 s33, 1\ns_cbranch_scc1 L_tab1\ns_cmp_eq_u32 s33, 2\ns_cbranch_scc1 L_tab2')
    def tput(addr, r, off):
        I(f'v_cvt_pk_bf16_f32 v{24+r}, v{96+r}, v{96+r}')
        I(f'ds_write_b16 v{addr}, v{24+r} offset:{TB + off}')
    I('v_lshrrev_b32 v14, 1, v4\nv_lshlrev_b32 v14, 8, v14\nv_and_b32 v15, 1, v4\nv_lshlrev_b32 v15, 3, v15\nv_add_u32 v14, v14, v15\nv_add_u32 v14, v14, v9')
    for r in range(4): tput(14, r, 2*r)
    I('s_branch L_notab')
    k.label('L_tab1')
    I('v_cmp_gt_u32 vcc, 2, v4\nv_lshlrev_b32 v14, 8, v4\nv_add_u32 v14, 512, v14\nv_lshlrev_b32 v15, 9, v4')
    I('v_cndmask_b32 v14, v15, v14, vcc\nv_add_u32 v14, v14, v9')
    for r in range(4):
        lo, hi = 4*r, 256*(r >> 1) + 8*(r & 1)
        I(f'v_mov_b32 v15, {hi}\nv_cndmask_b32 v15, v15, {lo}, vcc\nv_add_u32 v15, v15, v14')
        tput(15, r, 0)
    I('s_branch L_notab')
    k.label('L_tab2')
    for r in range(4):
        I(f'v_lshlrev_b32 v14, 2, v4\nv_add_u32 v14, {8 + r}, v14\nv_min_u32 v14, 17, v14\nv_lshlrev_b32 v14, 8, v14\nv_add_u32 v14, v14, v9')
        tput(14, r, 0)
    k.label('L_notab')
    I(f'v_mov_b32 v14, {L_F}\nv_mov_b32 v24, 0\nv_mov_b32 v25, 0\nv_cmp_eq_u32 vcc, 192, v0\ns_nop 1\ns_and_saveexec_b64 s[42:43], vcc')
    I('ds_write_b64 v14, v[24:25]')
    I('s_mov_b64 exec, s[42:43]')
    I('s_waitcnt lgkmcnt(0)\ns_barrier')
    k.stamp()
    I('v_lshlrev_b32 v14, 4, v0\nv_add_u32 v14, 14, v14\nv_cvt_f32_i32 v14, v14')
    I(f'v_mov_b32 v15, {TB}')
    X = 32
    for j in range(0, 8, 2):
        I(f'v_add_f32 v24, {f2u(-2.0*j):#x}, v14' if j else 'v_mov_b32 v24, v14')
        I(f'v_add_f32 v25, {f2u(-2.0*(j+1)):#x}, v14')
        I('v_cvt_pk_bf16_f32 v26, v24, v25\nv_lshlrev_b32 v24, 16, v26\nv_and_b32 v25, 0xffff0000, v26')
        I('v_cvt_i32_f32 v24, v24\nv_cvt_i32_f32 v25, v25\nv_add_u32 v24, v24, v15\nv_add_u32 v25, v25, v15')
        I(f'ds_read_u16 v{X+j}, v24')
        I(f'ds_read_u16 v{X+j+1}, v25')
    I(f's_mul_i32 s40, s2, {KG_PITCH}\ns_add_u32 s40, s40, {OFF_KG}')
    I('v_sub_u32 v9, 255, v0\nv_lshlrev_b32 v9, 4, v9')
    for r in range(4): I(f'v_mov_b32 v{44+r}, 0')
    I('v_lshlrev_b32 v12, 4, v0\nv_cmp_gt_u32 vcc, 16, v0')
    I('s_waitcnt lgkmcnt(0)')
    for d in range(4): I(f'v_lshl_or_b32 v{48+d}, v{X+2*d+1}, 16, v{X+2*d}')
    I(f'buffer_store_dwordx4 v[48:51], v9, s[4:7], s40 offen {stf}')
    I('s_and_saveexec_b64 s[42:43], vcc\ns_add_u32 s41, s40, 4096')
    I('buffer_store_dwordx4 v[44:47], v12, s[4:7], s41 offen')
    I('s_mov_b64 exec, s[42:43]')
    k.stamp()
    k.label('L_prep_fin')
    I('s_waitcnt vmcnt(0)')
    k.st_n = 4; k.stamp()
    if stamps: I('s_mov_b32 s2, s59')
    k.stamp_store('s[4:7]', nmax=5)
    k.label('L_prep_end')
    I('s_endpgm')
    for e in hazards(k.lines, 'prep'): print('HAZARD', e)
    return k, LDS_BYTES
if __name__ == '__main__':
    k, lds = build(); print(len(k.lines), lds)
```

```python
from asmlib import Kern, hazards
from layout import *
import math

SLOT = 24576
PAR_G2 = 6 * SLOT
PAR_B1 = PAR_G2 + 4608
STATS1 = PAR_G2 + 6912
STATS2 = STATS1 + 1024
XS = PAR_G2
LDS_BYTES = max(STATS2 + 1024, XS + 9216)


V_TID, V_LANE = 0, 1
V_T0 = 2
V_DMA, V_DMA2 = 3, 4
V_RD = (5, 6, 7)
V_BIAS, V_ST, V_C1, V_C2, V_FR, V_HW = 8, 9, 10, 11, 12, 13
V_TL, V_Q = 14, 15
V_TMP = 16
V_G = 24
V_B4 = 36
V_PK = 40
V_A = 44
V_ACC = (56, 64)
V_H = 76
V_BF = 112
S_WS, S_W1, S_W2, S_CUR, S_B1 = 4, 8, 12, 16, 28
S_W, S_M, S_P, S_IT, S_OFF, S_D, S_G2, S_B, S_WK, S_T, S_ST, S_STN, S_IDX = 33, 34, 35, 36, 37, 38, 39, 40, 41, 42, 43, 44, 45

def vr(a, n): return f'v[{a}:{a+n-1}]'
def sr(a, n): return f's[{a}:{a+n-1}]'

def build(store_flags='', prefetch=True, stamps=False, no_gelu=False, no_dma=False, no_bar=False, no_mfma=False, no_tr=False, prio=None, nF=2, LA=2, inter=False, stagger=False, pf_late=True, fine=False, classes=False, lean=True, wts=(1.0, 1.0), cls_prio=None, ikr=False, pk=False, dmaf='', dbgout=False, sent=False, rot=False, wlate=True, wspread=True):
    k = Kern('mlp_kernel', 256, 96)
    I = k.I
    nst = [0]
    def stamp():
        if stamps:
            I(f's_memrealtime s[{64+2*nst[0]}:{65+2*nst[0]}]')
            if not fine: I(f's_memtime s[{80+2*nst[0]}:{81+2*nst[0]}]')
            nst[0] += 1
    I('s_cmp_ge_u32 s2, 256\ns_cbranch_scc1 L_mlp_end')
    I('s_load_dwordx2 s[20:21], s[0:1], 64\ns_load_dwordx2 s[22:23], s[0:1], 72\ns_load_dwordx2 s[24:25], s[0:1], 80\ns_load_dwordx2 s[26:27], s[0:1], 128')
    if ikr:
        store_flags = 'sc1'
        pass
    stamp()
    I(f'v_and_b32 v{V_LANE}, 63, v0\nv_lshrrev_b32 v{V_T0}, 6, v0')
    lg = {1: 0, 2: 1, 4: 2, 8: 3}[nF]
    I(f's_and_b32 s46, s2, 7\ns_lshr_b32 s47, s2, 3')
    I(f's_and_b32 s{S_P}, s46, {8//nF - 1}\ns_lshl_b32 s{S_P}, s{S_P}, {lg}\ns_and_b32 s48, s47, {nF - 1}\ns_add_u32 s{S_P}, s{S_P}, s48')
    I(f's_lshr_b32 s{S_M}, s46, {3 - lg}\ns_mul_i32 s{S_M}, s{S_M}, {32//nF}\ns_lshr_b32 s48, s47, {lg}\ns_add_u32 s{S_M}, s{S_M}, s48')
    I(f'v_readfirstlane_b32 s{S_W}, v{V_T0}')
    I(f'v_and_b32 v{V_TL}, 15, v{V_LANE}\nv_lshrrev_b32 v{V_Q}, 4, v{V_LANE}')
    t = V_TMP
    I(f'v_lshrrev_b32 v{t}, 3, v{V_LANE}')
    I(f'v_and_b32 v{t+1}, 7, v{V_LANE}')
    I(f'v_and_b32 v{t+2}, 2, v{t}')
    I(f's_and_b32 s46, s{S_W}, 1\ns_lshl_b32 s46, s46, 2')
    I(f'v_or_b32 v{t+2}, s46, v{t+2}')
    I(f'v_xor_b32 v{t+1}, v{t+1}, v{t+2}')
    I(f'v_lshlrev_b32 v{t+1}, 4, v{t+1}')
    I(f's_lshl_b32 s47, s{S_W}, 3')
    I(f'v_add_u32 v{t}, s47, v{t}')
    I(f'v_lshlrev_b32 v{t+3}, 7, v{t}\nv_add_u32 v{V_T0}, v{t+3}, v{t+1}')
    I(f'v_mul_u32_u24 v{t+3}, 9216, v{t}\nv_add_u32 v{V_DMA}, v{t+3}, v{t+1}')
    I(f'v_mul_u32_u24 v{t+3}, 1152, v{t}\nv_add_u32 v{V_DMA2}, v{t+3}, v{t+1}')
    I(f's_lshl_b32 s{S_WK}, s{S_W}, 10')
    I('s_waitcnt lgkmcnt(0)')
    for base, ptr, size in ((S_WS, 26, WS_BYTES), (S_W1, 20, 5308416), (S_W2, 24, 5308416), (S_CUR, 20, 5308416), (S_B1, 22, 9216)):
        I(f's_mov_b32 s{base}, s{ptr}\ns_mov_b32 s{base+1}, s{ptr+1}\ns_mov_b32 s{base+2}, {size}\ns_mov_b32 s{base+3}, 0x20000')
    I(f's_mul_i32 s46, s{S_M}, 73728\ns_add_u32 s46, s46, {OFF_X1T}')
    xt = None
    for b in range(9):
        I(f's_add_u32 m0, s{S_WK}, {b*8192}')
        I(f's_add_u32 s47, s46, {b*64*128}')
        xt = k.vm(f'buffer_load_dwordx4 v{V_T0}, {sr(S_WS,4)}, s47 offen nt lds')
    I(f'v_lshlrev_b32 v{t}, 4, v0')
    I(f's_mov_b32 s46, {OFF_MODF + 4*2304}')
    pa = k.vm(f'buffer_load_dwordx4 {vr(V_G,4)}, v{t}, {sr(S_WS,4)}, s46 offen')
    I(f'v_subrev_u32 v{t+1}, 288, v0\nv_lshlrev_b32 v{t+1}, 3, v{t+1}')
    I(f's_mul_i32 s46, s{S_P}, 1152')
    I(f'v_cmp_gt_u32 vcc, 288, v0')
    I(f'v_add_u32 v{t+1}, s46, v{t+1}\ns_nop 0')
    I(f'v_cndmask_b32 v{t+1}, v{t+1}, -16, vcc')
    pb = k.vm(f'buffer_load_dwordx2 {vr(V_G+4,2)}, v{t+1}, {sr(S_B1,4)}, 0 offen')
    def do_prefetch():
        G = 32 // nF; per = 5184 // G; rows = 576 // G
        I(f's_and_b32 s60, s{S_M}, {G - 1}')
        for rep in range((per + 511) // 512):
            I(f'v_add_u32 v{t+4}, {rep*512}, v0')
            I(f'v_mul_u32_u24 v{t+2}, 7282, v{t+4}\nv_lshrrev_b32 v{t+2}, 16, v{t+2}')
            I(f'v_mul_u32_u24 v{t+3}, 9, v{t+2}\nv_sub_u32 v{t+3}, v{t+4}, v{t+3}')
            I(f's_mul_i32 s61, s60, {rows}\nv_add_u32 v{t+2}, s61, v{t+2}')
            I(f'v_mul_u32_u24 v{t+2}, 9216, v{t+2}\nv_lshlrev_b32 v{t+3}, 7, v{t+3}')
            I(f'v_add_u32 v{t+2}, v{t+2}, v{t+3}')
            I(f's_mul_i32 s61, s{S_P}, 1152\nv_add_u32 v{t+2}, s61, v{t+2}')
            I(f'v_cmp_gt_u32 vcc, {per}, v{t+4}\ns_nop 1\nv_cndmask_b32 v{t+2}, -16, v{t+2}, vcc')
            k.vm(f'buffer_load_dword v{V_H-4}, v{t+2}, {sr(S_W1,4)}, 0 offen')
            I(f'v_lshlrev_b32 v{t+2}, 7, v{t+4}')
            I(f's_mul_i32 s61, s{S_P}, 663552\ns_mul_i32 s62, s60, {per*128}\ns_add_u32 s61, s61, s62')
            I(f'v_add_u32 v{t+2}, s61, v{t+2}')
            I(f'v_cndmask_b32 v{t+2}, -16, v{t+2}, vcc')
            k.vm(f'buffer_load_dword v{V_H-3}, v{t+2}, {sr(S_W2,4)}, 0 offen')
    if prefetch and not pf_late: do_prefetch()
    D1, D2 = 192 * 9216, 192 * 1152
    I(f's_mul_i32 s{S_OFF}, s{S_P}, 1152\ns_mov_b32 s{S_D}, {D1}\ns_mov_b32 s{S_G2}, {(128 - 2*D1) & 0xffffffff}\ns_mov_b32 s{S_B}, {64*9216}')
    I(f's_mov_b32 s63, 0\ns_mov_b32 s60, 0\ns_mov_b32 s61, 15\ns_mov_b32 s62, s{S_OFF}')
    VD = (V_DMA, 22, 23)
    I(f'v_add_u32 v{VD[1]}, {64*9216}, v{V_DMA}\nv_add_u32 v{VD[2]}, {128*9216}, v{V_DMA}')
    def dma_m0(slot, b): I(f's_add_u32 m0, s{S_WK}, {slot*SLOT + b*8192}')
    def dma_go(b, kc):
        tok = k.vm(f'buffer_load_dwordx4 v{VD[b]}, {sr(S_CUR,4)}, s{S_OFF} offen {dmaf} lds')
        if b == 2:
            if kc == 2:
                I(f's_add_u32 s63, s63, 1\ns_add_u32 s{S_T}, s63, s60\ns_and_b32 s{S_T}, s{S_T}, s61\ns_lshl_b32 s{S_T}, s{S_T}, 7\ns_add_u32 s{S_OFF}, s62, s{S_T}')
            else: I(f's_add_u32 s{S_OFF}, s{S_OFF}, s{S_D}')
        dma_go.last = tok
        return tok
    def dma_chunk(slot, kc):
        tok = None
        for b in range(3):
            dma_m0(slot, b); I('s_nop 0'); tok = dma_go(b, kc)
        return tok
    if not wlate: c0 = dma_chunk(3, 0); c1 = dma_chunk(4, 1); c2 = dma_chunk(5, 2)
    I(f'v_lshrrev_b32 v{t}, 2, v{V_TL}')
    I(f'v_and_b32 v{t+1}, 3, v{V_LANE}')
    I(f'v_lshlrev_b32 v{t+2}, 3, v{V_Q}\nv_add_u32 v{t+2}, v{t+2}, v{t}\nv_lshlrev_b32 v{t+2}, 7, v{t+2}')
    I(f'v_and_b32 v{t+3}, 2, v{t}')
    I(f'v_and_b32 v{t+4}, 1, v{V_Q}\nv_lshlrev_b32 v{t+4}, 2, v{t+4}\nv_or_b32 v{t+3}, v{t+3}, v{t+4}')
    I(f's_and_b32 s46, s{S_W}, 3\ns_lshl_b32 s46, s46, 1')
    I(f'v_lshrrev_b32 v{t+4}, 1, v{t+1}\nv_add_u32 v{t+4}, s46, v{t+4}\nv_xor_b32 v{t+4}, v{t+4}, v{t+3}\nv_lshlrev_b32 v{t+4}, 4, v{t+4}')
    I(f'v_and_b32 v{t+1}, 1, v{t+1}\nv_lshlrev_b32 v{t+1}, 3, v{t+1}')
    I(f'v_add_u32 v{t+2}, v{t+2}, v{t+4}\nv_add_u32 v{V_RD[0]}, v{t+2}, v{t+1}')
    I(f'v_add_u32 v{V_RD[1]}, {2*SLOT}, v{V_RD[0]}\nv_add_u32 v{V_RD[2]}, {4*SLOT}, v{V_RD[0]}')
    k.wait(pb)
    I(f'v_lshlrev_b32 v{V_G+8}, 16, v{V_G+4}\nv_and_b32 v{V_G+9}, 0xffff0000, v{V_G+4}\nv_lshlrev_b32 v{V_G+10}, 16, v{V_G+5}\nv_and_b32 v{V_G+11}, 0xffff0000, v{V_G+5}')
    I(f'v_cmp_gt_u32 vcc, 288, v0\ns_nop 1')
    for r in range(4): I(f'v_cndmask_b32 v{V_G+r}, v{V_G+8+r}, v{V_G+r}, vcc')
    I(f'v_lshlrev_b32 v{t}, 4, v0\nv_add_u32 v{t}, {PAR_G2}, v{t}')
    I(f'v_cmp_gt_u32 vcc, 432, v0\ns_nop 1\ns_and_saveexec_b64 s[50:51], vcc')
    k.ds(f'ds_write_b128 v{t}, {vr(V_G,4)}')
    I('s_mov_b64 exec, s[50:51]')
    c1v = -2.0 * math.sqrt(2.0 / math.pi) * math.log2(math.e); c2v = c1v * 0.044715
    import struct
    f2u = lambda x: struct.unpack('<I', struct.pack('<f', x))[0]
    global V_C2
    V_C2 = 18 if pk else 11
    I(f'v_mov_b32 v{V_C1}, {f2u(c1v):#x}')
    I(f's_and_b32 s46, s{S_W}, 3\ns_lshr_b32 s47, s{S_W}, 2')
    I(f's_lshl_b32 s48, s46, 6\ns_add_u32 s48, s48, {PAR_B1}')
    I(f'v_lshlrev_b32 v{V_BIAS}, 4, v{V_Q}\nv_add_u32 v{V_BIAS}, s48, v{V_BIAS}')
    I(f's_mul_i32 s48, s47, 36864\nv_lshlrev_b32 v{V_FR}, 4, v{V_LANE}\nv_add_u32 v{V_FR}, s48, v{V_FR}')
    I(f's_lshr_b32 s48, s46, 1\ns_lshl_b32 s48, s48, 10\ns_mul_i32 s49, s47, 36864\ns_add_u32 s48, s48, s49')
    I(f's_and_b32 s49, s46, 1\ns_lshl_b32 s49, s49, 9\ns_add_u32 s48, s48, s49\ns_add_u32 s48, s48, {3*SLOT}')
    I(f'v_lshrrev_b32 v{t}, 1, v{V_Q}\nv_lshlrev_b32 v{t}, 8, v{t}\nv_lshlrev_b32 v{t+1}, 4, v{V_TL}\nv_add_u32 v{t}, v{t}, v{t+1}')
    I(f'v_and_b32 v{t+1}, 1, v{V_Q}\nv_lshlrev_b32 v{t+1}, 3, v{t+1}\nv_add_u32 v{t}, v{t}, v{t+1}\nv_add_u32 v{V_HW}, s48, v{t}')
    I(f'v_lshlrev_b32 v{V_ST}, 4, v{V_LANE}\nv_add_u32 v{V_ST}, s{S_WK}, v{V_ST}')
    I(f's_lshl_b32 s48, s{S_M}, 3\ns_add_u32 s48, s48, s{S_P}\ns_mul_i32 s{S_STN}, s48, 73728\ns_add_u32 s{S_STN}, s{S_STN}, {OFF_PART}\ns_mov_b32 s{S_ST}, 0x7ff00000')
    X, H2, PG = V_BF, V_BF + 36, V_BF + 108
    ONES, A1, A2 = V_A, V_ACC[0], V_ACC[0] + 4
    for r in range(4): I(f'v_mov_b32 v{ONES+r}, 0x3f803f80')
    I(f's_mul_i32 s48, s47, {9*4096}\nv_add_u32 v{t}, s48, v{V_RD[0]}')
    I(f'v_and_b32 v{t+1}, 3, v{V_TL}')
    I(f'v_cmp_eq_u32 s[52:53], 1, v{t+1}\nv_cmp_eq_u32 s[54:55], 2, v{t+1}\nv_cmp_eq_u32 s[56:57], 3, v{t+1}')
    I(f'v_lshrrev_b32 v{t+1}, 2, v{V_TL}\nv_cmp_eq_u32 s[58:59], v{t+1}, v{V_Q}')
    I(f's_lshl_b32 s48, s46, 8\nv_lshlrev_b32 v{t+2}, 4, v{V_TL}\nv_add_u32 v{t+2}, s48, v{t+2}\nv_add_u32 v{t+2}, {STATS1}, v{t+2}')
    I(f's_lshl_b32 s48, s47, 3\nv_add_u32 v{t+3}, s48, v{t+2}')
    k.wait(xt)
    k.waitall(vm=False)
    I('s_barrier')
    stamp()
    if prefetch and pf_late:
        save_t = [V_TMP + 2, V_TMP + 3]
        I(f'v_mov_b32 v{V_PK}, v{t+2}\nv_mov_b32 v{V_PK+1}, v{t+3}')
        do_prefetch()
        I(f'v_mov_b32 v{t+2}, v{V_PK}\nv_mov_b32 v{t+3}, v{V_PK+1}')
    if wlate and not wspread: c0 = dma_chunk(3, 0); c1 = dma_chunk(4, 1); c2 = dma_chunk(5, 2)
    def sentinels():
        for r in range(4): I(f'v_mov_b32 v{V_PK+r}, -1')
        I(f's_lshl_b32 s48, s{S_M}, 3\ns_add_u32 s48, s48, s{S_P}\ns_mul_i32 s48, s48, 73728\ns_add_u32 s48, s48, {OFF_PART}\nv_lshlrev_b32 v{V_G+10}, 4, v0')
        for st_ in (6, 7):
            I(f's_add_u32 s49, s{S_P}, {st_}\ns_and_b32 s49, s49, 7\ns_lshl_b32 s49, s49, 13\ns_add_u32 s49, s49, s48')
            k.vm(f'buffer_store_dwordx4 {vr(V_PK,4)}, v{V_G+10}, {sr(S_WS,4)}, s49 offen sc1')
    if rot and not wspread: sentinels()
    toks = []
    for u in range(9):
        k.ds(f'ds_read_b64_tr_b16 {vr(X+4*u,2)}, v{t} offset:{u*4096}')
        toks.append(k.ds(f'ds_read_b64_tr_b16 {vr(X+4*u+2,2)}, v{t} offset:{u*4096+512}'))
    def stats(src, area_off):
        for u in range(9):
            if src == X and area_off == 0: k.wait(toks[u])
            I(f'v_mfma_f32_16x16x32_bf16 {vr(A1,4)}, {vr(ONES,4)}, {vr(src+4*u,4)}, {"0" if u == 0 else vr(A1,4)}')
            I(f'v_mfma_f32_16x16x32_bf16 {vr(A2,4)}, {vr(src+4*u,4)}, {vr(src+4*u,4)}, {"0" if u == 0 else vr(A2,4)}')
    stats(X, 0)
    if not ikr:
        I(f's_cmp_eq_u32 s{S_W}, s{S_P}\ns_cbranch_scc0 L_mlp_nox1')
        I(f's_lshl_b32 s48, s{S_M}, 6\ns_lshl_b32 s49, s46, 4\ns_add_u32 s48, s48, s49')
        I(f'v_add_u32 v{t+4}, s48, v{V_TL}\nv_mul_u32_u24 v{t+4}, 1152, v{t+4}\nv_lshlrev_b32 v{t+5}, 4, v{V_Q}\nv_add_u32 v{t+4}, v{t+4}, v{t+5}')
        I(f's_mul_i32 s48, s47, 576\ns_add_u32 s48, s48, {OFF_X1R}')
        for u in range(9):
            I(f'buffer_store_dwordx4 {vr(X+4*u,4)}, v{t+4}, {sr(S_WS,4)}, s48 offen offset:{u*64}')
        k.label('L_mlp_nox1')
    def finish_stats(area):
        k.nop(8)
        I(f'v_cndmask_b32 v{V_G}, v{A2}, v{A2+1}, s[52:53]\nv_cndmask_b32 v{V_G}, v{V_G}, v{A2+2}, s[54:55]\nv_cndmask_b32 v{V_G+1}, v{V_G}, v{A2+3}, s[56:57]')
        I(f'v_mov_b32 v{V_G}, v{A1}')
        I('s_mov_b64 s[50:51], exec\ns_mov_b64 exec, s[58:59]')
        k.ds(f'ds_write_b64 v{t+3}, {vr(V_G,2)} offset:{area}')
        I('s_mov_b64 exec, s[50:51]')
        k.waitall(vm=False)
        I('s_barrier')
        if fine and not ikr: stamp()
        tk = k.ds(f'ds_read_b128 {vr(V_G+4,4)}, v{t+2} offset:{area}')
        return tk
    def stats_to_rm(tk):
        k.wait(tk)
        inv = f2u(1.0 / 576.0)
        I(f'v_add_f32 v{V_G}, v{V_G+4}, v{V_G+6}\nv_add_f32 v{V_G+1}, v{V_G+5}, v{V_G+7}')
        I(f'v_mul_f32 v{V_G}, {inv:#x}, v{V_G}\nv_mul_f32 v{V_G+1}, {inv:#x}, v{V_G+1}')
        I(f'v_fma_f32 v{V_G+1}, -v{V_G}, v{V_G}, v{V_G+1}')
        I(f'v_max_f32 v{V_G+1}, 0, v{V_G+1}\nv_add_f32 v{V_G+1}, {f2u(1e-5):#x}, v{V_G+1}')
        I(f'v_rsq_f32 v{V_G+2}, v{V_G+1}\ns_nop 0')
        I(f'v_mul_f32 v{V_G+3}, v{V_G}, v{V_G+2}\nv_sub_f32 v{V_G+3}, 0, v{V_G+3}')
    tk = finish_stats(0)
    I(f's_mul_i32 s48, s47, {9*128}\ns_add_u32 s48, s48, {PAR_G2}\nv_lshlrev_b32 v{t+4}, 5, v{V_Q}\nv_add_u32 v{t+4}, s48, v{t+4}')
    def par_reads(u):
        b = PG + (u & 1) * 16
        k.ds(f'ds_read_b128 {vr(b,4)}, v{t+4} offset:{u*128}')
        k.ds(f'ds_read_b128 {vr(b+4,4)}, v{t+4} offset:{u*128+16}')
        k.ds(f'ds_read_b128 {vr(b+8,4)}, v{t+4} offset:{2304+u*128}')
        return k.ds(f'ds_read_b128 {vr(b+12,4)}, v{t+4} offset:{2304+u*128+16}')
    ptk = [par_reads(0)]
    stats_to_rm(tk)
    R, NMR = V_G + 2, V_G + 3
    for u in range(9):
        if u + 1 < 9: ptk.append(par_reads(u + 1))
        if wlate and wspread:
            dma_m0(3 + u // 3, u % 3); I('s_nop 0'); tok_ = dma_go(u % 3, u // 3)
            if u == 2: c0 = tok_
        b = PG + (u & 1) * 16
        for d in range(4):
            I(f'v_lshlrev_b32 v{H2+8*u+2*d}, 16, v{X+4*u+d}\nv_and_b32 v{H2+8*u+2*d+1}, 0xffff0000, v{X+4*u+d}')
        for e in range(8): I(f'v_fma_f32 v{H2+8*u+e}, v{H2+8*u+e}, v{R}, v{NMR}')
        k.wait(ptk[u])
        for e in range(8): I(f'v_fma_f32 v{H2+8*u+e}, v{H2+8*u+e}, v{b+e}, v{b+8+e}')
        for d in range(4): I(f'v_cvt_pk_bf16_f32 v{X+4*u+d}, v{H2+8*u+2*d}, v{H2+8*u+2*d+1}')
    I('s_nop 1')
    if rot and wspread: sentinels()
    stats(X, 1024)
    tk = finish_stats(1024)
    stats_to_rm(tk)
    I(f's_mul_i32 s48, s46, 18432\ns_mul_i32 s49, s47, 9216\ns_add_u32 s48, s48, s49\nv_lshlrev_b32 v{t+4}, 4, v{V_LANE}\nv_add_u32 v{t+4}, s48, v{t+4}')
    for u in range(9):
        for e in range(8): I(f'v_fma_f32 v{H2+8*u+e}, v{H2+8*u+e}, v{R}, v{NMR}')
        for d in range(4): I(f'v_cvt_pk_bf16_f32 v{X+4*u+d}, v{H2+8*u+2*d}, v{H2+8*u+2*d+1}')
        k.ds(f'ds_write_b128 v{t+4}, {vr(X+4*u,4)} offset:{u*1024}')
    k.waitall(vm=False)
    I('s_barrier')
    if fine and not ikr: stamp()
    def load_bfrags(base_off):
        tk = None
        for n in range(36):
            tk = k.ds(f'ds_read_b128 {vr(V_BF+4*n,4)}, v{V_FR} offset:{base_off + n*1024}') if base_off + n*1024 < 65536 else None
        return tk
    load_bfrags(0)
    btk = k.ds(f'ds_read_b128 {vr(V_B4,4)}, v{V_BIAS}')
    I(f'v_add_u32 v{V_BIAS}, 256, v{V_BIAS}')
    k.wait(c0)
    if ikr: I('s_load_dwordx2 s[8:9], s[0:1], 88\ns_load_dwordx2 s[28:29], s[0:1], 112')
    k.waitall(vm=False)
    if ikr: I('s_mov_b32 s10, 1152\ns_mov_b32 s11, 0x20000\ns_mov_b32 s30, 2359296\ns_mov_b32 s31, 0x20000')
    I('s_barrier')
    dma_chunk(0, 0); dma_chunk(1, 1)
    stamp()

    I(f'v_mov_b32 v{V_C2}, {f2u(c2v):#x}')
    NB = LA + 1
    ABUF = [V_A, V_A + 4, V_A + 8, V_TMP, V_TMP + 4][:NB]
    atok = {}
    ctr = [0]
    def a_read_parts(cnt, slot, u):
        buf = ABUF[cnt % NB]
        off = (slot & 1) * SLOT + u * 4096
        def r0(): k.ds(f'ds_read_b64_tr_b16 {vr(buf,2)}, v{V_RD[slot>>1]} offset:{off}')
        def r1(): atok[cnt % NB] = k.ds(f'ds_read_b64_tr_b16 {vr(buf+2,2)}, v{V_RD[slot>>1]} offset:{off+512}')
        return r0, r1
    def a_reads(cnt, slot, u):
        r0, r1 = a_read_parts(cnt, slot, u); r0(); r1()
    def gelu_ops(acc, dst):
        ops = []
        for h in range(2):
            x = [acc + 4*h + r for r in range(4)]; g = [V_G + 4*h + r for r in range(4)]
            if pk:
                P = (0, 2)
                ops += [f'v_pk_mul_f32 {vr(g[r],2)}, {vr(x[r],2)}, {vr(x[r],2)}' for r in P]
                ops += [f'v_pk_fma_f32 {vr(g[r],2)}, {vr(g[r],2)}, {vr(V_C2,2)}, {vr(V_C1,2)} op_sel_hi:[1,0,0]' for r in P]
                ops += [f'v_pk_mul_f32 {vr(g[r],2)}, {vr(x[r],2)}, {vr(g[r],2)}' for r in P]
                ops += [f'v_exp_f32 v{g[r]}, v{g[r]}' for r in range(4)]
                ops += [f'v_pk_add_f32 {vr(g[r],2)}, {vr(g[r],2)}, 1.0 op_sel_hi:[1,0]' for r in P]
                ops += [f'v_rcp_f32 v{g[r]}, v{g[r]}' for r in range(4)]
                ops += [f'v_pk_mul_f32 {vr(g[r],2)}, {vr(x[r],2)}, {vr(g[r],2)}' for r in P]
            else:
                ops += [f'v_mul_f32 v{g[r]}, v{x[r]}, v{x[r]}' for r in range(4)]
                ops += [f'v_fma_f32 v{g[r]}, v{g[r]}, v{V_C2}, v{V_C1}' for r in range(4)]
                ops += [f'v_mul_f32 v{g[r]}, v{x[r]}, v{g[r]}' for r in range(4)]
                ops += [f'v_exp_f32 v{g[r]}, v{g[r]}' for r in range(4)]
                ops += [f'v_add_f32 v{g[r]}, 1.0, v{g[r]}' for r in range(4)]
                ops += [f'v_rcp_f32 v{g[r]}, v{g[r]}' for r in range(4)]
                ops += [f'v_mul_f32 v{g[r]}, v{x[r]}, v{g[r]}' for r in range(4)]
            ops += dst(h, g)
        return ops
    lab = [0]
    cur = dict(cls=0)
    def group(phase, par, slots, issue, extra, last=False, vmw=(9, 9, 9), pre=None, early=False, hooks=None, prebar=None):
        acc = V_ACC[par]
        extra = list(extra)
        if no_gelu and phase == 1: extra = []
        nfill = len(extra)
        cls = cur['cls']
        dma_steps = (0, 2, 4) if cls == 0 else (1, 3, 5)
        wt = []
        for n in range(18):
            w_ = 0.0 if n == 0 else (wts[0] if (n % 6) in dma_steps else wts[1])
            if early: w_ = 1.0 if 1 <= n <= 3 else 0.0
            wt += [w_ / 2, w_ / 2]
        tot = sum(wt); cum = []; a_ = 0.0
        for w_ in wt:
            a_ += w_; cum.append(int(round(nfill * a_ / tot)))
        cum[-1] = nfill
        st = dict(done=0)
        def fill(upto):
            while st['done'] < min(upto, nfill):
                x_ = extra[st['done']]
                if callable(x_): x_()
                else: I(x_)
                st['done'] += 1
        for kc in range(3):
            if vmw[kc] is not None:
                if prebar and kc in prebar: prebar[kc]()
                if vmw[kc] != 'b': k.raw_wait(vm=vmw[kc])
                if not no_bar: I('s_barrier')
            if pre and kc in pre: pre[kc]()
            for u in range(6):
                n = kc * 6 + u
                cnt = ctr[0]; ctr[0] += 1
                buf = ABUF[cnt % NB]
                k.wait(atok[cnt % NB])
                nn = n + LA
                if nn < 18: rd = a_read_parts(cnt + LA, slots[nn // 6], nn % 6)
                elif not last: rd = a_read_parts(cnt + LA, slots[3], nn - 18)
                else: rd = (lambda: None, lambda: None)
                def mfma(h):
                    if n == 0: c = vr(V_B4, 4) if phase == 1 else '0'
                    else: c = vr(acc + 4*h, 4)
                    if not no_mfma: I(f'v_mfma_f32_16x16x32_bf16 {vr(acc+4*h,4)}, {vr(buf,4)}, {vr(V_BF+(h*18+n)*4,4)}, {c}')
                dma = issue[kc] is not None and not no_dma and u in dma_steps
                b = dma_steps.index(u) if dma else None
                mfma(0)
                rd[0](); fill(cum[2*n])
                mfma(1)
                if dma: dma_m0(issue[kc][0], b)
                rd[1]()
                if dma:
                    if nn >= 18 and last: I('s_nop 0')
                    dma_go(b, issue[kc][1])
                if phase == 1 and n == 8:
                    group.btk = k.ds(f'ds_read_b128 {vr(V_B4,4)}, v{V_BIAS}')
                    I(f'v_add_u32 v{V_BIAS}, 256, v{V_BIAS}')
                fill(cum[2*n+1])
                if hooks and n in hooks: hooks[n]()
                if phase == 1 and n == 17: k.wait(group.btk)
    group.btk = btk
    def h_dst_indexed(delta):
        def f(h, g):
            return [f'v_cvt_pk_bf16_f32 v{V_PK}, v{g[0]}, v{g[1]}', f'v_cvt_pk_bf16_f32 v{V_PK+1}, v{g[2]}, v{g[3]}',
                    f's_set_gpr_idx_on s{S_IDX}, gpr_idx(DST)', f'v_mov_b32 v{V_H+delta+2*h}, v{V_PK}', f'v_mov_b32 v{V_H+delta+2*h+1}, v{V_PK+1}', 's_set_gpr_idx_off']
        return f
    def h_dst_static(G):
        def f(h, g):
            return [f'v_cvt_pk_bf16_f32 v{V_H+4*G+2*h}, v{g[0]}, v{g[1]}', f'v_cvt_pk_bf16_f32 v{V_H+4*G+2*h+1}, v{g[2]}, v{g[3]}']
        return f
    def merge_idx(ops):
        out = []; i = 0
        while i < len(ops):
            if ops[i].startswith('s_set_gpr_idx_on'):
                out.append('\n'.join(ops[i:i+4])); i += 4
            else:
                out.append(ops[i]); i += 1
        return out
    def switch_src(to):
        def f():
            lab = f'L_sw_{to}_{cur["cls"]}'
            I(f's_cmp_eq_u32 s{S_IT}, 3\ns_cbranch_scc0 {lab}')
            if to == 'w2':
                I(f's_mov_b32 s{S_CUR}, s{S_W2}\ns_mov_b32 s{S_CUR+1}, s{S_W2+1}')
                I(f'v_mov_b32 v{VD[0]}, v{V_DMA2}\nv_add_u32 v{VD[1]}, {64*1152}, v{V_DMA2}\nv_add_u32 v{VD[2]}, {128*1152}, v{V_DMA2}')
                I(f's_mul_i32 s62, s{S_P}, 663552\ns_mov_b32 s{S_D}, {D2}\ns_mov_b32 s63, 0')
                if rot: I(f's_add_u32 s{S_OFF}, s62, {8*128}\ns_mov_b32 s60, s{S_P}\ns_mov_b32 s61, 7')
                else: I(f's_mov_b32 s{S_OFF}, s62')
            else:
                I(f's_mov_b32 s{S_OFF}, 0x7ff00000\ns_mov_b32 s62, 0x7ff00000\ns_mov_b32 s{S_D}, 0')
            k.label(lab)
        return f
    def main(cls):
        cur['cls'] = cls
        for n in range(LA): a_reads(n, 3, n)
        k.wait(btk)
        I(f's_mov_b32 s{S_IT}, 0\ns_mov_b32 s{S_IDX}, 0')
        def body1():
            group(1, 0, (3, 4, 5, 0), ((2, 2), (3, 0), (4, 1)), merge_idx(gelu_ops(V_ACC[1], h_dst_indexed(-4))))
            group(1, 1, (0, 1, 2, 3), ((5, 2), (0, 0), (1, 1)), merge_idx(gelu_ops(V_ACC[0], h_dst_indexed(0))), pre={1: switch_src('w2')})
        def loop(label, body, n):
            save = len(k.lines); l0 = lab[0]
            body(); first = k.lines[save:]; del k.lines[save:]; lab[0] = l0
            body(); second = k.lines[save:]; del k.lines[save:]; lab[0] = l0
            start = len(k.lines)
            k.label(label)
            body()
            third = k.lines[start+1:]
            assert second == third, 'loop body not a fixed point'
            strip = lambda L: [x for x in L]
            def split(L):
                body_, waits = [], {}
                for x in L:
                    if x.startswith('    s_waitcnt'): waits.setdefault(len(body_), []).append(x.strip())
                    else: body_.append(x)
                return body_, waits
            fb, fw = split(first); sb_, sw_ = split(second)
            assert fb == sb_, 'loop body differs between entry and steady state'
            import re as _re
            def cnts(ws):
                d = {}
                for w_ in ws:
                    for nm, v in _re.findall(r'(vmcnt|lgkmcnt)\((\d+)\)', w_): d[nm] = min(d.get(nm, 99), int(v))
                return d
            for pos, ws in fw.items():
                a = cnts(ws); b = cnts(sw_.get(pos, []))
                for nm, v in a.items():
                    assert nm in b and b[nm] <= v, ('steady-state wait too lax for loop entry', label, pos, ws, sw_.get(pos))
            errs = hazards(third + third, label)
            for e in errs: print('HAZARD', e)
            I(f's_add_u32 s{S_IDX}, s{S_IDX}, 8\ns_add_u32 s{S_IT}, s{S_IT}, 1\ns_cmp_lt_u32 s{S_IT}, {n}\ns_cbranch_scc1 {label}')
        loop(f'L_p1_{cls}', body1, 4)
        stamp()
        group(1, 0, (3, 4, 5, 0), ((2, 2), None, None), gelu_ops(V_ACC[1], h_dst_static(7)), vmw=(9, 9, 6))
        k.raw_wait(vm=3)
        I('s_barrier')
        k.nop(4)
        g8 = gelu_ops(V_ACC[0], h_dst_static(8))
        wr = [(G, h) for G in range(8) for h in range(2)]
        gi = 0
        for n_, (G, h) in enumerate(wr):
            k.ds(f'ds_write_b64 v{V_HW}, {vr(V_H+4*G+2*h,2)} offset:{G*2048 + h*18432}')
            upto = len(g8) * (n_ + 1) // len(wr)
            while gi < upto:
                I(g8[gi]); gi += 1
        for h in range(2):
            k.ds(f'ds_write_b64 v{V_HW}, {vr(V_H+32+2*h,2)} offset:{8*2048 + h*18432}')
        k.waitall(vm=False)
        I('s_barrier')
        I(f'v_add_u32 v{V_FR}, {3*SLOT}, v{V_FR}')
        load_bfrags(0)
        k.waitall(vm=False)
        I('s_barrier')
        dma_chunk(3, 0); dma_chunk(4, 1)
        stamp()
        stok = {}
        def store_ops(acc):
            ops = [f'v_cvt_pk_bf16_f32 v{V_PK+2*h+d}, v{acc+4*h+2*d}, v{acc+4*h+2*d+1}' for h in range(2) for d in range(2)]
            def st_():
                stok['last'] = k.vm(f'buffer_store_dwordx4 {vr(V_PK,4)}, v{V_ST}, {sr(S_WS,4)}, s{S_ST} offen {store_flags}')
                if not rot: I(f's_mov_b32 s{S_ST}, s{S_STN}\ns_add_u32 s{S_STN}, s{S_STN}, 8192')
                else: I(f's_mov_b32 s{S_ST}, s{S_STN}\ns_add_u32 s59, s59, 1\ns_add_u32 s{S_STN}, s59, s{S_P}\ns_and_b32 s{S_STN}, s{S_STN}, 7\ns_lshl_b32 s{S_STN}, s{S_STN}, 13\ns_add_u32 s{S_STN}, s{S_STN}, s32')
            ops.append(st_)
            return ops
        def run(ops):
            for op in ops:
                if callable(op): op()
                else: I(op)
        I(f's_mov_b32 s{S_IT}, 0')
        if rot: I(f's_mov_b32 s32, s{S_STN}\ns_add_u32 s{S_STN}, s{S_STN}, {8*8192}\ns_mov_b32 s59, 0')
        if not ikr:
            def body2():
                group(2, 0, (0, 1, 2, 3), ((5, 2), (0, 0), (1, 1)), store_ops(V_ACC[1]), vmw=(9, 9, 9))
                group(2, 1, (3, 4, 5, 0), ((2, 2), (3, 0), (4, 1)), store_ops(V_ACC[0]), vmw=(9, 9, 9), pre={1: switch_src('oob')})
            loop(f'L_p2_{cls}', body2, 4)
            group(2, 0, (0, 1, 2, 3), (None, None, None), store_ops(V_ACC[1]), last=True, vmw=(9, 6, None))
            k.nop(8)
            run(store_ops(V_ACC[0]))
            return
        S_FL, S_G, S_CNT = 46, 50, 51
        VF, VFA, VL16, VO, VTR, VP4 = 2, 12, 13, 8, 20, 21
        I(f's_lshl_b32 s{S_FL}, s{S_M}, 7\ns_add_u32 s{S_FL}, s{S_FL}, {OFF_FLAG}')
        I(f'v_and_b32 v{VFA}, 7, v{V_LANE}\nv_lshlrev_b32 v{VFA}, 2, v{VFA}\nv_lshlrev_b32 v{VL16}, 4, v{V_LANE}')
        I(f's_lshr_b32 s52, s{S_P}, 2\ns_and_b32 s53, s{S_P}, 3')
        I(f's_lshl_b32 s54, s{S_M}, 6\ns_lshl_b32 s55, s52, 5\ns_add_u32 s54, s54, s55\nv_add_u32 v{VO}, s54, v{V_TL}\nv_mul_u32_u24 v{VO}, 1152, v{VO}')
        I(f's_lshl_b32 s55, s53, 4\nv_lshlrev_b32 v{VP4}, 2, v{V_Q}\nv_add_u32 v{VP4}, s55, v{VP4}')
        I(f'v_lshlrev_b32 v16, 1, v{VP4}\nv_add_u32 v{VO}, v{VO}, v16')
        I(f'v_lshrrev_b32 v{VTR}, 2, v{V_TL}\nv_lshlrev_b32 v16, 2, v{V_Q}\nv_add_u32 v{VTR}, v{VTR}, v16\nv_lshlrev_b32 v{VTR}, 6, v{VTR}')
        I(f'v_and_b32 v16, 3, v{V_LANE}\nv_lshlrev_b32 v16, 3, v16\nv_add_u32 v{VTR}, v{VTR}, v16\nv_add_u32 v{VTR}, {XS}, v{VTR}')
        VXG = 19
        I(f'v_lshrrev_b32 v{VXG}, 2, v{V_LANE}\nv_lshlrev_b32 v{VXG}, 7, v{VXG}\nv_and_b32 v16, 3, v{V_LANE}\nv_lshlrev_b32 v16, 4, v16\nv_add_u32 v{VXG}, v{VXG}, v16\ns_lshl_b32 s55, s52, 6\nv_add_u32 v{VXG}, s55, v{VXG}')
        def signal(val, name, cond_it=None):
            lb = f'L_sig{name}'
            if cond_it is not None: I(f's_cmp_eq_u32 s{S_IT}, {cond_it}\ns_cbranch_scc0 {lb}')
            I(f's_cmp_eq_u32 s{S_W}, 0\ns_cbranch_scc0 {lb}')
            I(f's_lshl_b32 s52, s{S_P}, 2\ns_add_u32 s52, s52, s{S_FL}\nv_mov_b32 v16, {val}\nv_mov_b32 v17, 0\ns_mov_b64 exec, 1')
            I(f'buffer_store_dword v16, v17, {sr(S_WS,4)}, s52 offen sc1')
            I('s_mov_b64 exec, -1')
            k.label(lb)
        ftok = {}
        def flag_load(): ftok['t'] = k.vm(f'buffer_load_dword v{VF}, v{VFA}, {sr(S_WS,4)}, s{S_FL} offen sc1')
        def spin(val, name):
            I(f's_mov_b32 s{S_CNT}, 0x40000')
            k.label(f'L_spin{name}')
            I(f'v_cmp_gt_u32 vcc, {val}, v{VF}\ns_nop 4\ns_cbranch_vccz L_spun{name}')
            I(f's_sub_u32 s{S_CNT}, s{S_CNT}, 1\ns_cmp_eq_u32 s{S_CNT}, 0\ns_cbranch_scc1 L_spun{name}')
            I(f's_sleep 1\nbuffer_load_dword v{VF}, v{VFA}, {sr(S_WS,4)}, s{S_FL} offen sc1\ns_waitcnt vmcnt(0)\ns_branch L_spin{name}')
            k.label(f'L_spun{name}')
        PR = V_H
        R0, R1 = V_G, V_BF
        def statics(R, slotidx, tracked=False):
            V = k.vm if tracked else I
            I(f's_mul_i32 s52, s{S_M}, 73728\ns_lshl_b32 s54, s{S_G}, 13\ns_add_u32 s52, s52, s54\ns_lshl_b32 s54, s53, 11\ns_add_u32 s52, s52, s54\ns_add_u32 s52, s52, {OFF_X1T}')
            I(f's_lshl_b32 s54, {slotidx}, 10\ns_add_u32 m0, s54, {XS}\ns_nop 0')
            V(f'buffer_load_dwordx4 v{VXG}, {sr(S_WS,4)}, s52 offen lds')
            I(f's_lshl_b32 s54, s{S_G}, 8\ns_add_u32 s52, s54, {OFF_MODF + 3*2304}\nv_lshlrev_b32 v16, 2, v{VP4}')
            V(f'buffer_load_dwordx4 {vr(R,4)}, v16, {sr(S_WS,4)}, s52 offen')
            I(f's_lshl_b32 s54, s{S_G}, 7\nv_lshlrev_b32 v17, 1, v{VP4}')
            V(f'buffer_load_dwordx2 {vr(R+4,2)}, v17, s[8:11], s54 offen')
        def partials():
            I(f's_mul_i32 s52, s{S_M}, {8*73728}\ns_lshl_b32 s54, s{S_G}, 13\ns_add_u32 s52, s52, s54\ns_lshl_b32 s54, s{S_P}, 10\ns_add_u32 s52, s52, s54\ns_add_u32 s52, s52, {OFF_PART}')
            for p_ in range(8):
                I(f'buffer_load_dwordx4 {vr(PR+4*p_,4)}, v{VL16}, {sr(S_WS,4)}, s52 offen sc1')
                if p_ < 7: I(f's_add_u32 s52, s52, 73728')
        def finish(R, slotidx, own=None, prb=None, b2raw=None, vo=None):
            prb = PR if prb is None else prb; b2raw = R + 4 if b2raw is None else b2raw; vo = VO if vo is None else vo
            I(f's_lshl_b32 s54, {slotidx}, 10\nv_add_u32 v16, s54, v{VTR}')
            I(f'ds_read_b64_tr_b16 v[36:37], v16\nds_read_b64_tr_b16 v[38:39], v16 offset:32')
            acc = [72, 73, 74, 75, 108, 109, 110, 111]
            t0, t1 = 22, 23
            if own is not None: acc = [own + e for e in range(8)]
            for p_ in range(8 if own is None else 7):
                for d in range(4):
                    lo, hi = acc[2*d], acc[2*d+1]
                    b = prb + 4*p_ + d
                    if p_ == 0 and own is None: I(f'v_lshlrev_b32 v{lo}, 16, v{b}\nv_and_b32 v{hi}, 0xffff0000, v{b}')
                    else: I(f'v_lshlrev_b32 v{t0}, 16, v{b}\nv_and_b32 v{t1}, 0xffff0000, v{b}\nv_add_f32 v{lo}, v{lo}, v{t0}\nv_add_f32 v{hi}, v{hi}, v{t1}')
            b2 = [30, 31, 32, 33]; xx = [16, 17, 18, 4]; pk = (34, 10)
            I(f'v_lshlrev_b32 v{b2[0]}, 16, v{b2raw}\nv_and_b32 v{b2[1]}, 0xffff0000, v{b2raw}\nv_lshlrev_b32 v{b2[2]}, 16, v{b2raw+1}\nv_and_b32 v{b2[3]}, 0xffff0000, v{b2raw+1}')
            finish.n += 1
            I(f's_waitcnt lgkmcnt({finish.lg})')
            I(f's_lshl_b32 s54, s{S_G}, 7')
            for h in range(2):
                x = 36 + 2*h
                I(f'v_lshlrev_b32 v{xx[0]}, 16, v{x}\nv_and_b32 v{xx[1]}, 0xffff0000, v{x}\nv_lshlrev_b32 v{xx[2]}, 16, v{x+1}\nv_and_b32 v{xx[3]}, 0xffff0000, v{x+1}')
                for r in range(4):
                    a = acc[4*h + r]
                    I(f'v_add_f32 v{a}, v{a}, v{b2[r]}\nv_fma_f32 v{a}, v{a}, v{R+r}, v{xx[r]}')
                I(f'v_cvt_pk_bf16_f32 v{pk[h]}, v{acc[4*h]}, v{acc[4*h+1]}\nv_cvt_pk_bf16_f32 v{pk[h]+1}, v{acc[4*h+2]}, v{acc[4*h+3]}')
            I(f'buffer_store_dwordx2 {vr(pk[0],2)}, v{vo}, s[28:31], s54 offen')
            I(f's_add_u32 s54, s54, {16*1152}')
            I(f'buffer_store_dwordx2 {vr(pk[1],2)}, v{vo}, s[28:31], s54 offen')
        finish.n = 0; finish.lg = 0
        if rot:
            S_PB = 56
            def body2r():
                group(2, 0, (0, 1, 2, 3), ((5, 2), (0, 0), (1, 1)), store_ops(V_ACC[1]), vmw=(9, 9, 9), early=True,
                      pre={1: lambda: signal(1, 'a', cond_it=2)})
                group(2, 1, (3, 4, 5, 0), ((2, 2), (3, 0), (4, 1)), store_ops(V_ACC[0]), vmw=(9, 9, 9), early=True)
            loop(f'L_p2_{cls}', body2r, 3)
            GB8, B28, P8 = PR + 28, 10, PR + 24
            def statics8():
                I(f's_mul_i32 s52, s{S_M}, 73728\ns_lshl_b32 s54, s53, 11\ns_add_u32 s52, s52, s54\ns_add_u32 s52, s52, {OFF_X1T + 8*8192}')
                I(f's_mov_b32 m0, {XS + 8*1024}\ns_nop 0')
                k.vm(f'buffer_load_dwordx4 v{VXG}, {sr(S_WS,4)}, s52 offen lds')
                I(f's_mov_b32 s52, {OFF_MODF + 3*2304 + 8*256}\nv_lshlrev_b32 v16, 2, v{VP4}')
                k.vm(f'buffer_load_dwordx4 {vr(GB8,4)}, v16, {sr(S_WS,4)}, s52 offen')
                I(f's_mov_b32 s54, {8*128}\nv_lshlrev_b32 v17, 1, v{VP4}')
                k.vm(f'buffer_load_dwordx2 {vr(B28,2)}, v17, s[8:11], s54 offen')
            group(2, 0, (0, 1, 2, 3), ((5, 2), (0, 0), (1, 1)), store_ops(V_ACC[1]), vmw=(9, 9, 9), early=True,
                  hooks={9: flag_load, 14: statics8})
            if fine: stamp()
            ptok = {}
            def fetch8():
                k.wait(ftok['t'])
                spin(1, 'a')
                I(f's_mul_i32 s52, s{S_M}, {8*73728}\ns_mul_i32 s54, s{S_W}, 73728\ns_add_u32 s52, s52, s54\ns_lshl_b32 s54, s{S_P}, 10\ns_add_u32 s52, s52, s54\ns_add_u32 s52, s52, {OFF_PART + 8*8192}')
                ptok['t'] = k.vm(f'buffer_load_dwordx4 {vr(P8,4)}, v{VL16}, {sr(S_WS,4)}, s52 offen sc1')
            group(2, 1, (3, 4, 5, 0), ((2, 2), None, None), store_ops(V_ACC[0]), vmw=(9, 9, 9), early=True,
                  pre={0: lambda: signal(2, 'b')}, hooks={6: fetch8, 12: flag_load})
            ftok2 = dict(ftok)
            if fine: stamp()
            k.wait(dma_go.last)
            S_PB = 56
            def own_load(s_):
                I(f's_sub_u32 s54, s{S_P}, {s_}\ns_and_b32 s54, s54, 7\ns_mul_i32 s54, s54, 73728\ns_add_u32 s54, s54, s{S_PB}')
                return k.vm(f'buffer_load_dwordx4 {vr(PR+4*(s_-1),4)}, v{VL16}, {sr(S_WS,4)}, s54 offen sc1')
            wtok = {}
            def stage8():
                k.wait(ptok['t'])
                I(f's_lshl_b32 s54, s{S_W}, 10\ns_add_u32 s54, s54, {3*SLOT}\nv_add_u32 v16, s54, v{VL16}')
                wtok['t'] = k.ds(f'ds_write_b128 v16, {vr(P8,4)}')
            vo8 = {}
            def mid8():
                if fine: stamp()
                k.wait(ftok2['t'])
                spin(2, 'b')
                I(f'v_mov_b32 v3, v{VO}')
                I(f's_lshr_b32 s52, s{S_W}, 2\ns_and_b32 s53, s{S_W}, 3\ns_mov_b32 s{S_G}, s{S_P}')
                I(f's_lshl_b32 s54, s{S_M}, 6\ns_lshl_b32 s55, s52, 5\ns_add_u32 s54, s54, s55\nv_add_u32 v{VO}, s54, v{V_TL}\nv_mul_u32_u24 v{VO}, 1152, v{VO}')
                I(f's_lshl_b32 s55, s53, 4\nv_lshlrev_b32 v{VP4}, 2, v{V_Q}\nv_add_u32 v{VP4}, s55, v{VP4}')
                I(f'v_lshlrev_b32 v16, 1, v{VP4}\nv_add_u32 v{VO}, v{VO}, v16')
                I(f'v_lshrrev_b32 v{VXG}, 2, v{V_LANE}\nv_lshlrev_b32 v{VXG}, 7, v{VXG}\nv_and_b32 v16, 3, v{V_LANE}\nv_lshlrev_b32 v16, 4, v16\nv_add_u32 v{VXG}, v{VXG}, v16\ns_lshl_b32 s55, s52, 6\nv_add_u32 v{VXG}, s55, v{VXG}')
                if fine: stamp()
                statics(R0, f's{S_W}', True)
                I(f's_mul_i32 s{S_PB}, s{S_M}, {8*73728}\ns_lshl_b32 s54, s{S_P}, 13\ns_add_u32 s{S_PB}, s{S_PB}, s54\ns_lshl_b32 s54, s{S_W}, 10\ns_add_u32 s{S_PB}, s{S_PB}, s54\ns_add_u32 s{S_PB}, s{S_PB}, {OFF_PART}')
            hooks = {1: stage8, 6: mid8}
            for s_ in range(1, 6): hooks[6 + 2*s_ - 1] = (lambda q_: (lambda: own_load(q_)))(s_)
            group(2, 0, (0, 1, 2, 3), (None, None, None), store_ops(V_ACC[1]), last=True, vmw=('b', 'b', None), early=True, hooks=hooks,
                  prebar={1: lambda: k.wait(wtok['t'])})
            if fine: stamp()
            I(f's_cmp_eq_u32 s{S_W}, 0\ns_cbranch_scc0 L_nofin8')
            I(f'v_add_u32 v16, {3*SLOT}, v{VL16}')
            for p_ in range(8): I(f'ds_read_b128 {vr(V_BF+4*p_,4)}, v16 offset:{p_*1024}')
            I(f's_waitcnt lgkmcnt(0)\ns_mov_b32 s{S_G}, 8')
            finish(GB8, '8', prb=V_BF, b2raw=B28, vo=3)
            I(f's_mov_b32 s{S_G}, s{S_P}')
            k.label('L_nofin8')
            if fine: stamp()
            I(f's_waitcnt vmcnt(0)\ns_mov_b32 s{S_CNT}, 0x40000')
            if fine: stamp()
            k.label('L_retry')
            own_load(6); own_load(7)
            I('s_waitcnt vmcnt(0)')
            a_, b_ = PR + 20, PR + 24
            I(f'v_max3_u32 v22, v{a_}, v{a_+1}, v{a_+2}\nv_max3_u32 v22, v22, v{a_+3}, v{b_}\nv_max3_u32 v22, v22, v{b_+1}, v{b_+2}\nv_max_u32 v22, v22, v{b_+3}')
            I(f'v_cmp_eq_u32 vcc, -1, v22\ns_sub_u32 s{S_CNT}, s{S_CNT}, 1\ns_cmp_eq_u32 s{S_CNT}, 0\ns_cbranch_scc1 L_got\ns_nop 1\ns_cbranch_vccnz L_retry')
            k.label('L_got')
            if fine: stamp()
            finish(R0, f's{S_W}', own=V_ACC[0])
            return
        def body2():
            group(2, 0, (0, 1, 2, 3), ((5, 2), (0, 0), (1, 1)), store_ops(V_ACC[1]), vmw=(9, 9, 9), early=True)
            group(2, 1, (3, 4, 5, 0), ((2, 2), (3, 0), (4, 1)), store_ops(V_ACC[0]), vmw=(9, 9, 9), early=True)
        loop(f'L_p2_{cls}', body2, 3)
        S_PB = 56
        def batch_setup(lo, hi, lvl, name):
            k.wait(ftok['t'])
            I(f's_sub_u32 s52, s{S_W}, {lo}\ns_cmp_lt_u32 s52, {hi - lo}\ns_cbranch_scc0 L_nob{name}')
            spin(lvl, name)
            k.label(f'L_nob{name}')
            I(f's_mul_i32 s{S_PB}, s{S_M}, {8*73728}\ns_lshl_b32 s54, s{S_W}, 13\ns_add_u32 s{S_PB}, s{S_PB}, s54\ns_lshl_b32 s54, s{S_P}, 10\ns_add_u32 s{S_PB}, s{S_PB}, s54\ns_add_u32 s{S_PB}, s{S_PB}, {OFF_PART}')
            I(f's_sub_u32 s52, s{S_W}, {lo}\ns_cmp_lt_u32 s52, {hi - lo}\ns_cselect_b32 s{S_PB}, s{S_PB}, 0x7ff00000\ns_cselect_b32 s58, 73728, 0')
        ptok = {}
        def pload(p_):
            def f():
                ptok['t'] = k.vm(f'buffer_load_dwordx4 {vr(PR+4*p_,4)}, v{VL16}, {sr(S_WS,4)}, s{S_PB} offen sc1')
                I(f's_add_u32 s{S_PB}, s{S_PB}, s58')
            return f
        I(f's_mov_b32 s{S_G}, s{S_W}')
        group(2, 0, (0, 1, 2, 3), ((5, 2), (0, 0), (1, 1)), store_ops(V_ACC[1]), vmw=(9, 9, 9), early=True,
              pre={1: lambda: signal(1, 'a')}, hooks={14: lambda: statics(R0, f's{S_W}', True)})
        if fine: stamp()
        hooks = {1: flag_load, 9: lambda: batch_setup(0, 5, 1, 'a')}
        for p_ in range(8): hooks[10 + p_] = pload(p_)
        group(2, 1, (3, 4, 5, 0), ((2, 2), None, None), store_ops(V_ACC[0]), vmw=(9, 9, 9), early=True, hooks=hooks)
        tok26 = dma_go.last
        k.wait(tok26)
        group(2, 0, (0, 1, 2, 3), (None, None, None), store_ops(V_ACC[1]), last=True, vmw=('b', 'b', None), early=True,
              pre={0: lambda: signal(2, 'b')}, hooks={12: flag_load})
        if fine: stamp()
        I(f's_cmp_eq_u32 s{S_W}, 0\ns_cbranch_scc0 L_nost8\ns_mov_b32 s{S_G}, 8')
        statics(R1, '8')
        I(f's_mov_b32 s{S_G}, 0')
        k.label('L_nost8')
        k.nop(7)
        run(store_ops(V_ACC[0]))
        I(f's_sub_u32 s52, s{S_W}, 5\ns_cmp_lt_u32 s52, 2\ns_cbranch_scc0 L_no6')
        I('s_waitcnt vmcnt(1)')
        spin(2, 'c')
        partials()
        I('s_waitcnt vmcnt(8)\ns_branch L_st8' if not sent else 's_branch L_st8')
        k.label('L_no6')
        if not sent:
            I('s_waitcnt vmcnt(0)')
            k.label('L_st8')
            if fine: stamp()
            I('s_barrier')
            if fine: stamp()
            signal(3, 'd')
            I(f's_cmp_eq_u32 s{S_W}, 7\ns_cbranch_scc1 L_late7')
            I(f's_cmp_ge_u32 s{S_W}, 5\ns_cbranch_scc0 L_have\ns_waitcnt vmcnt(0)')
            k.label('L_have')
            finish(R0, f's{S_W}')
            I(f's_cmp_eq_u32 s{S_W}, 0\ns_cbranch_scc0 L_ikr_done\ns_mov_b32 s{S_G}, 8')
            for e in range(6): I(f'v_mov_b32 v{R0+e}, v{R1+e}')
            I(f's_mov_b32 s57, 8\ns_branch L_late2')
            k.label('L_late7')
            I(f's_mov_b32 s57, 7')
            k.label('L_late2')
            I(f'buffer_load_dword v{VF}, v{VFA}, {sr(S_WS,4)}, s{S_FL} offen sc1\ns_waitcnt vmcnt(0)')
            spin(3, 'b')
            partials()
            I('s_waitcnt vmcnt(0)')
            finish(R0, 's57')
        else:
            k.label('L_st8')
            if fine: stamp(); stamp()
            I(f's_cmp_eq_u32 s{S_W}, 7\ns_cbranch_scc1 L_late7')
            I(f's_cmp_ge_u32 s{S_W}, 5\ns_cbranch_scc1 L_w56\ns_waitcnt vmcnt(1)\ns_branch L_have')
            k.label('L_w56')
            I('s_waitcnt vmcnt(0)')
            k.label('L_have')
            finish(R0, f's{S_W}')
            I(f's_cmp_eq_u32 s{S_W}, 0\ns_cbranch_scc0 L_ikr_done\ns_mov_b32 s{S_G}, 8')
            for e in range(6): I(f'v_mov_b32 v{R0+e}, v{R1+e}')
            I(f's_mov_b32 s57, 8\ns_branch L_late2')
            k.label('L_late7')
            I(f's_mov_b32 s57, 7')
            k.label('L_late2')
            I(f's_waitcnt vmcnt(0)\ns_mov_b32 s{S_CNT}, 0x40000')
            k.label('L_retry')
            partials()
            I('s_waitcnt vmcnt(0)')
            I(f'v_max3_u32 v22, v{PR}, v{PR+1}, v{PR+2}')
            for e in range(3, 31, 2): I(f'v_max3_u32 v22, v22, v{PR+e}, v{PR+e+1}')
            I(f'v_max_u32 v22, v22, v{PR+31}')
            I(f'v_cmp_eq_u32 vcc, -1, v22\ns_sub_u32 s{S_CNT}, s{S_CNT}, 1\ns_cmp_eq_u32 s{S_CNT}, 0\ns_cbranch_scc1 L_got\ns_nop 1\ns_cbranch_vccnz L_retry')
            k.label('L_got')
            finish(R0, 's57')
        k.label('L_ikr_done')
    if classes:
        import copy
        st0 = (dict(k.cnt), dict(k.done), dict(atok), ctr[0], nst[0], group.btk)
        I(f's_cmp_ge_u32 s{S_W}, 4\ns_cbranch_scc1 L_main1')
        if cls_prio == 0: I('s_setprio 1')
        main(0)
        I('s_branch L_main_done')
        k.label('L_main1')
        k.cnt, k.done = dict(st0[0]), dict(st0[1]); atok.clear(); atok.update(st0[2]); ctr[0] = st0[3]; nst[0] = st0[4]; group.btk = st0[5]
        if cls_prio == 1: I('s_setprio 1')
        main(1)
        k.label('L_main_done')
    else:
        main(0)
    stamp()
    I('s_waitcnt vmcnt(0)')
    stamp()
    if stamps:
        I('s_waitcnt lgkmcnt(0)')
        I(f's_lshl_b32 s46, s2, 6\ns_add_u32 s46, s46, {OFF_DBG}')
        for i in range(nst[0]):
            I(f'v_mov_b32 v2, s{64+2*i}\nv_mov_b32 v3, 0')
            I(f'buffer_store_dword v2, v3, {sr(S_WS,4)}, s46 offen offset:{4*i}')
            if not fine:
                I(f'v_mov_b32 v2, s{80+2*i}')
                I(f'buffer_store_dword v2, v3, {sr(S_WS,4)}, s46 offen offset:{32+4*i}')
        I('s_waitcnt vmcnt(0)')
    if dbgout:
        I(f's_cmp_eq_u32 s2, 0\ns_cbranch_scc0 L_mlp_end\ns_cmp_eq_u32 s{S_W}, 0\ns_cbranch_scc0 L_mlp_end')
        I('s_load_dwordx2 s[20:21], s[0:1], 120\ns_mov_b64 exec, -1\ns_waitcnt vmcnt(0) lgkmcnt(0)')
        I('s_sub_u32 s20, s20, 1024\ns_subb_u32 s21, s21, 0\ns_mov_b32 s22, 1280\ns_mov_b32 s23, 0x20000')
        I(f'v_and_b32 v2, 63, v0\nv_lshlrev_b32 v3, 2, v2')
        srcs = [OFF_DBG + 0x20000 + 4*4, OFF_DBG + 0x10000, OFF_DBG + 0x10000 + 4*5, OFF_DBG + 0x10000 + 4*6, OFF_DBG + 0x10000 + 4*9] + [OFF_DBG + 4*i for i in range(11)]
        I('v_mov_b32 v4, 0')
        for i, o in enumerate(srcs):
            I(f'v_cmp_eq_u32 vcc, {i}, v2\nv_mov_b32 v5, {o}\ns_nop 0\nv_cndmask_b32 v4, v4, v5, vcc')
        I(f'buffer_load_dword v6, v4, {sr(S_WS,4)}, 0 offen sc1')
        I(f'v_mov_b32 v7, {OFF_DBG + 0x20000}\nbuffer_load_dword v8, v7, {sr(S_WS,4)}, 0 offen sc1\ns_waitcnt vmcnt(0)')
        I('v_sub_u32 v6, v6, v8\nv_cmp_gt_u32 vcc, 16, v2\ns_nop 1\ns_and_saveexec_b64 s[50:51], vcc')
        I('buffer_store_dword v6, v3, s[20:23], 0 offen\nbuffer_store_dword v6, v3, s[20:23], 0 offen offset:1024\ns_waitcnt vmcnt(0)')
    k.label('L_mlp_end')
    I('s_endpgm')
    errs = hazards(k.lines, 'mlp')
    for e in errs: print('HAZARD', e)
    return k, LDS_BYTES

if __name__ == '__main__':
    k, lds = build()
    print(len(k.lines), 'lines; lds', lds)
```

```python
import sys, importlib
HEAD = open('adaLN_cond__ssm_conv_s4d__mixer_channel_mlp__prompt.s.ref').read().split('; Override')[0]
FINAL = 'adaLN_cond__ssm_conv_s4d__mixer_channel_mlp__prompt.s'
def make(path, kernels):
    out = [HEAD.rstrip('\n')]
    for k, g, b, lds in kernels:
        out.append(f'; @launch kernel={k.name} grid=({g},1,1) block=({b},1,1) lds={lds}')
    out.append('.amdgcn_target "amdgcn-amd-amdhsa--gfx950"')
    seen = set()
    for k, g, b, lds in kernels:
        if k.name in seen: continue
        seen.add(k.name); out.append(k.text())
    open(path, 'w').write('\n'.join(out))
def full(path, mlp_kw={}, conv_kw={}, prep_kw={}, comb_kw={}):
    import k_mlp, k_comb, k_prep
    import k_conv
    p, pl = k_prep.build(**prep_kw); cv, cl = k_conv.build(**conv_kw); m, ml = k_mlp.build(**mlp_kw); c, _ = k_comb.build(**comb_kw)
    L = [(p, k_prep.GRID, 256, pl), (cv, 192, 768, cl), (m, 256, 512, ml)]
    if not mlp_kw.get('ikr'): L.append((c, 576, 256, 0))
    make(path, L)
if __name__ == '__main__':
    kw = dict(inter=True, prefetch=False, nF=4, ikr=True, rot=True)
    full(FINAL, mlp_kw=kw)
    m = dict(stamps=True, fine=True, **kw)
    st = dict(conv_kw=dict(stamps=True), prep_kw=dict(stamps=True))
    full('t_b.s', mlp_kw=m, **st)
    full('t_b2.s', mlp_kw=dict(m, wspread=False), **st)
    full('t_b3.s', mlp_kw=dict(m, wlate=False, wspread=False), **st)
```

```python
from asmlib import Kern, hazards
from layout import *
import struct
def vr(a, n): return f'v[{a}:{a+n-1}]'
KC = 4416
L_H = 28672
L_U = L_H + 48 * 160
LDS_CH = L_U + 32 * 160
LDS_BYTES = 3 * LDS_CH
XT_PITCH = 4096

def build(stamps=False, wpf=True, xmap=True, no_mfma=False, no_a=False, no_b=False, prio=True, sent=False, wpf_early=False, ulate=True, split=True):
    NCH = 3
    LB = 's61'
    k = Kern('conv_kernel', 128, 96)
    I = k.I
    k.stamp_init(stamps, 64, OFF_DBG + 0x10000)
    NW = 256 if split else 192
    I(f's_cmp_ge_u32 s2, {NW}\ns_cbranch_scc1 L_conv_end')
    I('s_mov_b32 s55, s2')
    if not split: I('s_and_b32 s34, s2, 7\ns_mul_i32 s34, s34, 24\ns_lshr_b32 s2, s2, 3\ns_add_u32 s2, s2, s34')
    I('s_load_dwordx2 s[20:21], s[0:1], 48\ns_load_dwordx2 s[26:27], s[0:1], 128')
    I(f's_cmp_lt_u32 s55, {NW // 2}\ns_cselect_b32 s54, 64, 80\ns_load_dwordx2 s[56:57], s[0:1], s54')
    k.stamp()
    I('v_mov_b32 v42, v0\nv_lshrrev_b32 v2, 6, v0\nv_and_b32 v0, 255, v0\nv_and_b32 v1, 63, v0\nv_and_b32 v3, 15, v1\nv_lshrrev_b32 v4, 4, v1')
    I('v_readfirstlane_b32 s33, v2')
    if not split:
        I(f's_nop 3\ns_lshr_b32 s34, s33, 2\ns_and_b32 s33, s33, 3\ns_mul_i32 s2, s2, 3\ns_add_u32 s2, s2, s34\ns_mul_i32 {LB}, s34, {LDS_CH}')
        I('s_mov_b32 s62, 1\ns_mov_b32 s63, 1')
    else:
        I(f's_nop 3\ns_lshr_b32 s34, s33, 2\ns_and_b32 s33, s33, 3\ns_mul_i32 {LB}, s34, {LDS_CH}')
        I('s_and_b32 s48, s55, 7\ns_lshr_b32 s49, s55, 3')
        I('s_lshl_b32 s2, s48, 6\ns_lshl_b32 s50, s49, 1\ns_add_u32 s2, s2, s50\ns_add_u32 s2, s2, s34\ns_mov_b32 s62, 1\ns_mov_b32 s63, 1')
        I('s_cmp_eq_u32 s34, 2\ns_cbranch_scc0 L_conv_whole')
        I('s_cmp_ge_u32 s49, 16\ns_cbranch_scc1 L_conv_end')
        I('s_lshl_b32 s2, s48, 3\ns_lshr_b32 s50, s49, 1\ns_add_u32 s2, s2, s50\ns_add_u32 s2, s2, 512\ns_and_b32 s62, s49, 1\ns_mov_b32 s63, 0')
        k.label('L_conv_whole')
    I('v_lshlrev_b32 v5, 4, v0')
    I('s_waitcnt lgkmcnt(0)')
    I(f's_mov_b32 s4, s26\ns_mov_b32 s5, s27\ns_mov_b32 s6, {WS_BYTES}\ns_mov_b32 s7, 0x20000')
    I('s_and_b32 s34, s2, 0xfffffffe\ns_lshl_b32 s34, s34, 1\ns_load_dword s35, s[20:21], s34')
    I('v_lshrrev_b32 v6, 2, v0\nv_mul_u32_u24 v6, 36864, v6\nv_and_b32 v7, 3, v0\nv_lshlrev_b32 v7, 4, v7\nv_add_u32 v30, v6, v7')
    I(f's_lshl_b32 s36, s2, 6\ns_add_u32 s37, s36, {OFF_NT}\ns_add_u32 s36, s36, {OFF_UT}')
    tn = k.vm('buffer_load_dwordx4 v[16:19], v30, s[4:7], s37 offen')
    I(f's_mul_i32 s38, s2, {KG_PITCH}\ns_add_u32 s38, s38, {OFF_KG}')
    k.vm('buffer_load_dwordx4 v[24:27], v5, s[4:7], s38 offen')
    tkk = k.vm('buffer_load_dwordx2 v[28:29], v5, s[4:7], s38 offen offset:16')
    if not ulate: tu = k.vm('buffer_load_dwordx4 v[20:23], v30, s[4:7], s36 offen')
    I(f'v_mul_u32_u24 v6, 2304, v1\ns_lshl_b32 s39, s2, 2\ns_add_u32 s39, s39, {OFF_MODP}')
    tm = None
    I('v_cmp_gt_u32 vcc, 6, v1\ns_nop 1\ns_and_saveexec_b64 s[42:43], vcc')
    for p in range(9):
        I(f's_add_u32 s40, s39, {p*13824}')
        tm = k.vm(f'buffer_load_dword v{32+p}, v6, s[4:7], s40 offen')
    I('s_mov_b64 exec, s[42:43]')
    def do_wpf():
        nl = 82944 // NW
        I('s_mov_b32 s58, 5308416\ns_mov_b32 s59, 0x20000')
        I(f's_cmp_lt_u32 s55, {NW // 2}\ns_cselect_b32 s54, 0, {NW // 2}\ns_sub_u32 s54, s55, s54\ns_mul_i32 s54, s54, {nl * 128}')
        I(f'v_lshlrev_b32 v10, 7, v42\nv_add_u32 v10, s54, v10\nv_cmp_gt_u32 vcc, {nl}, v42\ns_nop 1\nv_cndmask_b32 v10, -16, v10, vcc')
        k.vm('buffer_load_dword v31, v10, s[56:59], 0 offen')
    if wpf and wpf_early: do_wpf()
    I(f's_cmp_lt_u32 s2, 32\ns_cbranch_scc0 L_conv_nofl\ns_lshl_b32 s40, s2, 7\ns_add_u32 s40, s40, {OFF_FLAG}')
    I('v_mov_b32 v44, 0\nv_lshlrev_b32 v7, 2, v0\nv_cmp_gt_u32 vcc, 32, v0\ns_nop 1\ns_and_saveexec_b64 s[42:43], vcc')
    I('buffer_store_dword v44, v7, s[4:7], s40 offen')
    I('s_mov_b64 exec, s[42:43]')
    k.label('L_conv_nofl')
    for r in range(4): I(f'v_mov_b32 v{44+r}, 0')
    I(f'v_cmp_gt_u32 vcc, 160, v0\nv_add_u32 v7, {L_H}, v5\nv_add_u32 v7, {LB}, v7\ns_and_saveexec_b64 s[42:43], vcc')
    k.ds('ds_write_b128 v7, v[44:47]')
    I('s_mov_b64 exec, s[42:43]')
    I(f'v_lshrrev_b32 v7, 3, v0\nv_mul_u32_u24 v7, {KC}, v7\nv_and_b32 v8, 7, v0\nv_lshlrev_b32 v8, 4, v8\nv_add_u32 v7, v7, v8\nv_add_u32 v7, 4096, v7\nv_add_u32 v7, {LB}, v7\nv_add_u32 v43, {LB}, v5')
    I('v_cmp_gt_u32 vcc, 32, v0\ns_nop 1\ns_and_saveexec_b64 s[42:43], vcc')
    k.ds('ds_write_b128 v7, v[44:47]')
    I('s_mov_b64 exec, s[42:43]')
    k.wait(tkk)
    k.stamp()
    W = [24, 25, 26, 27, 28, 29]
    k.ds('ds_write_b128 v43, v[24:27]')
    for j in range(4): I(f'v_alignbit_b32 v{48+j}, v{W[j+1]}, v{W[j]}, 16')
    k.ds(f'ds_write_b128 v43, v[48:51] offset:{KC}')
    for j in range(4): I(f'v_mov_b32 v{52+j}, v{W[j+1]}')
    k.ds(f'ds_write_b128 v43, v[52:55] offset:{2*KC}')
    for j in range(4): I(f'v_alignbit_b32 v{56+j}, v{W[j+2]}, v{W[j+1]}, 16')
    k.ds(f'ds_write_b128 v43, v[56:59] offset:{3*KC}')
    k.wait(tm)
    k.stamp()
    for p in range(1, 9): I(f'v_add_f32 v32, v32, v{32+p}')
    I('v_cvt_pk_bf16_f32 v32, v32, v32\nv_and_b32 v32, 0xffff0000, v32')
    I('v_add_f32 v33, 1.0, v32\nv_cvt_pk_bf16_f32 v33, v33, v33\nv_and_b32 v33, 0xffff0000, v33')
    I('v_cmp_eq_u32 vcc, 1, v1\nv_cmp_eq_u32 s[42:43], 4, v1\ns_nop 1\ns_or_b64 vcc, vcc, s[42:43]\ns_nop 1')
    I('v_cndmask_b32 v32, v32, v33, vcc\ns_nop 1')
    I('v_readlane_b32 s44, v32, 0\nv_readlane_b32 s45, v32, 1\nv_readlane_b32 s46, v32, 2')
    I('s_cmp_eq_u32 s33, 0\ns_cbranch_scc0 L_conv_nomod')
    I('v_sub_u32 v34, 8, v1\nv_cmp_gt_u32 vcc, 3, v1\ns_nop 1\nv_cndmask_b32 v34, v34, v1, vcc')
    I(f'v_mul_u32_u24 v34, 2304, v34\ns_lshl_b32 s40, s2, 2\ns_add_u32 s40, s40, {OFF_MODF}')
    I('v_cmp_gt_u32 vcc, 6, v1\ns_nop 1\ns_and_saveexec_b64 s[42:43], vcc')
    I('buffer_store_dword v32, v34, s[4:7], s40 offen')
    I('s_mov_b64 exec, s[42:43]')
    k.label('L_conv_nomod')
    k.wait(tn)
    k.stamp()
    I('v_mov_b32 v38, s45\nv_mov_b32 v39, s44')
    for j in range(4):
        I(f'v_lshlrev_b32 v36, 16, v{16+j}\nv_and_b32 v37, 0xffff0000, v{16+j}')
        I(f'v_fma_f32 v36, v36, v38, v39\nv_fma_f32 v37, v37, v38, v39\nv_cvt_pk_bf16_f32 v{16+j}, v36, v37')
    I(f'v_lshrrev_b32 v7, 3, v0\nv_mul_u32_u24 v7, 160, v7\nv_and_b32 v8, 7, v0\nv_lshlrev_b32 v8, 4, v8\nv_add_u32 v7, v7, v8\nv_add_u32 v7, {LB}, v7')
    k.ds(f'ds_write_b128 v7, v[16:19] offset:{L_H + 16*160}')
    if not ulate:
        k.wait(tu)
        k.ds(f'ds_write_b128 v7, v[20:23] offset:{L_U}')
    else: I('v_mov_b32 v29, v7')
    k.stamp()
    VA, VB = 8, 9
    I('v_sub_u32 v10, 3, v3\nv_and_b32 v10, 3, v10')
    I(f'v_mul_u32_u24 v11, {KC}, v10\nv_lshlrev_b32 v12, 3, v4\nv_sub_u32 v12, v12, v3\nv_sub_u32 v12, v12, v10\nv_add_u32 v12, 2047, v12\nv_lshlrev_b32 v12, 1, v12\nv_add_u32 v14, v11, v12\nv_add_u32 v14, {LB}, v14')
    I(f'v_mul_u32_u24 v11, 160, v3\nv_lshlrev_b32 v12, 4, v4\nv_add_u32 v11, v11, v12\nv_add_u32 v15, {L_H + 16*160}, v11\nv_add_u32 v15, {LB}, v15')
    I('s_mul_i32 s48, s33, 6\ns_mov_b32 s49, 3\ns_mov_b32 s50, 16\ns_mov_b32 s51, 0')
    I('s_cmp_eq_u32 s33, 2\ns_cselect_b32 s49, 2, s49\ns_cselect_b32 s51, 2, s51')
    I('s_cmp_eq_u32 s33, 3\ns_cselect_b32 s49, 0, s49\ns_cselect_b32 s50, 20, s50\ns_cselect_b32 s51, 6, s51')
    I('s_cmp_eq_u32 s63, 0\ns_cbranch_scc0 L_conv_segs\ns_mov_b32 s49, 0\ns_add_u32 s51, s62, 1\ns_lshl_b32 s51, s51, 1\ns_lshl_b32 s50, s51, 1\ns_mul_i32 s50, s50, s33')
    k.label('L_conv_segs')
    I('s_mul_i32 s60, s62, 2560')
    ACC = (64, 80); AF = 96
    BF = 32
    for r in range(32): I(f'v_mov_b32 v{64+r}, 0')
    k.waitall()
    I('s_barrier')
    k.stamp()
    if sent:
        for r in range(4): I(f'v_mov_b32 v{16+r}, -1')
        for rnd in range(2):
            I(f's_mul_i32 s40, s55, 768\ns_add_u32 s40, s40, {rnd*147456}\nv_add_u32 v20, s40, v42')
            I(f'v_lshrrev_b32 v21, 10, v20\nv_mul_u32_u24 v21, 73728, v21\nv_and_b32 v22, 1023, v20\nv_lshlrev_b32 v22, 4, v22\nv_add_u32 v21, v21, v22')
            I('v_cmp_gt_u32 vcc, 262144, v20\ns_nop 1' if False else f's_mov_b32 s41, 262144\nv_cmp_gt_u32 vcc, s41, v20\ns_nop 1')
            I('v_cndmask_b32 v21, -16, v21, vcc')
            I(f's_mov_b32 s41, {OFF_PART + 7*8192}')
            I('buffer_store_dwordx4 v[16:19], v21, s[4:7], s41 offen sc1')
        I('s_nop 1')
    if ulate: tu = k.vm('buffer_load_dwordx4 v[20:23], v30, s[4:7], s36 offen')
    if wpf and not wpf_early: do_wpf()
    def a_read(slot, o):
        off = 32 * (3 - o)
        if no_a and a_read.inloop: return None
        k.ds(f'ds_read_b64 {vr(AF+4*slot,2)}, v{VA} offset:{off}')
        return k.ds(f'ds_read_b64 {vr(AF+4*slot+2,2)}, v{VA} offset:{off+8}')
    a_read.inloop = False
    def b_read(buf, j, s, dual):
        if no_b and a_read.inloop: return None
        off = 64 * s + (2560 * j if dual else 0)
        return k.ds(f'ds_read_b128 {vr(BF+16*buf+8*j+4*s,4)}, v{VB} offset:{off}')
    def segment(name, dual, s_d0, s_n):
        js = (0, 1) if dual else (1,)
        I(f's_cmp_eq_u32 s{s_n}, 0\ns_cbranch_scc1 L_{name}_skip')
        I(f's_lshl_b32 s52, s{s_d0}, 7\ns_add_u32 s52, s52, 96\nv_subrev_u32 v{VA}, s52, v14')
        I(f's_mul_i32 s52, s{s_d0}, 160\ns_sub_u32 s52, {"0" if dual else "s60"}, s52\nv_add_u32 v{VB}, s52, v15')
        tok = {}
        for o in (-2, -1):
            slot = o % 8
            k.ds(f'ds_read_b64 {vr(AF+4*slot,2)}, v{VA} offset:{32*(3-o)}')
            tok[slot] = k.ds(f'ds_read_b64 {vr(AF+4*slot+2,2)}, v{VA} offset:{32*(3-o)+8}')
        for o in range(4): tok[o] = a_read(o, o)
        btok = {0: None, 1: None}
        for j in js:
            for s in range(2): btok[0] = b_read(0, j, s, dual)
        k.waitall(vm=False)
        state = dict(tok=tok, btok=btok)
        def unit(par):
            sl = lambda o: (4 * par + o) % 8
            nb = 1 - par
            def mm(j, i, s):
                if not no_mfma: I(f'v_mfma_f32_16x16x32_bf16 {vr(ACC[j]+4*i,4)}, {vr(AF+4*sl(i-2*s),4)}, {vr(BF+16*par+8*j+4*s,4)}, {vr(ACC[j]+4*i,4)}')
            def an(o): state['tok'][sl(4 + o)] = a_read(sl(4 + o), o)
            def bn(j, s): state['btok'][nb] = b_read(nb, j, s, dual)
            k.wait(state['btok'][par], *[state['tok'][sl(o)] for o in (-2, -1, 0, 1)])
            t2 = state['tok'][sl(2)]; t3 = state['tok'][sl(3)]
            if dual:
                mm(0, 0, 1)
                I(f'v_subrev_u32 v{VA}, 128, v{VA}\nv_subrev_u32 v{VB}, 160, v{VB}')
                mm(1, 0, 1); bn(0, 0)
                mm(0, 1, 1); bn(0, 1)
                mm(1, 1, 1); bn(1, 0)
                mm(0, 2, 1); bn(1, 1)
                mm(1, 2, 1); an(0)
                mm(0, 3, 1)
                mm(1, 3, 1); an(1)
                mm(0, 0, 0)
                mm(1, 0, 0); an(2)
                mm(0, 1, 0)
                mm(1, 1, 0)
                k.wait(t2, t3)
                mm(0, 2, 0); an(3)
                mm(1, 2, 0)
                mm(0, 3, 0)
                mm(1, 3, 0)
            else:
                mm(1, 0, 1)
                I(f'v_subrev_u32 v{VA}, 128, v{VA}\nv_subrev_u32 v{VB}, 160, v{VB}')
                mm(1, 1, 1); bn(1, 0)
                mm(1, 2, 1); bn(1, 1)
                mm(1, 3, 1); an(0)
                mm(1, 0, 0); an(1)
                mm(1, 1, 0); an(2)
                k.wait(t2, t3)
                mm(1, 2, 0); an(3)
                mm(1, 3, 0)
        def body():
            a_read.inloop = True
            unit(0); unit(1)
            a_read.inloop = False
        save = len(k.lines)
        body(); del k.lines[save:]
        body(); second = k.lines[save:]; del k.lines[save:]
        k.label(f'L_{name}_loop')
        st = len(k.lines)
        body()
        assert k.lines[st:] == second
        for e in hazards(second + second, name): print('HAZARD', e)
        I(f's_sub_u32 s{s_n}, s{s_n}, 1\ns_cmp_lg_u32 s{s_n}, 0\ns_cbranch_scc1 L_{name}_loop')
        k.waitall(vm=False)
        k.label(f'L_{name}_skip')
    segment('segA', True, 48, 49)
    segment('segB', False, 50, 51)
    if ulate:
        k.wait(tu)
        I(f'ds_write_b128 v29, v[20:23] offset:{L_U}')
    k.stamp()
    I('s_barrier')
    k.stamp()
    I(f'v_lshlrev_b32 v10, 4, v1\nv_add_u32 v10, {LB}, v10')
    I('s_lshl_b32 s52, s33, 12\nv_add_u32 v11, s52, v10')
    I('s_cmp_eq_u32 s63, 0\ns_cbranch_scc1 L_conv_noA\ns_cmp_lt_u32 s33, 3\ns_cbranch_scc0 L_conv_noA\ns_nop 4')
    for i in range(4): I(f'ds_write_b128 v11, {vr(ACC[0]+4*i,4)} offset:{i*1024}')
    k.label('L_conv_noA')
    I('s_nop 4')
    for i in range(4): I(f'ds_write_b128 v11, {vr(ACC[1]+4*i,4)} offset:{3*4096 + i*1024}')
    I('s_waitcnt lgkmcnt(0)\ns_barrier')
    I('s_lshl_b32 s52, s33, 10\nv_add_u32 v11, s52, v10')
    for s_ in range(7): I(f'ds_read_b128 {vr(64+4*s_,4)}, v11 offset:{s_*4096}')
    I(f'v_mul_u32_u24 v12, 160, v3\nv_lshlrev_b32 v13, 3, v4\nv_add_u32 v12, v12, v13\ns_lshl_b32 s52, s33, 5\ns_add_u32 s52, s52, {LB}\nv_add_u32 v12, s52, v12')
    I('v_add_u32 v11, s60, v12')
    for j in range(2): I(f'ds_read_b64 {vr(96+2*j,2)}, v{(12, 11)[j]} offset:{L_H + 16*160}')
    for j in range(2): I(f'ds_read_b64 {vr(100+2*j,2)}, v{(12, 11)[j]} offset:{L_U}')
    I('s_bitcmp1_b32 s2, 0\ns_cselect_b32 s53, 0, 16\ns_lshl_b32 s35, s35, s53\ns_and_b32 s35, s35, 0xffff0000')
    I('v_mov_b32 v22, s35\nv_mov_b32 v23, s46')
    I('v_mul_u32_u24 v13, 73728, v3\nv_lshlrev_b32 v12, 3, v4\nv_add_u32 v13, v13, v12\ns_lshl_b32 s52, s33, 5\nv_add_u32 v13, s52, v13')
    I(f's_lshl_b32 s52, s2, 7\ns_add_u32 s52, s52, {OFF_X1T}\ns_mul_i32 s53, s62, {16*73728}\ns_add_u32 s53, s53, s52')
    I('s_waitcnt lgkmcnt(0)')
    for r in range(4):
        I(f'v_add_f32 v{64+r}, v{64+r}, v{68+r}\nv_add_f32 v{76+r}, v{76+r}, v{80+r}\nv_add_f32 v{84+r}, v{84+r}, v{88+r}')
    for r in range(4):
        I(f'v_add_f32 v{64+r}, v{64+r}, v{72+r}\nv_add_f32 v{76+r}, v{76+r}, v{84+r}')
    for j in range(2):
        y = (64, 76)[j]
        if j == 0: I('s_cmp_eq_u32 s63, 0\ns_cbranch_scc1 L_conv_noj0')
        else: k.label('L_conv_noj0')
        for d in range(2):
            hreg, ureg = 96 + 2*j + d, 100 + 2*j + d
            y0, y1 = y + 2*d, y + 2*d + 1
            I(f'v_lshlrev_b32 v17, 16, v{hreg}\nv_and_b32 v18, 0xffff0000, v{hreg}\nv_lshlrev_b32 v20, 16, v{ureg}\nv_and_b32 v21, 0xffff0000, v{ureg}')
            I(f'v_fma_f32 v17, v17, v22, v{y0}\nv_fma_f32 v18, v18, v22, v{y1}')
            I(f'v_fma_f32 v17, v17, v23, v20\nv_fma_f32 v18, v18, v23, v21\nv_cvt_pk_bf16_f32 v{24+2*j+d}, v17, v18')
        I(f'buffer_store_dwordx2 {vr(24+2*j,2)}, v13, s[4:7], s{52+j} offen')
    k.stamp()
    I('s_waitcnt vmcnt(0)')
    k.stamp()
    k.stamp_store('s[4:7]', idreg='s55')
    k.label('L_conv_end')
    I('s_endpgm')
    for e in hazards(k.lines, 'conv'): print('HAZARD', e)
    return k, LDS_BYTES
if __name__ == '__main__':
    k, lds = build(); print(len(k.lines), lds)
```

```python
from asmlib import Kern, hazards
from layout import *
import struct, math
def vr(a, n): return f'v[{a}:{a+n-1}]'
f2u = lambda x: struct.unpack('<I', struct.pack('<f', x))[0]
N_LN, N_KG, N_MOD = 64, 576, 243
GRID = N_LN + N_KG + N_MOD
L_F = 0
L_G = 16 * 528
TB = L_F + 8
TP = 1184
T_BYTES = 32 * TP + 384
LDS_BYTES = max(T_BYTES, 64 * 528, 8192)

def build(stamps=False, prio=True, xmap='split', sent=False, stf='', mlate=True, bal=True):
    k = Kern('prep_kernel', 128, 96)
    I = k.I
    k.stamp_init(stamps, 64, OFF_DBG + 0x20000)
    I(f's_cmp_ge_u32 s2, {GRID}\ns_cbranch_scc1 L_prep_end')
    I('s_load_dwordx2 s[26:27], s[0:1], 128')
    k.stamp()
    if stamps: I('s_mov_b32 s59, s2')
    I('v_and_b32 v1, 63, v0\nv_lshrrev_b32 v2, 6, v0')
    I('s_nop 0\nv_readfirstlane_b32 s33, v2')
    if not bal:
        I(f's_cmp_ge_u32 s2, {N_LN + N_KG}\ns_cbranch_scc1 L_mod')
        I(f's_cmp_ge_u32 s2, {N_LN}\ns_cbranch_scc1 L_kgen')
    else:
        I('s_lshr_b32 s34, s2, 3\ns_and_b32 s35, s2, 7')
        I('s_cmp_lt_u32 s34, 8\ns_cbranch_scc1 L_ln')
        I('s_sub_u32 s36, s34, 8\ns_cmp_lt_u32 s34, 64\ns_cbranch_scc1 L_kmap')
        I('s_sub_u32 s36, s34, 16\ns_sub_u32 s37, s34, 72\ns_cmp_lt_u32 s37, 16\ns_cbranch_scc1 L_kmap')
        I('s_sub_u32 s36, s34, 64\ns_sub_u32 s37, s34, 80\ns_cmp_lt_u32 s34, 72\ns_cselect_b32 s36, s36, s37')
        I(f's_lshl_b32 s36, s36, 3\ns_add_u32 s36, s36, s35\ns_add_u32 s2, s36, {N_LN + N_KG}\ns_branch L_mod')
        k.label('L_kmap')
        I(f's_lshl_b32 s36, s36, 3\ns_add_u32 s36, s36, s35\ns_add_u32 s2, s36, {N_LN}\ns_branch L_kgen')
        k.label('L_ln')
    I('s_load_dwordx2 s[20:21], s[0:1], 0')
    if prio: I('s_setprio 3')
    I('v_lshrrev_b32 v3, 3, v0\nv_and_b32 v4, 7, v0')
    I('s_lshl_b32 s34, s2, 5\nv_add_u32 v5, s34, v3\nv_mul_u32_u24 v5, 1152, v5\nv_lshlrev_b32 v6, 4, v4\nv_add_u32 v5, v5, v6')
    I('s_waitcnt lgkmcnt(0)')
    I(f's_mov_b32 s4, s26\ns_mov_b32 s5, s27\ns_mov_b32 s6, {WS_BYTES}\ns_mov_b32 s7, 0x20000')
    I('s_mov_b32 s8, s20\ns_mov_b32 s9, s21\ns_mov_b32 s10, 2359296\ns_mov_b32 s11, 0x20000')
    U, X = 16, 52
    tk = [k.vm(f'buffer_load_dwordx4 {vr(U+4*m,4)}, v5, s[8:11], 0 offen offset:{m*128}') for m in range(9)]
    I(f'v_mul_u32_u24 v7, {TP}, v3\nv_lshrrev_b32 v8, 3, v3\nv_lshlrev_b32 v8, 7, v8\nv_add_u32 v7, v7, v8\nv_add_u32 v7, v7, v6')
    I('v_mov_b32 v10, 0\nv_mov_b32 v11, 0')
    for m in range(9):
        k.wait(tk[m])
        k.ds(f'ds_write_b128 v7, {vr(U+4*m,4)} offset:{m*128}')
        for d in range(4):
            I(f'v_lshlrev_b32 v{X+8*m+2*d}, 16, v{U+4*m+d}\nv_and_b32 v{X+8*m+2*d+1}, 0xffff0000, v{U+4*m+d}')
        for d in range(4): I(f'v_pk_add_f32 v[10:11], v[10:11], {vr(X+8*m+2*d,2)}')
    k.stamp()
    I('v_lshrrev_b32 v3, 4, v1\nv_and_b32 v4, 15, v1\nv_lshrrev_b32 v5, 2, v4\nv_and_b32 v6, 3, v1')
    I(f'v_lshlrev_b32 v14, 3, v3\nv_add_u32 v14, v14, v5\nv_mul_u32_u24 v14, {TP}, v14\nv_lshlrev_b32 v8, 7, v3\nv_add_u32 v14, v14, v8')
    I('v_lshlrev_b32 v8, 3, v6\nv_add_u32 v14, v14, v8\ns_mul_i32 s35, s33, 288\nv_add_u32 v14, s35, v14')
    I('s_mul_i32 s35, s33, 144\nv_add_u32 v8, s35, v4\nv_lshlrev_b32 v8, 6, v8\nv_lshlrev_b32 v9, 4, v3\nv_add_u32 v8, v8, v9\ns_mul_i32 s35, s2, 36864\nv_add_u32 v8, s35, v8')
    def transposed(arr, off, rb):
        tks = []
        for i in range(9):
            k.ds(f'ds_read_b64_tr_b16 {vr(rb+4*i,2)}, v14 offset:{i*32}')
            tks.append(k.ds(f'ds_read_b64_tr_b16 {vr(rb+4*i+2,2)}, v14 offset:{i*32 + 4*TP}'))
        return tks
    def stores(tks, off, rb):
        for i in range(9):
            k.wait(tks[i])
            I(f's_mov_b32 s36, {off + i*1024}')
            k.vm(f'buffer_store_dwordx4 {vr(rb+4*i,4)}, v8, s[4:7], s36 offen {stf}')
    k.waitall(vm=False)
    I('s_barrier')
    tks = transposed(0, OFF_UT, U)
    def red8(reg):
        I(f's_nop 1\nv_add_f32_dpp v{reg}, v{reg}, v{reg} quad_perm:[1,0,3,2] row_mask:0xf bank_mask:0xf')
        I(f's_nop 1\nv_add_f32_dpp v{reg}, v{reg}, v{reg} quad_perm:[2,3,0,1] row_mask:0xf bank_mask:0xf')
        I(f's_nop 1\nv_add_f32_dpp v{reg}, v{reg}, v{reg} row_half_mirror row_mask:0xf bank_mask:0xf')
    I('v_add_f32 v10, v10, v11')
    red8(10)
    I(f'v_mul_f32 v10, {f2u(-1.0/576):#x}, v10\nv_mov_b32 v12, 0\nv_mov_b32 v11, v10\nv_mov_b32 v13, 0')
    utks = tks
    for e in range(36): I(f'v_pk_add_f32 {vr(X+2*e,2)}, {vr(X+2*e,2)}, v[10:11]')
    for e in range(36): I(f'v_pk_fma_f32 v[12:13], {vr(X+2*e,2)}, {vr(X+2*e,2)}, v[12:13]')
    I('v_add_f32 v12, v12, v13')
    red8(12)
    I(f'v_mul_f32 v12, {f2u(1.0/576):#x}, v12\nv_add_f32 v12, {f2u(1e-5):#x}, v12\nv_rsq_f32 v12, v12\ns_nop 0\nv_mov_b32 v13, v12')
    for e in range(36):
        I(f'v_pk_mul_f32 {vr(X+2*e,2)}, {vr(X+2*e,2)}, v[12:13]')
        I(f'v_cvt_pk_bf16_f32 v{X+e}, v{X+2*e}, v{X+2*e+1}')
    k.waitall(vm=False)
    I('s_barrier')
    for m in range(9): k.ds(f'ds_write_b128 v7, {vr(X+4*m,4)} offset:{m*128}')
    k.waitall(vm=False)
    I('s_barrier')
    k.stamp()
    tks = transposed(1, OFF_NT, X + 36)
    stores(tks, OFF_NT, X + 36)
    stores(utks, OFF_UT, U)
    k.stamp()
    I('s_branch L_prep_fin')
    k.st_n = 1
    k.label('L_mod')
    I('s_load_dwordx2 s[20:21], s[0:1], 96\ns_load_dwordx2 s[22:23], s[0:1], 104')
    I(f's_sub_u32 s34, s2, {N_LN + N_KG}\ns_mul_i32 s35, s34, 2428\ns_lshr_b32 s35, s35, 16\ns_mul_i32 s36, s35, 27\ns_sub_u32 s36, s34, s36')
    I('v_and_b32 v3, 15, v0\nv_lshrrev_b32 v4, 4, v0')
    I('s_lshl_b32 s37, s35, 6\nv_add_u32 v5, s37, v4')
    I('v_mul_u32_u24 v6, 6912, v5\nv_lshlrev_b32 v7, 4, v3\nv_add_u32 v6, v6, v7\ns_lshl_b32 s37, s36, 8\nv_add_u32 v6, s37, v6')
    I('v_lshlrev_b32 v5, 1, v5')
    I('s_waitcnt lgkmcnt(0)')
    I(f's_mov_b32 s4, s26\ns_mov_b32 s5, s27\ns_mov_b32 s6, {WS_BYTES}\ns_mov_b32 s7, 0x20000')
    I('s_mov_b32 s8, s20\ns_mov_b32 s9, s21\ns_mov_b32 s10, 1152\ns_mov_b32 s11, 0x20000')
    I('s_mov_b32 s12, s22\ns_mov_b32 s13, s23\ns_mov_b32 s14, 3981312\ns_mov_b32 s15, 0x20000')
    def wloads():
        for i in range(4):
            I(f's_mov_b32 s38, {i*16*6912}')
            k.vm(f'buffer_load_dwordx4 {vr(16+4*i,4)}, v6, s[12:15], s38 offen')
    if not mlate: wloads()
    tc = None
    for i in range(4): tc = k.vm(f'buffer_load_ushort v{32+i}, v5, s[8:11], 0 offen offset:{i*32}')
    k.wait(tc)
    if mlate: wloads()
    k.stamp()
    for i in range(4): I(f'v_lshlrev_b32 v{32+i}, 16, v{32+i}')
    for i in range(4): I(f'v_mul_f32 v{36+i}, {f2u(-math.log2(math.e)):#x}, v{32+i}')
    for i in range(4): I(f'v_exp_f32 v{36+i}, v{36+i}')
    for i in range(4): I(f'v_add_f32 v{36+i}, 1.0, v{36+i}')
    for i in range(4): I(f'v_rcp_f32 v{36+i}, v{36+i}')
    for i in range(4): I(f'v_mul_f32 v{32+i}, v{32+i}, v{36+i}')
    for i in range(4): I(f'v_cvt_pk_bf16_f32 v{32+i}, v{32+i}, v{32+i}\nv_and_b32 v{32+i}, 0xffff0000, v{32+i}')
    for e in range(8): I(f'v_mov_b32 v{40+e}, 0')
    k.waitall(lg=False)
    for i in range(4):
        for d in range(4):
            I(f'v_lshlrev_b32 v48, 16, v{16+4*i+d}\nv_and_b32 v49, 0xffff0000, v{16+4*i+d}')
            I(f'v_fmac_f32 v{40+2*d}, v48, v{32+i}\nv_fmac_f32 v{40+2*d+1}, v49, v{32+i}')
    I('v_lshlrev_b32 v6, 9, v4\nv_lshlrev_b32 v7, 5, v3\nv_add_u32 v6, v6, v7')
    I('ds_write_b128 v6, v[40:43]\nds_write_b128 v6, v[44:47] offset:16')
    I('s_waitcnt lgkmcnt(0)\ns_barrier')
    I('v_cmp_gt_u32 vcc, 128, v0\nv_lshlrev_b32 v6, 2, v0\ns_nop 0\ns_and_saveexec_b64 s[42:43], vcc\ns_cbranch_execz L_prep_fin')
    for g in range(16): I(f'ds_read_b32 v{16+g}, v6 offset:{g*512}')
    I('s_waitcnt lgkmcnt(0)')
    for g in range(1, 16): I(f'v_add_f32 v16, v16, v{16+g}')
    I(f's_mul_i32 s37, s35, 13824\ns_lshl_b32 s38, s36, 9\ns_add_u32 s37, s37, s38\ns_add_u32 s37, s37, {OFF_MODP}')
    I('buffer_store_dword v16, v6, s[4:7], s37 offen')
    k.stamp(); k.stamp()
    I('s_branch L_prep_fin')
    k.label('L_kgen')
    k.st_n = 1
    k.cnt['vm'] = k.done['vm'] = 0; k.cnt['lg'] = k.done['lg'] = 0
    I(f's_sub_u32 s2, s2, {N_LN}')
    if xmap == 'split':
        I('s_and_b32 s34, s2, 7\ns_lshr_b32 s2, s2, 3\ns_lshl_b32 s35, s34, 6\ns_add_u32 s35, s35, s2\ns_lshl_b32 s34, s34, 3\ns_add_u32 s34, s34, s2\ns_add_u32 s34, s34, 448\ns_cmp_lt_u32 s2, 64\ns_cselect_b32 s2, s35, s34')
    elif xmap: I('s_and_b32 s34, s2, 7\ns_mul_i32 s34, s34, 72\ns_lshr_b32 s2, s2, 3\ns_add_u32 s2, s2, s34')
    I('s_load_dwordx2 s[8:9], s[0:1], 8\ns_load_dwordx2 s[12:13], s[0:1], 16\ns_load_dwordx2 s[16:17], s[0:1], 24\ns_load_dwordx2 s[28:29], s[0:1], 32\ns_load_dwordx2 s[20:21], s[0:1], 40')
    I('v_and_b32 v3, 15, v1\nv_lshrrev_b32 v4, 4, v1')
    I('v_and_b32 v6, 127, v0\nv_lshlrev_b32 v7, 1, v6\ns_lshl_b32 s35, s2, 8\nv_add_u32 v7, s35, v7')
    I('s_and_b32 s34, s2, 0xfffffffe\ns_lshl_b32 s34, s34, 1')
    I('s_waitcnt lgkmcnt(0)')
    I('s_load_dword s36, s[20:21], s34')
    I(f's_mov_b32 s4, s26\ns_mov_b32 s5, s27\ns_mov_b32 s6, {WS_BYTES}\ns_mov_b32 s7, 0x20000')
    for b in (8, 12, 16, 28): I(f's_mov_b32 s{b+2}, 147456\ns_mov_b32 s{b+3}, 0x20000')
    tp = None
    for a, b in enumerate((8, 12, 16, 28)): tp = k.vm(f'buffer_load_ushort v{16+a}, v7, s[{b}:{b+3}], 0 offen')
    if sent:
        for r in range(4): I(f'v_mov_b32 v{60+r}, -1')
        for rnd in range(2):
            I(f's_lshl_b32 s40, s2, 8\ns_add_u32 s40, s40, {rnd*147456}\nv_add_u32 v64, s40, v0')
            I('v_lshrrev_b32 v65, 10, v64\nv_bfe_u32 v66, v64, 9, 1\nv_add_u32 v66, v66, v65\nv_add_u32 v66, 6, v66\nv_and_b32 v66, 7, v66\nv_lshlrev_b32 v66, 13, v66')
            I('v_mul_u32_u24 v65, 73728, v65\nv_and_b32 v67, 511, v64\nv_lshlrev_b32 v67, 4, v67\nv_add_u32 v65, v65, v66\nv_add_u32 v65, v65, v67')
            I('s_mov_b32 s41, 262144\nv_cmp_gt_u32 vcc, s41, v64\ns_nop 1\nv_cndmask_b32 v65, -16, v65, vcc')
            I(f's_mov_b32 s41, {OFF_PART}\nbuffer_store_dwordx4 v[60:63], v65, s[4:7], s41 offen sc1')
    if sent: k.cnt['vm'] += 2
    L2E = f2u(math.log2(math.e))
    I('s_waitcnt lgkmcnt(0)')
    k.done['lg'] = k.cnt['lg']
    I('s_bitcmp1_b32 s2, 0\ns_cselect_b32 s53, 0, 16\ns_lshl_b32 s36, s36, s53\ns_and_b32 s36, s36, 0xffff0000')
    I(f'v_mov_b32 v10, s36\nv_mul_f32 v10, {L2E:#x}, v10\nv_exp_f32 v10, v10\ns_nop 0\nv_cvt_pk_bf16_f32 v10, v10, v10\nv_and_b32 v10, 0xffff0000, v10')
    I('v_lshlrev_b32 v11, 2, v6')
    k.wait(tp)
    k.stamp()
    AR, AI, CC, T0 = 20, 21, 22, 24
    for r in range(16, 20): I(f'v_lshlrev_b32 v{r}, 16, v{r}')
    I(f'v_mul_f32 v16, {L2E:#x}, v16\nv_exp_f32 v16, v16\ns_nop 0\nv_cvt_pk_bf16_f32 v16, v16, v16\nv_and_b32 v16, 0xffff0000, v16')
    I(f'v_mul_f32 v16, v16, v10\nv_mul_f32 v{AR}, {f2u(-math.log2(math.e)):#x}, v16')
    I(f'v_mul_f32 v17, v17, v10\nv_mul_f32 v{AI}, {f2u(1.0/(2*math.pi)):#x}, v17')
    I(f'v_mul_f32 v18, v18, v10\nv_mul_f32 v19, v19, v10\nv_add_f32 v{CC}, v18, v18\nv_add_f32 v{CC+1}, v19, v19')
    def direct(dst, p):
        I(f'v_mul_f32 v{T0}, {f2u(float(p)):#x}, v{AR}\nv_mul_f32 v{T0+1}, {f2u(float(p)):#x}, v{AI}')
        I(f'v_exp_f32 v{T0}, v{T0}\nv_fract_f32 v{T0+1}, v{T0+1}\ns_nop 0\nv_cos_f32 v{T0+2}, v{T0+1}\nv_sin_f32 v{T0+3}, v{T0+1}\ns_nop 0')
        I(f'v_mul_f32 v{dst}, v{T0}, v{T0+2}\nv_mul_f32 v{dst+1}, v{T0}, v{T0+3}')
    def cmul(dst, a, b):
        I(f'v_pk_mul_f32 {vr(dst,2)}, {vr(a,2)}, {vr(b,2)} op_sel:[0,0] op_sel_hi:[1,0]')
        I(f'v_pk_fma_f32 {vr(dst,2)}, {vr(a,2)}, {vr(b,2)}, {vr(dst,2)} op_sel:[1,1,0] op_sel_hi:[0,1,1] neg_lo:[1,0,0]')
    pp = [0]
    def put(base, row, src, neg):
        t = T0 + 4 + (pp[0] & 1); pp[0] += 1
        I(f'v_cvt_pk_bf16_f32 v{t}, v{src}, {"-" if neg else ""}v{src+1}')
        k.ds(f'ds_write_b32 v11, v{t} offset:{base + row*528}')
    Z, Z8, Z128, P0, P1, U0, U1 = 32, 46, 48, 50, 52, 54, 56
    I('s_cmp_ge_u32 s33, 2\ns_cbranch_scc1 L_kg_b')
    direct(Z, 1); direct(Z8, 8); direct(Z128, 128)
    I(f'v_mov_b32 v{P0}, 1.0\nv_mov_b32 v{P0+1}, 0')
    put(L_F, 0, P0, False); put(L_F, 1, Z8, False)
    cur = Z8
    for beta in range(2, 16):
        dst = P0 if cur != P0 else P1
        cmul(dst, cur, Z8); cur = dst
        put(L_F, beta, dst, False)
        if beta - 2 < 6: cmul(Z + 2*(beta-1), Z + 2*(beta-2), Z)
    cmul(U1, CC, Z128)
    for al, U in ((0, CC), (1, U1)):
        put(L_G, 8*al, U, True)
        for e in range(1, 8):
            dst = (P0, P1)[e & 1]
            cmul(dst, U, Z + 2*(e-1)); put(L_G, 8*al + e, dst, True)
    I('s_branch L_kg_done')
    k.label('L_kg_b')
    Z2, Z4, Z6 = Z, Z + 2, Z + 4
    direct(Z2, 2); direct(Z128, 128); direct(P0, 256)
    cmul(Z4, Z2, Z2); cmul(U0, CC, P0); cmul(Z6, Z4, Z2)
    Uc = U0; row = 16
    for al in range(2, 17):
        if al > 2:
            dst = U1 if Uc == U0 else U0
            cmul(dst, Uc, Z128); Uc = dst
        eps = (0, 2, 4, 6) if al < 4 else ((0, 4) if al < 8 else (0,))
        for e in eps:
            if e == 0: put(L_G, row, Uc, True)
            else:
                dst = (P0, P1)[row & 1]
                cmul(dst, Uc, {2: Z2, 4: Z4, 6: Z6}[e]); put(L_G, row, dst, True)
            row += 1
    k.label('L_kg_done')
    k.waitall(vm=False)
    I('s_barrier')
    k.stamp()
    I(f'v_mul_u32_u24 v12, 528, v3\nv_lshlrev_b32 v13, 4, v4\nv_add_u32 v12, v12, v13')
    I(f's_mul_i32 s52, s33, {16*528}\ns_add_u32 s52, s52, {L_G}\nv_add_u32 v13, s52, v12')
    I('s_cmp_lt_u32 s33, 3\ns_cbranch_scc0 L_nomm')
    at = []
    for s in range(8):
        I(f'ds_read_b128 {vr(32+8*s,4)}, v13 offset:{s*64}\nds_read_b128 {vr(36+8*s,4)}, v12 offset:{L_F + s*64}')
    for s in range(8):
        I(f's_waitcnt lgkmcnt({14 - 2*s})')
        I(f'v_mfma_f32_16x16x32_bf16 v[96:99], {vr(32+8*s,4)}, {vr(36+8*s,4)}, {"0" if s == 0 else "v[96:99]"}')
    k.label('L_nomm')
    I('s_barrier')
    I('v_lshlrev_b32 v9, 4, v3')
    I('s_cmp_lt_u32 s33, 3\ns_cbranch_scc0 L_notab')
    I('s_cmp_eq_u32 s33, 1\ns_cbranch_scc1 L_tab1\ns_cmp_eq_u32 s33, 2\ns_cbranch_scc1 L_tab2')
    def tput(addr, r, off):
        I(f'v_cvt_pk_bf16_f32 v{24+r}, v{96+r}, v{96+r}')
        I(f'ds_write_b16 v{addr}, v{24+r} offset:{TB + off}')
    I('v_lshrrev_b32 v14, 1, v4\nv_lshlrev_b32 v14, 8, v14\nv_and_b32 v15, 1, v4\nv_lshlrev_b32 v15, 3, v15\nv_add_u32 v14, v14, v15\nv_add_u32 v14, v14, v9')
    for r in range(4): tput(14, r, 2*r)
    I('s_branch L_notab')
    k.label('L_tab1')
    I('v_cmp_gt_u32 vcc, 2, v4\nv_lshlrev_b32 v14, 8, v4\nv_add_u32 v14, 512, v14\nv_lshlrev_b32 v15, 9, v4')
    I('v_cndmask_b32 v14, v15, v14, vcc\nv_add_u32 v14, v14, v9')
    for r in range(4):
        lo, hi = 4*r, 256*(r >> 1) + 8*(r & 1)
        I(f'v_mov_b32 v15, {hi}\nv_cndmask_b32 v15, v15, {lo}, vcc\nv_add_u32 v15, v15, v14')
        tput(15, r, 0)
    I('s_branch L_notab')
    k.label('L_tab2')
    for r in range(4):
        I(f'v_lshlrev_b32 v14, 2, v4\nv_add_u32 v14, {8 + r}, v14\nv_min_u32 v14, 17, v14\nv_lshlrev_b32 v14, 8, v14\nv_add_u32 v14, v14, v9')
        tput(14, r, 0)
    k.label('L_notab')
    I(f'v_mov_b32 v14, {L_F}\nv_mov_b32 v24, 0\nv_mov_b32 v25, 0\nv_cmp_eq_u32 vcc, 192, v0\ns_nop 1\ns_and_saveexec_b64 s[42:43], vcc')
    I('ds_write_b64 v14, v[24:25]')
    I('s_mov_b64 exec, s[42:43]')
    I('s_waitcnt lgkmcnt(0)\ns_barrier')
    k.stamp()
    I('v_lshlrev_b32 v14, 4, v0\nv_add_u32 v14, 14, v14\nv_cvt_f32_i32 v14, v14')
    I(f'v_mov_b32 v15, {TB}')
    X = 32
    for j in range(0, 8, 2):
        I(f'v_add_f32 v24, {f2u(-2.0*j):#x}, v14' if j else 'v_mov_b32 v24, v14')
        I(f'v_add_f32 v25, {f2u(-2.0*(j+1)):#x}, v14')
        I('v_cvt_pk_bf16_f32 v26, v24, v25\nv_lshlrev_b32 v24, 16, v26\nv_and_b32 v25, 0xffff0000, v26')
        I('v_cvt_i32_f32 v24, v24\nv_cvt_i32_f32 v25, v25\nv_add_u32 v24, v24, v15\nv_add_u32 v25, v25, v15')
        I(f'ds_read_u16 v{X+j}, v24')
        I(f'ds_read_u16 v{X+j+1}, v25')
    I(f's_mul_i32 s40, s2, {KG_PITCH}\ns_add_u32 s40, s40, {OFF_KG}')
    I('v_sub_u32 v9, 255, v0\nv_lshlrev_b32 v9, 4, v9')
    for r in range(4): I(f'v_mov_b32 v{44+r}, 0')
    I('v_lshlrev_b32 v12, 4, v0\nv_cmp_gt_u32 vcc, 16, v0')
    I('s_waitcnt lgkmcnt(0)')
    for d in range(4): I(f'v_lshl_or_b32 v{48+d}, v{X+2*d+1}, 16, v{X+2*d}')
    I(f'buffer_store_dwordx4 v[48:51], v9, s[4:7], s40 offen {stf}')
    I('s_and_saveexec_b64 s[42:43], vcc\ns_add_u32 s41, s40, 4096')
    I('buffer_store_dwordx4 v[44:47], v12, s[4:7], s41 offen')
    I('s_mov_b64 exec, s[42:43]')
    k.stamp()
    k.label('L_prep_fin')
    I('s_waitcnt vmcnt(0)')
    k.st_n = 4; k.stamp()
    if stamps: I('s_mov_b32 s2, s59')
    k.stamp_store('s[4:7]', nmax=5)
    k.label('L_prep_end')
    I('s_endpgm')
    for e in hazards(k.lines, 'prep'): print('HAZARD', e)
    return k, LDS_BYTES
if __name__ == '__main__':
    k, lds = build(); print(len(k.lines), lds)
```

```python
import sys, importlib
HEAD = open('adaLN_cond__ssm_conv_s4d__mixer_channel_mlp__prompt.s.ref').read().split('; Override')[0]
FINAL = 'adaLN_cond__ssm_conv_s4d__mixer_channel_mlp__prompt.s'
DESC = """;
"""
def make(path, kernels):
    out = [HEAD.rstrip('\n')]
    for k, g, b, lds in kernels:
        out.append(f'; @launch kernel={k.name} grid=({g},1,1) block=({b},1,1) lds={lds}')
    out.append(DESC.rstrip('\n'))
    out.append('.amdgcn_target "amdgcn-amd-amdhsa--gfx950"')
    seen = set()
    for k, g, b, lds in kernels:
        if k.name in seen: continue
        seen.add(k.name); out.append(k.text())
    open(path, 'w').write('\n'.join(out))
def full(path, mlp_kw={}, conv_kw={}, prep_kw={}, comb_kw={}):
    import k_mlp, k_comb, k_prep
    import k_conv
    p, pl = k_prep.build(**prep_kw); cv, cl = k_conv.build(**conv_kw); m, ml = k_mlp.build(**mlp_kw); c, _ = k_comb.build(**comb_kw)
    L = [(p, k_prep.GRID, 256, pl), (cv, 256 if conv_kw.get('split', True) else 192, 768, cl), (m, 256, 512, ml)]
    if not mlp_kw.get('ikr'): L.append((c, 576, 256, 0))
    make(path, L)
if __name__ == '__main__':
    kw = dict(inter=True, prefetch=False, nF=4, ikr=True, rot=True)
    full(FINAL, mlp_kw=kw)
    m = dict(stamps=True, fine=True, **kw)
    full('t_b.s', mlp_kw=m, conv_kw=dict(stamps=True), prep_kw=dict(stamps=True))
```

```python
from asmlib import Kern, hazards
from layout import *
import math

SLOT = 24576
PAR_G2 = 6 * SLOT
PAR_B1 = PAR_G2 + 4608
STATS1 = PAR_G2 + 6912
STATS2 = STATS1 + 1024
XS = PAR_G2
LDS_BYTES = max(STATS2 + 1024, XS + 9216)


V_TID, V_LANE = 0, 1
V_T0 = 2
V_DMA, V_DMA2 = 3, 4
V_RD = (5, 6, 7)
V_BIAS, V_ST, V_C1, V_C2, V_FR, V_HW = 8, 9, 10, 11, 12, 13
V_TL, V_Q = 14, 15
V_TMP = 16
V_G = 24
V_B4 = 36
V_PK = 40
V_A = 44
V_ACC = (56, 64)
V_H = 76
V_BF = 112
S_WS, S_W1, S_W2, S_CUR, S_B1 = 4, 8, 12, 16, 28
S_W, S_M, S_P, S_IT, S_OFF, S_D, S_G2, S_B, S_WK, S_T, S_ST, S_STN, S_IDX = 33, 34, 35, 36, 37, 38, 39, 40, 41, 42, 43, 44, 45

def vr(a, n): return f'v[{a}:{a+n-1}]'
def sr(a, n): return f's[{a}:{a+n-1}]'

def build(store_flags='', prefetch=True, stamps=False, no_gelu=False, no_dma=False, no_bar=False, no_mfma=False, no_tr=False, prio=None, nF=2, LA=2, inter=False, stagger=False, pf_late=True, fine=False, classes=False, lean=True, wts=(1.0, 1.0), cls_prio=None, ikr=False, pk=False, dmaf='', dbgout=False, sent=False, rot=False, wlate=True, wspread=True, lnfine=False, statmode=4):
    k = Kern('mlp_kernel', 256, 96)
    I = k.I
    nst = [0]
    def stamp():
        if stamps:
            I(f's_memrealtime s[{64+2*nst[0]}:{65+2*nst[0]}]')
            if not fine and not lnfine: I(f's_memtime s[{80+2*nst[0]}:{81+2*nst[0]}]')
            nst[0] += 1
    I('s_cmp_ge_u32 s2, 256\ns_cbranch_scc1 L_mlp_end')
    I('s_load_dwordx2 s[20:21], s[0:1], 64\ns_load_dwordx2 s[22:23], s[0:1], 72\ns_load_dwordx2 s[24:25], s[0:1], 80\ns_load_dwordx2 s[26:27], s[0:1], 128')
    if ikr:
        store_flags = 'sc1'
        pass
    stamp()
    I(f'v_and_b32 v{V_LANE}, 63, v0\nv_lshrrev_b32 v{V_T0}, 6, v0')
    lg = {1: 0, 2: 1, 4: 2, 8: 3}[nF]
    I(f's_and_b32 s46, s2, 7\ns_lshr_b32 s47, s2, 3')
    I(f's_and_b32 s{S_P}, s46, {8//nF - 1}\ns_lshl_b32 s{S_P}, s{S_P}, {lg}\ns_and_b32 s48, s47, {nF - 1}\ns_add_u32 s{S_P}, s{S_P}, s48')
    I(f's_lshr_b32 s{S_M}, s46, {3 - lg}\ns_mul_i32 s{S_M}, s{S_M}, {32//nF}\ns_lshr_b32 s48, s47, {lg}\ns_add_u32 s{S_M}, s{S_M}, s48')
    I(f'v_readfirstlane_b32 s{S_W}, v{V_T0}')
    I(f'v_and_b32 v{V_TL}, 15, v{V_LANE}\nv_lshrrev_b32 v{V_Q}, 4, v{V_LANE}')
    t = V_TMP
    I(f'v_lshrrev_b32 v{t}, 3, v{V_LANE}')
    I(f'v_and_b32 v{t+1}, 7, v{V_LANE}')
    I(f'v_and_b32 v{t+2}, 2, v{t}')
    I(f's_and_b32 s46, s{S_W}, 1\ns_lshl_b32 s46, s46, 2')
    I(f'v_or_b32 v{t+2}, s46, v{t+2}')
    I(f'v_xor_b32 v{t+1}, v{t+1}, v{t+2}')
    I(f'v_lshlrev_b32 v{t+1}, 4, v{t+1}')
    I(f's_lshl_b32 s47, s{S_W}, 3')
    I(f'v_add_u32 v{t}, s47, v{t}')
    I(f'v_lshlrev_b32 v{t+3}, 7, v{t}\nv_add_u32 v{V_T0}, v{t+3}, v{t+1}')
    I(f'v_mul_u32_u24 v{t+3}, 9216, v{t}\nv_add_u32 v{V_DMA}, v{t+3}, v{t+1}')
    I(f'v_mul_u32_u24 v{t+3}, 1152, v{t}\nv_add_u32 v{V_DMA2}, v{t+3}, v{t+1}')
    I(f's_lshl_b32 s{S_WK}, s{S_W}, 10')
    I('s_waitcnt lgkmcnt(0)')
    for base, ptr, size in ((S_WS, 26, WS_BYTES), (S_W1, 20, 5308416), (S_W2, 24, 5308416), (S_CUR, 20, 5308416), (S_B1, 22, 9216)):
        I(f's_mov_b32 s{base}, s{ptr}\ns_mov_b32 s{base+1}, s{ptr+1}\ns_mov_b32 s{base+2}, {size}\ns_mov_b32 s{base+3}, 0x20000')
    I(f's_mul_i32 s46, s{S_M}, 73728\ns_add_u32 s46, s46, {OFF_X1T}')
    xt = None
    for b in range(9):
        I(f's_add_u32 m0, s{S_WK}, {b*8192}')
        I(f's_add_u32 s47, s46, {b*64*128}')
        xt = k.vm(f'buffer_load_dwordx4 v{V_T0}, {sr(S_WS,4)}, s47 offen nt lds')
    I(f'v_lshlrev_b32 v{t}, 4, v0')
    I(f's_mov_b32 s46, {OFF_MODF + 4*2304}')
    pa = k.vm(f'buffer_load_dwordx4 {vr(V_G,4)}, v{t}, {sr(S_WS,4)}, s46 offen')
    I(f'v_subrev_u32 v{t+1}, 288, v0\nv_lshlrev_b32 v{t+1}, 3, v{t+1}')
    I(f's_mul_i32 s46, s{S_P}, 1152')
    I(f'v_cmp_gt_u32 vcc, 288, v0')
    I(f'v_add_u32 v{t+1}, s46, v{t+1}\ns_nop 0')
    I(f'v_cndmask_b32 v{t+1}, v{t+1}, -16, vcc')
    pb = k.vm(f'buffer_load_dwordx2 {vr(V_G+4,2)}, v{t+1}, {sr(S_B1,4)}, 0 offen')
    def do_prefetch():
        G = 32 // nF; per = 5184 // G; rows = 576 // G
        I(f's_and_b32 s60, s{S_M}, {G - 1}')
        for rep in range((per + 511) // 512):
            I(f'v_add_u32 v{t+4}, {rep*512}, v0')
            I(f'v_mul_u32_u24 v{t+2}, 7282, v{t+4}\nv_lshrrev_b32 v{t+2}, 16, v{t+2}')
            I(f'v_mul_u32_u24 v{t+3}, 9, v{t+2}\nv_sub_u32 v{t+3}, v{t+4}, v{t+3}')
            I(f's_mul_i32 s61, s60, {rows}\nv_add_u32 v{t+2}, s61, v{t+2}')
            I(f'v_mul_u32_u24 v{t+2}, 9216, v{t+2}\nv_lshlrev_b32 v{t+3}, 7, v{t+3}')
            I(f'v_add_u32 v{t+2}, v{t+2}, v{t+3}')
            I(f's_mul_i32 s61, s{S_P}, 1152\nv_add_u32 v{t+2}, s61, v{t+2}')
            I(f'v_cmp_gt_u32 vcc, {per}, v{t+4}\ns_nop 1\nv_cndmask_b32 v{t+2}, -16, v{t+2}, vcc')
            k.vm(f'buffer_load_dword v{V_H-4}, v{t+2}, {sr(S_W1,4)}, 0 offen')
            I(f'v_lshlrev_b32 v{t+2}, 7, v{t+4}')
            I(f's_mul_i32 s61, s{S_P}, 663552\ns_mul_i32 s62, s60, {per*128}\ns_add_u32 s61, s61, s62')
            I(f'v_add_u32 v{t+2}, s61, v{t+2}')
            I(f'v_cndmask_b32 v{t+2}, -16, v{t+2}, vcc')
            k.vm(f'buffer_load_dword v{V_H-3}, v{t+2}, {sr(S_W2,4)}, 0 offen')
    if prefetch and not pf_late: do_prefetch()
    D1, D2 = 192 * 9216, 192 * 1152
    I(f's_mul_i32 s{S_OFF}, s{S_P}, 1152\ns_mov_b32 s{S_D}, {D1}\ns_mov_b32 s{S_G2}, {(128 - 2*D1) & 0xffffffff}\ns_mov_b32 s{S_B}, {64*9216}')
    I(f's_mov_b32 s63, 0\ns_mov_b32 s60, 0\ns_mov_b32 s61, 15\ns_mov_b32 s62, s{S_OFF}')
    VD = (V_DMA, 22, 23)
    I(f'v_add_u32 v{VD[1]}, {64*9216}, v{V_DMA}\nv_add_u32 v{VD[2]}, {128*9216}, v{V_DMA}')
    def dma_m0(slot, b): I(f's_add_u32 m0, s{S_WK}, {slot*SLOT + b*8192}')
    def dma_go(b, kc):
        tok = k.vm(f'buffer_load_dwordx4 v{VD[b]}, {sr(S_CUR,4)}, s{S_OFF} offen {dmaf} lds')
        if b == 2:
            if kc == 2:
                I(f's_add_u32 s63, s63, 1\ns_add_u32 s{S_T}, s63, s60\ns_and_b32 s{S_T}, s{S_T}, s61\ns_lshl_b32 s{S_T}, s{S_T}, 7\ns_add_u32 s{S_OFF}, s62, s{S_T}')
            else: I(f's_add_u32 s{S_OFF}, s{S_OFF}, s{S_D}')
        dma_go.last = tok
        return tok
    def dma_chunk(slot, kc):
        tok = None
        for b in range(3):
            dma_m0(slot, b); I('s_nop 0'); tok = dma_go(b, kc)
        return tok
    if not wlate: c0 = dma_chunk(3, 0); c1 = dma_chunk(4, 1); c2 = dma_chunk(5, 2)
    I(f'v_lshrrev_b32 v{t}, 2, v{V_TL}')
    I(f'v_and_b32 v{t+1}, 3, v{V_LANE}')
    I(f'v_lshlrev_b32 v{t+2}, 3, v{V_Q}\nv_add_u32 v{t+2}, v{t+2}, v{t}\nv_lshlrev_b32 v{t+2}, 7, v{t+2}')
    I(f'v_and_b32 v{t+3}, 2, v{t}')
    I(f'v_and_b32 v{t+4}, 1, v{V_Q}\nv_lshlrev_b32 v{t+4}, 2, v{t+4}\nv_or_b32 v{t+3}, v{t+3}, v{t+4}')
    I(f's_and_b32 s46, s{S_W}, 3\ns_lshl_b32 s46, s46, 1')
    I(f'v_lshrrev_b32 v{t+4}, 1, v{t+1}\nv_add_u32 v{t+4}, s46, v{t+4}\nv_xor_b32 v{t+4}, v{t+4}, v{t+3}\nv_lshlrev_b32 v{t+4}, 4, v{t+4}')
    I(f'v_and_b32 v{t+1}, 1, v{t+1}\nv_lshlrev_b32 v{t+1}, 3, v{t+1}')
    I(f'v_add_u32 v{t+2}, v{t+2}, v{t+4}\nv_add_u32 v{V_RD[0]}, v{t+2}, v{t+1}')
    I(f'v_add_u32 v{V_RD[1]}, {2*SLOT}, v{V_RD[0]}\nv_add_u32 v{V_RD[2]}, {4*SLOT}, v{V_RD[0]}')
    k.wait(pb)
    I(f'v_lshlrev_b32 v{V_G+8}, 16, v{V_G+4}\nv_and_b32 v{V_G+9}, 0xffff0000, v{V_G+4}\nv_lshlrev_b32 v{V_G+10}, 16, v{V_G+5}\nv_and_b32 v{V_G+11}, 0xffff0000, v{V_G+5}')
    I(f'v_cmp_gt_u32 vcc, 288, v0\ns_nop 1')
    for r in range(4): I(f'v_cndmask_b32 v{V_G+r}, v{V_G+8+r}, v{V_G+r}, vcc')
    I(f'v_lshlrev_b32 v{t}, 4, v0\nv_add_u32 v{t}, {PAR_G2}, v{t}')
    I(f'v_cmp_gt_u32 vcc, 432, v0\ns_nop 1\ns_and_saveexec_b64 s[50:51], vcc')
    k.ds(f'ds_write_b128 v{t}, {vr(V_G,4)}')
    I('s_mov_b64 exec, s[50:51]')
    c1v = -2.0 * math.sqrt(2.0 / math.pi) * math.log2(math.e); c2v = c1v * 0.044715
    import struct
    f2u = lambda x: struct.unpack('<I', struct.pack('<f', x))[0]
    global V_C2
    V_C2 = 18 if pk else 11
    I(f'v_mov_b32 v{V_C1}, {f2u(c1v):#x}')
    I(f's_and_b32 s46, s{S_W}, 3\ns_lshr_b32 s47, s{S_W}, 2')
    I(f's_lshl_b32 s48, s46, 6\ns_add_u32 s48, s48, {PAR_B1}')
    I(f'v_lshlrev_b32 v{V_BIAS}, 4, v{V_Q}\nv_add_u32 v{V_BIAS}, s48, v{V_BIAS}')
    I(f's_mul_i32 s48, s47, 36864\nv_lshlrev_b32 v{V_FR}, 4, v{V_LANE}\nv_add_u32 v{V_FR}, s48, v{V_FR}')
    I(f's_lshr_b32 s48, s46, 1\ns_lshl_b32 s48, s48, 10\ns_mul_i32 s49, s47, 36864\ns_add_u32 s48, s48, s49')
    I(f's_and_b32 s49, s46, 1\ns_lshl_b32 s49, s49, 9\ns_add_u32 s48, s48, s49\ns_add_u32 s48, s48, {3*SLOT}')
    I(f'v_lshrrev_b32 v{t}, 1, v{V_Q}\nv_lshlrev_b32 v{t}, 8, v{t}\nv_lshlrev_b32 v{t+1}, 4, v{V_TL}\nv_add_u32 v{t}, v{t}, v{t+1}')
    I(f'v_and_b32 v{t+1}, 1, v{V_Q}\nv_lshlrev_b32 v{t+1}, 3, v{t+1}\nv_add_u32 v{t}, v{t}, v{t+1}\nv_add_u32 v{V_HW}, s48, v{t}')
    I(f'v_lshlrev_b32 v{V_ST}, 4, v{V_LANE}\nv_add_u32 v{V_ST}, s{S_WK}, v{V_ST}')
    I(f's_lshl_b32 s48, s{S_M}, 3\ns_add_u32 s48, s48, s{S_P}\ns_mul_i32 s{S_STN}, s48, 73728\ns_add_u32 s{S_STN}, s{S_STN}, {OFF_PART}\ns_mov_b32 s{S_ST}, 0x7ff00000')
    X, H2, PG = V_BF, V_BF + 36, V_BF + 108
    ONES, A1, A2 = V_A, V_ACC[0], V_ACC[0] + 4
    for r in range(4): I(f'v_mov_b32 v{ONES+r}, 0x3f803f80')
    I(f's_mul_i32 s48, s47, {9*4096}\nv_add_u32 v{t}, s48, v{V_RD[0]}')
    I(f'v_and_b32 v{t+1}, 3, v{V_TL}')
    I(f'v_cmp_eq_u32 s[52:53], 1, v{t+1}\nv_cmp_eq_u32 s[54:55], 2, v{t+1}\nv_cmp_eq_u32 s[56:57], 3, v{t+1}')
    I(f'v_lshrrev_b32 v{t+1}, 2, v{V_TL}\nv_cmp_eq_u32 s[58:59], v{t+1}, v{V_Q}')
    I(f's_lshl_b32 s48, s46, 8\nv_lshlrev_b32 v{t+2}, 4, v{V_TL}\nv_add_u32 v{t+2}, s48, v{t+2}\nv_add_u32 v{t+2}, {STATS1}, v{t+2}')
    I(f's_lshl_b32 s48, s47, 3\nv_add_u32 v{t+3}, s48, v{t+2}')
    k.wait(xt)
    k.waitall(vm=False)
    I('s_barrier')
    stamp()
    if prefetch and pf_late:
        save_t = [V_TMP + 2, V_TMP + 3]
        I(f'v_mov_b32 v{V_PK}, v{t+2}\nv_mov_b32 v{V_PK+1}, v{t+3}')
        do_prefetch()
        I(f'v_mov_b32 v{t+2}, v{V_PK}\nv_mov_b32 v{t+3}, v{V_PK+1}')
    if wlate and not wspread: c0 = dma_chunk(3, 0); c1 = dma_chunk(4, 1); c2 = dma_chunk(5, 2)
    def sentinels():
        for r in range(4): I(f'v_mov_b32 v{V_PK+r}, -1')
        I(f's_lshl_b32 s48, s{S_M}, 3\ns_add_u32 s48, s48, s{S_P}\ns_mul_i32 s48, s48, 73728\ns_add_u32 s48, s48, {OFF_PART}\nv_lshlrev_b32 v{V_G+10}, 4, v0')
        for st_ in (6, 7):
            I(f's_add_u32 s49, s{S_P}, {st_}\ns_and_b32 s49, s49, 7\ns_lshl_b32 s49, s49, 13\ns_add_u32 s49, s49, s48')
            k.vm(f'buffer_store_dwordx4 {vr(V_PK,4)}, v{V_G+10}, {sr(S_WS,4)}, s49 offen sc1')
    if rot and not wspread: sentinels()
    toks = []
    for u in range(9):
        k.ds(f'ds_read_b64_tr_b16 {vr(X+4*u,2)}, v{t} offset:{u*4096}')
        toks.append(k.ds(f'ds_read_b64_tr_b16 {vr(X+4*u+2,2)}, v{t} offset:{u*4096+512}'))
    def stats(src, area_off):
        for u in range(9):
            if src == X and area_off == 0: k.wait(toks[u])
            I(f'v_mfma_f32_16x16x32_bf16 {vr(A1,4)}, {vr(ONES,4)}, {vr(src+4*u,4)}, {"0" if u == 0 else vr(A1,4)}')
            I(f'v_mfma_f32_16x16x32_bf16 {vr(A2,4)}, {vr(src+4*u,4)}, {vr(src+4*u,4)}, {"0" if u == 0 else vr(A2,4)}')
    stats(X, 0)
    if not ikr:
        I(f's_cmp_eq_u32 s{S_W}, s{S_P}\ns_cbranch_scc0 L_mlp_nox1')
        I(f's_lshl_b32 s48, s{S_M}, 6\ns_lshl_b32 s49, s46, 4\ns_add_u32 s48, s48, s49')
        I(f'v_add_u32 v{t+4}, s48, v{V_TL}\nv_mul_u32_u24 v{t+4}, 1152, v{t+4}\nv_lshlrev_b32 v{t+5}, 4, v{V_Q}\nv_add_u32 v{t+4}, v{t+4}, v{t+5}')
        I(f's_mul_i32 s48, s47, 576\ns_add_u32 s48, s48, {OFF_X1R}')
        for u in range(9):
            I(f'buffer_store_dwordx4 {vr(X+4*u,4)}, v{t+4}, {sr(S_WS,4)}, s48 offen offset:{u*64}')
        k.label('L_mlp_nox1')
    def finish_stats(area):
        k.nop(8)
        I(f'v_cndmask_b32 v{V_G}, v{A2}, v{A2+1}, s[52:53]\nv_cndmask_b32 v{V_G}, v{V_G}, v{A2+2}, s[54:55]\nv_cndmask_b32 v{V_G+1}, v{V_G}, v{A2+3}, s[56:57]')
        I(f'v_mov_b32 v{V_G}, v{A1}')
        I('s_mov_b64 s[50:51], exec\ns_mov_b64 exec, s[58:59]')
        k.ds(f'ds_write_b64 v{t+3}, {vr(V_G,2)} offset:{area}')
        I('s_mov_b64 exec, s[50:51]')
        k.waitall(vm=False)
        I('s_barrier')
        if (fine and not ikr) or lnfine: stamp()
        tk = k.ds(f'ds_read_b128 {vr(V_G+4,4)}, v{t+2} offset:{area}')
        return tk
    def stats_to_rm(tk):
        k.wait(tk)
        inv = f2u(1.0 / 576.0)
        I(f'v_add_f32 v{V_G}, v{V_G+4}, v{V_G+6}\nv_add_f32 v{V_G+1}, v{V_G+5}, v{V_G+7}')
        I(f'v_mul_f32 v{V_G}, {inv:#x}, v{V_G}\nv_mul_f32 v{V_G+1}, {inv:#x}, v{V_G+1}')
        I(f'v_fma_f32 v{V_G+1}, -v{V_G}, v{V_G}, v{V_G+1}')
        I(f'v_max_f32 v{V_G+1}, 0, v{V_G+1}\nv_add_f32 v{V_G+1}, {f2u(1e-5):#x}, v{V_G+1}')
        I(f'v_rsq_f32 v{V_G+2}, v{V_G+1}\ns_nop 0')
        I(f'v_mul_f32 v{V_G+3}, v{V_G}, v{V_G+2}\nv_sub_f32 v{V_G+3}, 0, v{V_G+3}')
    tk = finish_stats(0)
    I(f's_mul_i32 s48, s47, {9*128}\ns_add_u32 s48, s48, {PAR_G2}\nv_lshlrev_b32 v{t+4}, 5, v{V_Q}\nv_add_u32 v{t+4}, s48, v{t+4}')
    def par_reads(u):
        b = PG + (u & 1) * 16
        k.ds(f'ds_read_b128 {vr(b,4)}, v{t+4} offset:{u*128}')
        k.ds(f'ds_read_b128 {vr(b+4,4)}, v{t+4} offset:{u*128+16}')
        k.ds(f'ds_read_b128 {vr(b+8,4)}, v{t+4} offset:{2304+u*128}')
        return k.ds(f'ds_read_b128 {vr(b+12,4)}, v{t+4} offset:{2304+u*128+16}')
    ptk = [par_reads(0)]
    stats_to_rm(tk)
    R, NMR = V_G + 2, V_G + 3
    def stat_step(u):
        I(f'v_mfma_f32_16x16x32_bf16 {vr(A1,4)}, {vr(ONES,4)}, {vr(X+4*u,4)}, {"0" if u == 0 else vr(A1,4)}')
        I(f'v_mfma_f32_16x16x32_bf16 {vr(A2,4)}, {vr(X+4*u,4)}, {vr(X+4*u,4)}, {"0" if u == 0 else vr(A2,4)}')
    for u in range(9):
        if u + 1 < 9: ptk.append(par_reads(u + 1))
        if wlate and wspread:
            dma_m0(3 + u // 3, u % 3); I('s_nop 0'); tok_ = dma_go(u % 3, u // 3)
            if u == 2: c0 = tok_
        b = PG + (u & 1) * 16
        for d in range(4):
            I(f'v_lshlrev_b32 v{H2+8*u+2*d}, 16, v{X+4*u+d}\nv_and_b32 v{H2+8*u+2*d+1}, 0xffff0000, v{X+4*u+d}')
        if u > 0 and statmode:
            stat_step(u - 1)
            if statmode == 2: k.nop(8)
            if statmode == 3: I('s_nop 0')
            if statmode == 5: k.nop(3)
            if statmode == 6: k.nop(5)
        for e in range(8): I(f'v_fma_f32 v{H2+8*u+e}, v{H2+8*u+e}, v{R}, v{NMR}')
        k.wait(ptk[u])
        for e in range(8): I(f'v_fma_f32 v{H2+8*u+e}, v{H2+8*u+e}, v{b+e}, v{b+8+e}')
        for d in range(4): I(f'v_cvt_pk_bf16_f32 v{X+4*u+d}, v{H2+8*u+2*d}, v{H2+8*u+2*d+1}')
    I('s_nop 1')
    if statmode: stat_step(8)
    else:
        for u in range(9): stat_step(u)
    if lnfine: stamp()
    if rot and wspread: sentinels()
    tk = finish_stats(1024)
    stats_to_rm(tk)
    I(f's_mul_i32 s48, s46, 18432\ns_mul_i32 s49, s47, 9216\ns_add_u32 s48, s48, s49\nv_lshlrev_b32 v{t+4}, 4, v{V_LANE}\nv_add_u32 v{t+4}, s48, v{t+4}')
    for u in range(9):
        for e in range(8): I(f'v_fma_f32 v{H2+8*u+e}, v{H2+8*u+e}, v{R}, v{NMR}')
        for d in range(4): I(f'v_cvt_pk_bf16_f32 v{X+4*u+d}, v{H2+8*u+2*d}, v{H2+8*u+2*d+1}')
        k.ds(f'ds_write_b128 v{t+4}, {vr(X+4*u,4)} offset:{u*1024}')
    k.waitall(vm=False)
    I('s_barrier')
    if (fine and not ikr) or lnfine: stamp()
    def load_bfrags(base_off):
        tk = None
        for n in range(36):
            tk = k.ds(f'ds_read_b128 {vr(V_BF+4*n,4)}, v{V_FR} offset:{base_off + n*1024}') if base_off + n*1024 < 65536 else None
        return tk
    load_bfrags(0)
    btk = k.ds(f'ds_read_b128 {vr(V_B4,4)}, v{V_BIAS}')
    I(f'v_add_u32 v{V_BIAS}, 256, v{V_BIAS}')
    k.wait(c0)
    if ikr: I('s_load_dwordx2 s[8:9], s[0:1], 88\ns_load_dwordx2 s[28:29], s[0:1], 112')
    k.waitall(vm=False)
    if ikr: I('s_mov_b32 s10, 1152\ns_mov_b32 s11, 0x20000\ns_mov_b32 s30, 2359296\ns_mov_b32 s31, 0x20000')
    I('s_barrier')
    dma_chunk(0, 0); dma_chunk(1, 1)
    stamp()

    I(f'v_mov_b32 v{V_C2}, {f2u(c2v):#x}')
    NB = LA + 1
    ABUF = [V_A, V_A + 4, V_A + 8, V_TMP, V_TMP + 4][:NB]
    atok = {}
    ctr = [0]
    def a_read_parts(cnt, slot, u):
        buf = ABUF[cnt % NB]
        off = (slot & 1) * SLOT + u * 4096
        def r0(): k.ds(f'ds_read_b64_tr_b16 {vr(buf,2)}, v{V_RD[slot>>1]} offset:{off}')
        def r1(): atok[cnt % NB] = k.ds(f'ds_read_b64_tr_b16 {vr(buf+2,2)}, v{V_RD[slot>>1]} offset:{off+512}')
        return r0, r1
    def a_reads(cnt, slot, u):
        r0, r1 = a_read_parts(cnt, slot, u); r0(); r1()
    def gelu_ops(acc, dst):
        ops = []
        for h in range(2):
            x = [acc + 4*h + r for r in range(4)]; g = [V_G + 4*h + r for r in range(4)]
            if pk:
                P = (0, 2)
                ops += [f'v_pk_mul_f32 {vr(g[r],2)}, {vr(x[r],2)}, {vr(x[r],2)}' for r in P]
                ops += [f'v_pk_fma_f32 {vr(g[r],2)}, {vr(g[r],2)}, {vr(V_C2,2)}, {vr(V_C1,2)} op_sel_hi:[1,0,0]' for r in P]
                ops += [f'v_pk_mul_f32 {vr(g[r],2)}, {vr(x[r],2)}, {vr(g[r],2)}' for r in P]
                ops += [f'v_exp_f32 v{g[r]}, v{g[r]}' for r in range(4)]
                ops += [f'v_pk_add_f32 {vr(g[r],2)}, {vr(g[r],2)}, 1.0 op_sel_hi:[1,0]' for r in P]
                ops += [f'v_rcp_f32 v{g[r]}, v{g[r]}' for r in range(4)]
                ops += [f'v_pk_mul_f32 {vr(g[r],2)}, {vr(x[r],2)}, {vr(g[r],2)}' for r in P]
            else:
                ops += [f'v_mul_f32 v{g[r]}, v{x[r]}, v{x[r]}' for r in range(4)]
                ops += [f'v_fma_f32 v{g[r]}, v{g[r]}, v{V_C2}, v{V_C1}' for r in range(4)]
                ops += [f'v_mul_f32 v{g[r]}, v{x[r]}, v{g[r]}' for r in range(4)]
                ops += [f'v_exp_f32 v{g[r]}, v{g[r]}' for r in range(4)]
                ops += [f'v_add_f32 v{g[r]}, 1.0, v{g[r]}' for r in range(4)]
                ops += [f'v_rcp_f32 v{g[r]}, v{g[r]}' for r in range(4)]
                ops += [f'v_mul_f32 v{g[r]}, v{x[r]}, v{g[r]}' for r in range(4)]
            ops += dst(h, g)
        return ops
    lab = [0]
    cur = dict(cls=0)
    def group(phase, par, slots, issue, extra, last=False, vmw=(9, 9, 9), pre=None, early=False, hooks=None, prebar=None):
        acc = V_ACC[par]
        extra = list(extra)
        if no_gelu and phase == 1: extra = []
        nfill = len(extra)
        cls = cur['cls']
        dma_steps = (0, 2, 4) if cls == 0 else (1, 3, 5)
        wt = []
        for n in range(18):
            w_ = 0.0 if n == 0 else (wts[0] if (n % 6) in dma_steps else wts[1])
            if early: w_ = 1.0 if 1 <= n <= 3 else 0.0
            wt += [w_ / 2, w_ / 2]
        tot = sum(wt); cum = []; a_ = 0.0
        for w_ in wt:
            a_ += w_; cum.append(int(round(nfill * a_ / tot)))
        cum[-1] = nfill
        st = dict(done=0)
        def fill(upto):
            while st['done'] < min(upto, nfill):
                x_ = extra[st['done']]
                if callable(x_): x_()
                else: I(x_)
                st['done'] += 1
        for kc in range(3):
            if vmw[kc] is not None:
                if prebar and kc in prebar: prebar[kc]()
                if vmw[kc] != 'b': k.raw_wait(vm=vmw[kc])
                if not no_bar: I('s_barrier')
            if pre and kc in pre: pre[kc]()
            for u in range(6):
                n = kc * 6 + u
                cnt = ctr[0]; ctr[0] += 1
                buf = ABUF[cnt % NB]
                k.wait(atok[cnt % NB])
                nn = n + LA
                if nn < 18: rd = a_read_parts(cnt + LA, slots[nn // 6], nn % 6)
                elif not last: rd = a_read_parts(cnt + LA, slots[3], nn - 18)
                else: rd = (lambda: None, lambda: None)
                def mfma(h):
                    if n == 0: c = vr(V_B4, 4) if phase == 1 else '0'
                    else: c = vr(acc + 4*h, 4)
                    if not no_mfma: I(f'v_mfma_f32_16x16x32_bf16 {vr(acc+4*h,4)}, {vr(buf,4)}, {vr(V_BF+(h*18+n)*4,4)}, {c}')
                dma = issue[kc] is not None and not no_dma and u in dma_steps
                b = dma_steps.index(u) if dma else None
                mfma(0)
                rd[0](); fill(cum[2*n])
                mfma(1)
                if dma: dma_m0(issue[kc][0], b)
                rd[1]()
                if dma:
                    if nn >= 18 and last: I('s_nop 0')
                    dma_go(b, issue[kc][1])
                if phase == 1 and n == 8:
                    group.btk = k.ds(f'ds_read_b128 {vr(V_B4,4)}, v{V_BIAS}')
                    I(f'v_add_u32 v{V_BIAS}, 256, v{V_BIAS}')
                fill(cum[2*n+1])
                if hooks and n in hooks: hooks[n]()
                if phase == 1 and n == 17: k.wait(group.btk)
    group.btk = btk
    def h_dst_indexed(delta):
        def f(h, g):
            return [f'v_cvt_pk_bf16_f32 v{V_PK}, v{g[0]}, v{g[1]}', f'v_cvt_pk_bf16_f32 v{V_PK+1}, v{g[2]}, v{g[3]}',
                    f's_set_gpr_idx_on s{S_IDX}, gpr_idx(DST)', f'v_mov_b32 v{V_H+delta+2*h}, v{V_PK}', f'v_mov_b32 v{V_H+delta+2*h+1}, v{V_PK+1}', 's_set_gpr_idx_off']
        return f
    def h_dst_static(G):
        def f(h, g):
            return [f'v_cvt_pk_bf16_f32 v{V_H+4*G+2*h}, v{g[0]}, v{g[1]}', f'v_cvt_pk_bf16_f32 v{V_H+4*G+2*h+1}, v{g[2]}, v{g[3]}']
        return f
    def merge_idx(ops):
        out = []; i = 0
        while i < len(ops):
            if ops[i].startswith('s_set_gpr_idx_on'):
                out.append('\n'.join(ops[i:i+4])); i += 4
            else:
                out.append(ops[i]); i += 1
        return out
    def switch_src(to):
        def f():
            lab = f'L_sw_{to}_{cur["cls"]}'
            I(f's_cmp_eq_u32 s{S_IT}, 3\ns_cbranch_scc0 {lab}')
            if to == 'w2':
                I(f's_mov_b32 s{S_CUR}, s{S_W2}\ns_mov_b32 s{S_CUR+1}, s{S_W2+1}')
                I(f'v_mov_b32 v{VD[0]}, v{V_DMA2}\nv_add_u32 v{VD[1]}, {64*1152}, v{V_DMA2}\nv_add_u32 v{VD[2]}, {128*1152}, v{V_DMA2}')
                I(f's_mul_i32 s62, s{S_P}, 663552\ns_mov_b32 s{S_D}, {D2}\ns_mov_b32 s63, 0')
                if rot: I(f's_add_u32 s{S_OFF}, s62, {8*128}\ns_mov_b32 s60, s{S_P}\ns_mov_b32 s61, 7')
                else: I(f's_mov_b32 s{S_OFF}, s62')
            else:
                I(f's_mov_b32 s{S_OFF}, 0x7ff00000\ns_mov_b32 s62, 0x7ff00000\ns_mov_b32 s{S_D}, 0')
            k.label(lab)
        return f
    def main(cls):
        cur['cls'] = cls
        for n in range(LA): a_reads(n, 3, n)
        k.wait(btk)
        I(f's_mov_b32 s{S_IT}, 0\ns_mov_b32 s{S_IDX}, 0')
        def body1():
            group(1, 0, (3, 4, 5, 0), ((2, 2), (3, 0), (4, 1)), merge_idx(gelu_ops(V_ACC[1], h_dst_indexed(-4))))
            group(1, 1, (0, 1, 2, 3), ((5, 2), (0, 0), (1, 1)), merge_idx(gelu_ops(V_ACC[0], h_dst_indexed(0))), pre={1: switch_src('w2')})
        def loop(label, body, n):
            save = len(k.lines); l0 = lab[0]
            body(); first = k.lines[save:]; del k.lines[save:]; lab[0] = l0
            body(); second = k.lines[save:]; del k.lines[save:]; lab[0] = l0
            start = len(k.lines)
            k.label(label)
            body()
            third = k.lines[start+1:]
            assert second == third, 'loop body not a fixed point'
            strip = lambda L: [x for x in L]
            def split(L):
                body_, waits = [], {}
                for x in L:
                    if x.startswith('    s_waitcnt'): waits.setdefault(len(body_), []).append(x.strip())
                    else: body_.append(x)
                return body_, waits
            fb, fw = split(first); sb_, sw_ = split(second)
            assert fb == sb_, 'loop body differs between entry and steady state'
            import re as _re
            def cnts(ws):
                d = {}
                for w_ in ws:
                    for nm, v in _re.findall(r'(vmcnt|lgkmcnt)\((\d+)\)', w_): d[nm] = min(d.get(nm, 99), int(v))
                return d
            for pos, ws in fw.items():
                a = cnts(ws); b = cnts(sw_.get(pos, []))
                for nm, v in a.items():
                    assert nm in b and b[nm] <= v, ('steady-state wait too lax for loop entry', label, pos, ws, sw_.get(pos))
            errs = hazards(third + third, label)
            for e in errs: print('HAZARD', e)
            I(f's_add_u32 s{S_IDX}, s{S_IDX}, 8\ns_add_u32 s{S_IT}, s{S_IT}, 1\ns_cmp_lt_u32 s{S_IT}, {n}\ns_cbranch_scc1 {label}')
        loop(f'L_p1_{cls}', body1, 4)
        stamp()
        group(1, 0, (3, 4, 5, 0), ((2, 2), None, None), gelu_ops(V_ACC[1], h_dst_static(7)), vmw=(9, 9, 6))
        k.raw_wait(vm=3)
        I('s_barrier')
        k.nop(4)
        g8 = gelu_ops(V_ACC[0], h_dst_static(8))
        wr = [(G, h) for G in range(8) for h in range(2)]
        gi = 0
        for n_, (G, h) in enumerate(wr):
            k.ds(f'ds_write_b64 v{V_HW}, {vr(V_H+4*G+2*h,2)} offset:{G*2048 + h*18432}')
            upto = len(g8) * (n_ + 1) // len(wr)
            while gi < upto:
                I(g8[gi]); gi += 1
        for h in range(2):
            k.ds(f'ds_write_b64 v{V_HW}, {vr(V_H+32+2*h,2)} offset:{8*2048 + h*18432}')
        k.waitall(vm=False)
        I('s_barrier')
        I(f'v_add_u32 v{V_FR}, {3*SLOT}, v{V_FR}')
        load_bfrags(0)
        k.waitall(vm=False)
        I('s_barrier')
        dma_chunk(3, 0); dma_chunk(4, 1)
        stamp()
        stok = {}
        def store_ops(acc):
            ops = [f'v_cvt_pk_bf16_f32 v{V_PK+2*h+d}, v{acc+4*h+2*d}, v{acc+4*h+2*d+1}' for h in range(2) for d in range(2)]
            def st_():
                stok['last'] = k.vm(f'buffer_store_dwordx4 {vr(V_PK,4)}, v{V_ST}, {sr(S_WS,4)}, s{S_ST} offen {store_flags}')
                if not rot: I(f's_mov_b32 s{S_ST}, s{S_STN}\ns_add_u32 s{S_STN}, s{S_STN}, 8192')
                else: I(f's_mov_b32 s{S_ST}, s{S_STN}\ns_add_u32 s59, s59, 1\ns_add_u32 s{S_STN}, s59, s{S_P}\ns_and_b32 s{S_STN}, s{S_STN}, 7\ns_lshl_b32 s{S_STN}, s{S_STN}, 13\ns_add_u32 s{S_STN}, s{S_STN}, s32')
            ops.append(st_)
            return ops
        def run(ops):
            for op in ops:
                if callable(op): op()
                else: I(op)
        I(f's_mov_b32 s{S_IT}, 0')
        if rot: I(f's_mov_b32 s32, s{S_STN}\ns_add_u32 s{S_STN}, s{S_STN}, {8*8192}\ns_mov_b32 s59, 0')
        if not ikr:
            def body2():
                group(2, 0, (0, 1, 2, 3), ((5, 2), (0, 0), (1, 1)), store_ops(V_ACC[1]), vmw=(9, 9, 9))
                group(2, 1, (3, 4, 5, 0), ((2, 2), (3, 0), (4, 1)), store_ops(V_ACC[0]), vmw=(9, 9, 9), pre={1: switch_src('oob')})
            loop(f'L_p2_{cls}', body2, 4)
            group(2, 0, (0, 1, 2, 3), (None, None, None), store_ops(V_ACC[1]), last=True, vmw=(9, 6, None))
            k.nop(8)
            run(store_ops(V_ACC[0]))
            return
        S_FL, S_G, S_CNT = 46, 50, 51
        VF, VFA, VL16, VO, VTR, VP4 = 2, 12, 13, 8, 20, 21
        I(f's_lshl_b32 s{S_FL}, s{S_M}, 7\ns_add_u32 s{S_FL}, s{S_FL}, {OFF_FLAG}')
        I(f'v_and_b32 v{VFA}, 7, v{V_LANE}\nv_lshlrev_b32 v{VFA}, 2, v{VFA}\nv_lshlrev_b32 v{VL16}, 4, v{V_LANE}')
        I(f's_lshr_b32 s52, s{S_P}, 2\ns_and_b32 s53, s{S_P}, 3')
        I(f's_lshl_b32 s54, s{S_M}, 6\ns_lshl_b32 s55, s52, 5\ns_add_u32 s54, s54, s55\nv_add_u32 v{VO}, s54, v{V_TL}\nv_mul_u32_u24 v{VO}, 1152, v{VO}')
        I(f's_lshl_b32 s55, s53, 4\nv_lshlrev_b32 v{VP4}, 2, v{V_Q}\nv_add_u32 v{VP4}, s55, v{VP4}')
        I(f'v_lshlrev_b32 v16, 1, v{VP4}\nv_add_u32 v{VO}, v{VO}, v16')
        I(f'v_lshrrev_b32 v{VTR}, 2, v{V_TL}\nv_lshlrev_b32 v16, 2, v{V_Q}\nv_add_u32 v{VTR}, v{VTR}, v16\nv_lshlrev_b32 v{VTR}, 6, v{VTR}')
        I(f'v_and_b32 v16, 3, v{V_LANE}\nv_lshlrev_b32 v16, 3, v16\nv_add_u32 v{VTR}, v{VTR}, v16\nv_add_u32 v{VTR}, {XS}, v{VTR}')
        VXG = 19
        I(f'v_lshrrev_b32 v{VXG}, 2, v{V_LANE}\nv_lshlrev_b32 v{VXG}, 7, v{VXG}\nv_and_b32 v16, 3, v{V_LANE}\nv_lshlrev_b32 v16, 4, v16\nv_add_u32 v{VXG}, v{VXG}, v16\ns_lshl_b32 s55, s52, 6\nv_add_u32 v{VXG}, s55, v{VXG}')
        def signal(val, name, cond_it=None):
            lb = f'L_sig{name}'
            if cond_it is not None: I(f's_cmp_eq_u32 s{S_IT}, {cond_it}\ns_cbranch_scc0 {lb}')
            I(f's_cmp_eq_u32 s{S_W}, 0\ns_cbranch_scc0 {lb}')
            I(f's_lshl_b32 s52, s{S_P}, 2\ns_add_u32 s52, s52, s{S_FL}\nv_mov_b32 v16, {val}\nv_mov_b32 v17, 0\ns_mov_b64 exec, 1')
            I(f'buffer_store_dword v16, v17, {sr(S_WS,4)}, s52 offen sc1')
            I('s_mov_b64 exec, -1')
            k.label(lb)
        ftok = {}
        def flag_load(): ftok['t'] = k.vm(f'buffer_load_dword v{VF}, v{VFA}, {sr(S_WS,4)}, s{S_FL} offen sc1')
        def spin(val, name):
            I(f's_mov_b32 s{S_CNT}, 0x40000')
            k.label(f'L_spin{name}')
            I(f'v_cmp_gt_u32 vcc, {val}, v{VF}\ns_nop 4\ns_cbranch_vccz L_spun{name}')
            I(f's_sub_u32 s{S_CNT}, s{S_CNT}, 1\ns_cmp_eq_u32 s{S_CNT}, 0\ns_cbranch_scc1 L_spun{name}')
            I(f's_sleep 1\nbuffer_load_dword v{VF}, v{VFA}, {sr(S_WS,4)}, s{S_FL} offen sc1\ns_waitcnt vmcnt(0)\ns_branch L_spin{name}')
            k.label(f'L_spun{name}')
        PR = V_H
        R0, R1 = V_G, V_BF
        def statics(R, slotidx, tracked=False):
            V = k.vm if tracked else I
            I(f's_mul_i32 s52, s{S_M}, 73728\ns_lshl_b32 s54, s{S_G}, 13\ns_add_u32 s52, s52, s54\ns_lshl_b32 s54, s53, 11\ns_add_u32 s52, s52, s54\ns_add_u32 s52, s52, {OFF_X1T}')
            I(f's_lshl_b32 s54, {slotidx}, 10\ns_add_u32 m0, s54, {XS}\ns_nop 0')
            V(f'buffer_load_dwordx4 v{VXG}, {sr(S_WS,4)}, s52 offen lds')
            I(f's_lshl_b32 s54, s{S_G}, 8\ns_add_u32 s52, s54, {OFF_MODF + 3*2304}\nv_lshlrev_b32 v16, 2, v{VP4}')
            V(f'buffer_load_dwordx4 {vr(R,4)}, v16, {sr(S_WS,4)}, s52 offen')
            I(f's_lshl_b32 s54, s{S_G}, 7\nv_lshlrev_b32 v17, 1, v{VP4}')
            V(f'buffer_load_dwordx2 {vr(R+4,2)}, v17, s[8:11], s54 offen')
        def partials():
            I(f's_mul_i32 s52, s{S_M}, {8*73728}\ns_lshl_b32 s54, s{S_G}, 13\ns_add_u32 s52, s52, s54\ns_lshl_b32 s54, s{S_P}, 10\ns_add_u32 s52, s52, s54\ns_add_u32 s52, s52, {OFF_PART}')
            for p_ in range(8):
                I(f'buffer_load_dwordx4 {vr(PR+4*p_,4)}, v{VL16}, {sr(S_WS,4)}, s52 offen sc1')
                if p_ < 7: I(f's_add_u32 s52, s52, 73728')
        def finish(R, slotidx, own=None, prb=None, b2raw=None, vo=None, first=0):
            prb = PR if prb is None else prb; b2raw = R + 4 if b2raw is None else b2raw; vo = VO if vo is None else vo
            I(f's_lshl_b32 s54, {slotidx}, 10\nv_add_u32 v16, s54, v{VTR}')
            I(f'ds_read_b64_tr_b16 v[36:37], v16\nds_read_b64_tr_b16 v[38:39], v16 offset:32')
            acc = [72, 73, 74, 75, 108, 109, 110, 111]
            t0, t1 = 22, 23
            if own is not None: acc = [own + e for e in range(8)]
            for p_ in range(first, 8 if own is None else 7):
                for d in range(4):
                    lo, hi = acc[2*d], acc[2*d+1]
                    b = prb + 4*p_ + d
                    if p_ == 0 and own is None: I(f'v_lshlrev_b32 v{lo}, 16, v{b}\nv_and_b32 v{hi}, 0xffff0000, v{b}')
                    else: I(f'v_lshlrev_b32 v{t0}, 16, v{b}\nv_and_b32 v{t1}, 0xffff0000, v{b}\nv_add_f32 v{lo}, v{lo}, v{t0}\nv_add_f32 v{hi}, v{hi}, v{t1}')
            b2 = [30, 31, 32, 33]; xx = [16, 17, 18, 4]; pk = (34, 10)
            I(f'v_lshlrev_b32 v{b2[0]}, 16, v{b2raw}\nv_and_b32 v{b2[1]}, 0xffff0000, v{b2raw}\nv_lshlrev_b32 v{b2[2]}, 16, v{b2raw+1}\nv_and_b32 v{b2[3]}, 0xffff0000, v{b2raw+1}')
            finish.n += 1
            I(f's_waitcnt lgkmcnt({finish.lg})')
            I(f's_lshl_b32 s54, s{S_G}, 7')
            for h in range(2):
                x = 36 + 2*h
                I(f'v_lshlrev_b32 v{xx[0]}, 16, v{x}\nv_and_b32 v{xx[1]}, 0xffff0000, v{x}\nv_lshlrev_b32 v{xx[2]}, 16, v{x+1}\nv_and_b32 v{xx[3]}, 0xffff0000, v{x+1}')
                for r in range(4):
                    a = acc[4*h + r]
                    I(f'v_add_f32 v{a}, v{a}, v{b2[r]}\nv_fma_f32 v{a}, v{a}, v{R+r}, v{xx[r]}')
                I(f'v_cvt_pk_bf16_f32 v{pk[h]}, v{acc[4*h]}, v{acc[4*h+1]}\nv_cvt_pk_bf16_f32 v{pk[h]+1}, v{acc[4*h+2]}, v{acc[4*h+3]}')
            I(f'buffer_store_dwordx2 {vr(pk[0],2)}, v{vo}, s[28:31], s54 offen')
            I(f's_add_u32 s54, s54, {16*1152}')
            I(f'buffer_store_dwordx2 {vr(pk[1],2)}, v{vo}, s[28:31], s54 offen')
        finish.n = 0; finish.lg = 0
        if rot:
            S_PB = 56
            def body2r():
                group(2, 0, (0, 1, 2, 3), ((5, 2), (0, 0), (1, 1)), store_ops(V_ACC[1]), vmw=(9, 9, 9), early=True,
                      pre={1: lambda: signal(1, 'a', cond_it=2)})
                group(2, 1, (3, 4, 5, 0), ((2, 2), (3, 0), (4, 1)), store_ops(V_ACC[0]), vmw=(9, 9, 9), early=True)
            loop(f'L_p2_{cls}', body2r, 3)
            GB8, B28, P8 = PR + 28, 10, PR + 24
            def statics8():
                I(f's_mul_i32 s52, s{S_M}, 73728\ns_lshl_b32 s54, s53, 11\ns_add_u32 s52, s52, s54\ns_add_u32 s52, s52, {OFF_X1T + 8*8192}')
                I(f's_mov_b32 m0, {XS + 8*1024}\ns_nop 0')
                k.vm(f'buffer_load_dwordx4 v{VXG}, {sr(S_WS,4)}, s52 offen lds')
                I(f's_mov_b32 s52, {OFF_MODF + 3*2304 + 8*256}\nv_lshlrev_b32 v16, 2, v{VP4}')
                k.vm(f'buffer_load_dwordx4 {vr(GB8,4)}, v16, {sr(S_WS,4)}, s52 offen')
                I(f's_mov_b32 s54, {8*128}\nv_lshlrev_b32 v17, 1, v{VP4}')
                k.vm(f'buffer_load_dwordx2 {vr(B28,2)}, v17, s[8:11], s54 offen')
            group(2, 0, (0, 1, 2, 3), ((5, 2), (0, 0), (1, 1)), store_ops(V_ACC[1]), vmw=(9, 9, 9), early=True,
                  hooks={9: flag_load, 14: statics8})
            if fine: stamp()
            ptok = {}
            def fetch8():
                k.wait(ftok['t'])
                spin(1, 'a')
                I(f's_mul_i32 s52, s{S_M}, {8*73728}\ns_mul_i32 s54, s{S_W}, 73728\ns_add_u32 s52, s52, s54\ns_lshl_b32 s54, s{S_P}, 10\ns_add_u32 s52, s52, s54\ns_add_u32 s52, s52, {OFF_PART + 8*8192}')
                ptok['t'] = k.vm(f'buffer_load_dwordx4 {vr(P8,4)}, v{VL16}, {sr(S_WS,4)}, s52 offen sc1')
            group(2, 1, (3, 4, 5, 0), ((2, 2), None, None), store_ops(V_ACC[0]), vmw=(9, 9, 9), early=True,
                  pre={0: lambda: signal(2, 'b')}, hooks={6: fetch8, 12: flag_load})
            ftok2 = dict(ftok)
            if fine: stamp()
            k.wait(dma_go.last)
            S_PB = 56
            def own_load(s_):
                I(f's_sub_u32 s54, s{S_P}, {s_}\ns_and_b32 s54, s54, 7\ns_mul_i32 s54, s54, 73728\ns_add_u32 s54, s54, s{S_PB}')
                return k.vm(f'buffer_load_dwordx4 {vr(PR+4*(s_-1),4)}, v{VL16}, {sr(S_WS,4)}, s54 offen sc1')
            wtok = {}
            def stage8():
                k.wait(ptok['t'])
                I(f's_lshl_b32 s54, s{S_W}, 10\ns_add_u32 s54, s54, {3*SLOT}\nv_add_u32 v16, s54, v{VL16}')
                wtok['t'] = k.ds(f'ds_write_b128 v16, {vr(P8,4)}')
            vo8 = {}
            def mid8():
                if fine: stamp()
                k.wait(ftok2['t'])
                spin(2, 'b')
                I(f'v_mov_b32 v3, v{VO}')
                I(f's_lshr_b32 s52, s{S_W}, 2\ns_and_b32 s53, s{S_W}, 3\ns_mov_b32 s{S_G}, s{S_P}')
                I(f's_lshl_b32 s54, s{S_M}, 6\ns_lshl_b32 s55, s52, 5\ns_add_u32 s54, s54, s55\nv_add_u32 v{VO}, s54, v{V_TL}\nv_mul_u32_u24 v{VO}, 1152, v{VO}')
                I(f's_lshl_b32 s55, s53, 4\nv_lshlrev_b32 v{VP4}, 2, v{V_Q}\nv_add_u32 v{VP4}, s55, v{VP4}')
                I(f'v_lshlrev_b32 v16, 1, v{VP4}\nv_add_u32 v{VO}, v{VO}, v16')
                I(f'v_lshrrev_b32 v{VXG}, 2, v{V_LANE}\nv_lshlrev_b32 v{VXG}, 7, v{VXG}\nv_and_b32 v16, 3, v{V_LANE}\nv_lshlrev_b32 v16, 4, v16\nv_add_u32 v{VXG}, v{VXG}, v16\ns_lshl_b32 s55, s52, 6\nv_add_u32 v{VXG}, s55, v{VXG}')
                if fine: stamp()
                statics(R0, f's{S_W}', True)
                I(f's_mul_i32 s{S_PB}, s{S_M}, {8*73728}\ns_lshl_b32 s54, s{S_P}, 13\ns_add_u32 s{S_PB}, s{S_PB}, s54\ns_lshl_b32 s54, s{S_W}, 10\ns_add_u32 s{S_PB}, s{S_PB}, s54\ns_add_u32 s{S_PB}, s{S_PB}, {OFF_PART}')
            hooks = {1: stage8, 6: mid8}
            for s_ in range(1, 6): hooks[6 + 2*s_ - 1] = (lambda q_: (lambda: own_load(q_)))(s_)
            group(2, 0, (0, 1, 2, 3), (None, None, None), store_ops(V_ACC[1]), last=True, vmw=('b', 'b', None), early=True, hooks=hooks,
                  prebar={1: lambda: k.wait(wtok['t'])})
            if fine: stamp()
            I(f's_cmp_eq_u32 s{S_W}, 0\ns_cbranch_scc0 L_nofin8')
            I(f'v_add_u32 v16, {3*SLOT}, v{VL16}')
            for p_ in range(8): I(f'ds_read_b128 {vr(V_BF+4*p_,4)}, v16 offset:{p_*1024}')
            I(f's_waitcnt lgkmcnt(0)\ns_mov_b32 s{S_G}, 8')
            finish(GB8, '8', prb=V_BF, b2raw=B28, vo=3)
            I(f's_mov_b32 s{S_G}, s{S_P}')
            k.label('L_nofin8')
            if fine: stamp()
            I(f's_waitcnt vmcnt(0)\ns_mov_b32 s{S_CNT}, 0x40000')
            if fine: stamp()
            own_load(6); own_load(7)
            for p_ in range(5):
                for d in range(4):
                    b = PR + 4*p_ + d; lo, hi = V_ACC[0] + 2*d, V_ACC[0] + 2*d + 1
                    I(f'v_lshlrev_b32 v22, 16, v{b}\nv_and_b32 v23, 0xffff0000, v{b}\nv_add_f32 v{lo}, v{lo}, v22\nv_add_f32 v{hi}, v{hi}, v23')
            k.label('L_retry')
            I('s_waitcnt vmcnt(0)')
            a_, b_ = PR + 20, PR + 24
            I(f'v_max3_u32 v22, v{a_}, v{a_+1}, v{a_+2}\nv_max3_u32 v22, v22, v{a_+3}, v{b_}\nv_max3_u32 v22, v22, v{b_+1}, v{b_+2}\nv_max_u32 v22, v22, v{b_+3}')
            I(f'v_cmp_eq_u32 vcc, -1, v22\ns_sub_u32 s{S_CNT}, s{S_CNT}, 1\ns_cmp_eq_u32 s{S_CNT}, 0\ns_cbranch_scc1 L_got\ns_nop 1\ns_cbranch_vccz L_got')
            own_load(6); own_load(7)
            I('s_branch L_retry')
            k.label('L_got')
            if fine: stamp()
            finish(R0, f's{S_W}', own=V_ACC[0], first=5)
            return
        def body2():
            group(2, 0, (0, 1, 2, 3), ((5, 2), (0, 0), (1, 1)), store_ops(V_ACC[1]), vmw=(9, 9, 9), early=True)
            group(2, 1, (3, 4, 5, 0), ((2, 2), (3, 0), (4, 1)), store_ops(V_ACC[0]), vmw=(9, 9, 9), early=True)
        loop(f'L_p2_{cls}', body2, 3)
        S_PB = 56
        def batch_setup(lo, hi, lvl, name):
            k.wait(ftok['t'])
            I(f's_sub_u32 s52, s{S_W}, {lo}\ns_cmp_lt_u32 s52, {hi - lo}\ns_cbranch_scc0 L_nob{name}')
            spin(lvl, name)
            k.label(f'L_nob{name}')
            I(f's_mul_i32 s{S_PB}, s{S_M}, {8*73728}\ns_lshl_b32 s54, s{S_W}, 13\ns_add_u32 s{S_PB}, s{S_PB}, s54\ns_lshl_b32 s54, s{S_P}, 10\ns_add_u32 s{S_PB}, s{S_PB}, s54\ns_add_u32 s{S_PB}, s{S_PB}, {OFF_PART}')
            I(f's_sub_u32 s52, s{S_W}, {lo}\ns_cmp_lt_u32 s52, {hi - lo}\ns_cselect_b32 s{S_PB}, s{S_PB}, 0x7ff00000\ns_cselect_b32 s58, 73728, 0')
        ptok = {}
        def pload(p_):
            def f():
                ptok['t'] = k.vm(f'buffer_load_dwordx4 {vr(PR+4*p_,4)}, v{VL16}, {sr(S_WS,4)}, s{S_PB} offen sc1')
                I(f's_add_u32 s{S_PB}, s{S_PB}, s58')
            return f
        I(f's_mov_b32 s{S_G}, s{S_W}')
        group(2, 0, (0, 1, 2, 3), ((5, 2), (0, 0), (1, 1)), store_ops(V_ACC[1]), vmw=(9, 9, 9), early=True,
              pre={1: lambda: signal(1, 'a')}, hooks={14: lambda: statics(R0, f's{S_W}', True)})
        if fine: stamp()
        hooks = {1: flag_load, 9: lambda: batch_setup(0, 5, 1, 'a')}
        for p_ in range(8): hooks[10 + p_] = pload(p_)
        group(2, 1, (3, 4, 5, 0), ((2, 2), None, None), store_ops(V_ACC[0]), vmw=(9, 9, 9), early=True, hooks=hooks)
        tok26 = dma_go.last
        k.wait(tok26)
        group(2, 0, (0, 1, 2, 3), (None, None, None), store_ops(V_ACC[1]), last=True, vmw=('b', 'b', None), early=True,
              pre={0: lambda: signal(2, 'b')}, hooks={12: flag_load})
        if fine: stamp()
        I(f's_cmp_eq_u32 s{S_W}, 0\ns_cbranch_scc0 L_nost8\ns_mov_b32 s{S_G}, 8')
        statics(R1, '8')
        I(f's_mov_b32 s{S_G}, 0')
        k.label('L_nost8')
        k.nop(7)
        run(store_ops(V_ACC[0]))
        I(f's_sub_u32 s52, s{S_W}, 5\ns_cmp_lt_u32 s52, 2\ns_cbranch_scc0 L_no6')
        I('s_waitcnt vmcnt(1)')
        spin(2, 'c')
        partials()
        I('s_waitcnt vmcnt(8)\ns_branch L_st8' if not sent else 's_branch L_st8')
        k.label('L_no6')
        if not sent:
            I('s_waitcnt vmcnt(0)')
            k.label('L_st8')
            if fine: stamp()
            I('s_barrier')
            if fine: stamp()
            signal(3, 'd')
            I(f's_cmp_eq_u32 s{S_W}, 7\ns_cbranch_scc1 L_late7')
            I(f's_cmp_ge_u32 s{S_W}, 5\ns_cbranch_scc0 L_have\ns_waitcnt vmcnt(0)')
            k.label('L_have')
            finish(R0, f's{S_W}')
            I(f's_cmp_eq_u32 s{S_W}, 0\ns_cbranch_scc0 L_ikr_done\ns_mov_b32 s{S_G}, 8')
            for e in range(6): I(f'v_mov_b32 v{R0+e}, v{R1+e}')
            I(f's_mov_b32 s57, 8\ns_branch L_late2')
            k.label('L_late7')
            I(f's_mov_b32 s57, 7')
            k.label('L_late2')
            I(f'buffer_load_dword v{VF}, v{VFA}, {sr(S_WS,4)}, s{S_FL} offen sc1\ns_waitcnt vmcnt(0)')
            spin(3, 'b')
            partials()
            I('s_waitcnt vmcnt(0)')
            finish(R0, 's57')
        else:
            k.label('L_st8')
            if fine: stamp(); stamp()
            I(f's_cmp_eq_u32 s{S_W}, 7\ns_cbranch_scc1 L_late7')
            I(f's_cmp_ge_u32 s{S_W}, 5\ns_cbranch_scc1 L_w56\ns_waitcnt vmcnt(1)\ns_branch L_have')
            k.label('L_w56')
            I('s_waitcnt vmcnt(0)')
            k.label('L_have')
            finish(R0, f's{S_W}')
            I(f's_cmp_eq_u32 s{S_W}, 0\ns_cbranch_scc0 L_ikr_done\ns_mov_b32 s{S_G}, 8')
            for e in range(6): I(f'v_mov_b32 v{R0+e}, v{R1+e}')
            I(f's_mov_b32 s57, 8\ns_branch L_late2')
            k.label('L_late7')
            I(f's_mov_b32 s57, 7')
            k.label('L_late2')
            I(f's_waitcnt vmcnt(0)\ns_mov_b32 s{S_CNT}, 0x40000')
            k.label('L_retry')
            partials()
            I('s_waitcnt vmcnt(0)')
            I(f'v_max3_u32 v22, v{PR}, v{PR+1}, v{PR+2}')
            for e in range(3, 31, 2): I(f'v_max3_u32 v22, v22, v{PR+e}, v{PR+e+1}')
            I(f'v_max_u32 v22, v22, v{PR+31}')
            I(f'v_cmp_eq_u32 vcc, -1, v22\ns_sub_u32 s{S_CNT}, s{S_CNT}, 1\ns_cmp_eq_u32 s{S_CNT}, 0\ns_cbranch_scc1 L_got\ns_nop 1\ns_cbranch_vccnz L_retry')
            k.label('L_got')
            finish(R0, 's57')
        k.label('L_ikr_done')
    if classes:
        import copy
        st0 = (dict(k.cnt), dict(k.done), dict(atok), ctr[0], nst[0], group.btk)
        I(f's_cmp_ge_u32 s{S_W}, 4\ns_cbranch_scc1 L_main1')
        if cls_prio == 0: I('s_setprio 1')
        main(0)
        I('s_branch L_main_done')
        k.label('L_main1')
        k.cnt, k.done = dict(st0[0]), dict(st0[1]); atok.clear(); atok.update(st0[2]); ctr[0] = st0[3]; nst[0] = st0[4]; group.btk = st0[5]
        if cls_prio == 1: I('s_setprio 1')
        main(1)
        k.label('L_main_done')
    else:
        main(0)
    stamp()
    I('s_waitcnt vmcnt(0)')
    stamp()
    if stamps:
        I('s_waitcnt lgkmcnt(0)')
        I(f's_lshl_b32 s46, s2, 6\ns_add_u32 s46, s46, {OFF_DBG}')
        for i in range(nst[0]):
            I(f'v_mov_b32 v2, s{64+2*i}\nv_mov_b32 v3, 0')
            I(f'buffer_store_dword v2, v3, {sr(S_WS,4)}, s46 offen offset:{4*i}')
            if not fine and not lnfine:
                I(f'v_mov_b32 v2, s{80+2*i}')
                I(f'buffer_store_dword v2, v3, {sr(S_WS,4)}, s46 offen offset:{32+4*i}')
        I('s_waitcnt vmcnt(0)')
    if dbgout:
        I(f's_cmp_eq_u32 s2, 0\ns_cbranch_scc0 L_mlp_end\ns_cmp_eq_u32 s{S_W}, 0\ns_cbranch_scc0 L_mlp_end')
        I('s_load_dwordx2 s[20:21], s[0:1], 120\ns_mov_b64 exec, -1\ns_waitcnt vmcnt(0) lgkmcnt(0)')
        I('s_sub_u32 s20, s20, 1024\ns_subb_u32 s21, s21, 0\ns_mov_b32 s22, 1280\ns_mov_b32 s23, 0x20000')
        I(f'v_and_b32 v2, 63, v0\nv_lshlrev_b32 v3, 2, v2')
        srcs = [OFF_DBG + 0x20000 + 4*4, OFF_DBG + 0x10000, OFF_DBG + 0x10000 + 4*5, OFF_DBG + 0x10000 + 4*6, OFF_DBG + 0x10000 + 4*9] + [OFF_DBG + 4*i for i in range(11)]
        I('v_mov_b32 v4, 0')
        for i, o in enumerate(srcs):
            I(f'v_cmp_eq_u32 vcc, {i}, v2\nv_mov_b32 v5, {o}\ns_nop 0\nv_cndmask_b32 v4, v4, v5, vcc')
        I(f'buffer_load_dword v6, v4, {sr(S_WS,4)}, 0 offen sc1')
        I(f'v_mov_b32 v7, {OFF_DBG + 0x20000}\nbuffer_load_dword v8, v7, {sr(S_WS,4)}, 0 offen sc1\ns_waitcnt vmcnt(0)')
        I('v_sub_u32 v6, v6, v8\nv_cmp_gt_u32 vcc, 16, v2\ns_nop 1\ns_and_saveexec_b64 s[50:51], vcc')
        I('buffer_store_dword v6, v3, s[20:23], 0 offen\nbuffer_store_dword v6, v3, s[20:23], 0 offen offset:1024\ns_waitcnt vmcnt(0)')
    k.label('L_mlp_end')
    I('s_endpgm')
    errs = hazards(k.lines, 'mlp')
    for e in errs: print('HAZARD', e)
    return k, LDS_BYTES

if __name__ == '__main__':
    k, lds = build()
    print(len(k.lines), 'lines; lds', lds)
```

```python
from asmlib import Kern, hazards
from layout import *
import math

SLOT = 24576
PAR_G2 = 6 * SLOT
PAR_B1 = PAR_G2 + 4608
STATS1 = PAR_G2 + 6912
STATS2 = STATS1 + 1024
XS = PAR_G2
LDS_BYTES = max(STATS2 + 1024, XS + 9216)


V_TID, V_LANE = 0, 1
V_T0 = 2
V_DMA, V_DMA2 = 3, 4
V_RD = (5, 6, 7)
V_BIAS, V_ST, V_C1, V_C2, V_FR, V_HW = 8, 9, 10, 11, 12, 13
V_TL, V_Q = 14, 15
V_TMP = 16
V_G = 24
V_B4 = 36
V_PK = 40
V_A = 44
V_ACC = (56, 64)
V_H = 76
V_BF = 112
S_WS, S_W1, S_W2, S_CUR, S_B1 = 4, 8, 12, 16, 28
S_W, S_M, S_P, S_IT, S_OFF, S_D, S_G2, S_B, S_WK, S_T, S_ST, S_STN, S_IDX = 33, 34, 35, 36, 37, 38, 39, 40, 41, 42, 43, 44, 45

def vr(a, n): return f'v[{a}:{a+n-1}]'
def sr(a, n): return f's[{a}:{a+n-1}]'

def build(store_flags='', prefetch=True, stamps=False, no_gelu=False, no_dma=False, no_bar=False, no_mfma=False, no_tr=False, prio=None, nF=2, LA=2, inter=False, stagger=False, pf_late=True, fine=False, classes=False, lean=True, wts=(1.0, 1.0), cls_prio=None, ikr=False, pk=False, dmaf='', dbgout=False, sent=False, rot=False, wlate=True, wspread=True, lnfine=False, statmode=4):
    k = Kern('mlp_kernel', 256, 96)
    I = k.I
    nst = [0]
    def stamp():
        if stamps:
            I(f's_memrealtime s[{64+2*nst[0]}:{65+2*nst[0]}]')
            if not fine and not lnfine: I(f's_memtime s[{80+2*nst[0]}:{81+2*nst[0]}]')
            nst[0] += 1
    I('s_cmp_ge_u32 s2, 256\ns_cbranch_scc1 L_mlp_end')
    I('s_load_dwordx2 s[20:21], s[0:1], 64\ns_load_dwordx2 s[22:23], s[0:1], 72\ns_load_dwordx2 s[24:25], s[0:1], 80\ns_load_dwordx2 s[26:27], s[0:1], 128')
    if ikr:
        store_flags = 'sc1'
        pass
    stamp()
    I(f'v_and_b32 v{V_LANE}, 63, v0\nv_lshrrev_b32 v{V_T0}, 6, v0')
    lg = {1: 0, 2: 1, 4: 2, 8: 3}[nF]
    I(f's_and_b32 s46, s2, 7\ns_lshr_b32 s47, s2, 3')
    I(f's_and_b32 s{S_P}, s46, {8//nF - 1}\ns_lshl_b32 s{S_P}, s{S_P}, {lg}\ns_and_b32 s48, s47, {nF - 1}\ns_add_u32 s{S_P}, s{S_P}, s48')
    I(f's_lshr_b32 s{S_M}, s46, {3 - lg}\ns_mul_i32 s{S_M}, s{S_M}, {32//nF}\ns_lshr_b32 s48, s47, {lg}\ns_add_u32 s{S_M}, s{S_M}, s48')
    I(f'v_readfirstlane_b32 s{S_W}, v{V_T0}')
    I(f'v_and_b32 v{V_TL}, 15, v{V_LANE}\nv_lshrrev_b32 v{V_Q}, 4, v{V_LANE}')
    t = V_TMP
    I(f'v_lshrrev_b32 v{t}, 3, v{V_LANE}')
    I(f'v_and_b32 v{t+1}, 7, v{V_LANE}')
    I(f'v_and_b32 v{t+2}, 2, v{t}')
    I(f's_and_b32 s46, s{S_W}, 1\ns_lshl_b32 s46, s46, 2')
    I(f'v_or_b32 v{t+2}, s46, v{t+2}')
    I(f'v_xor_b32 v{t+1}, v{t+1}, v{t+2}')
    I(f'v_lshlrev_b32 v{t+1}, 4, v{t+1}')
    I(f's_lshl_b32 s47, s{S_W}, 3')
    I(f'v_add_u32 v{t}, s47, v{t}')
    I(f'v_lshlrev_b32 v{t+3}, 7, v{t}\nv_add_u32 v{V_T0}, v{t+3}, v{t+1}')
    I(f'v_mul_u32_u24 v{t+3}, 9216, v{t}\nv_add_u32 v{V_DMA}, v{t+3}, v{t+1}')
    I(f'v_mul_u32_u24 v{t+3}, 1152, v{t}\nv_add_u32 v{V_DMA2}, v{t+3}, v{t+1}')
    I(f's_lshl_b32 s{S_WK}, s{S_W}, 10')
    I('s_waitcnt lgkmcnt(0)')
    for base, ptr, size in ((S_WS, 26, WS_BYTES), (S_W1, 20, 5308416), (S_W2, 24, 5308416), (S_CUR, 20, 5308416), (S_B1, 22, 9216)):
        I(f's_mov_b32 s{base}, s{ptr}\ns_mov_b32 s{base+1}, s{ptr+1}\ns_mov_b32 s{base+2}, {size}\ns_mov_b32 s{base+3}, 0x20000')
    I(f's_mul_i32 s46, s{S_M}, 73728\ns_add_u32 s46, s46, {OFF_X1T}')
    xt = None
    for b in range(9):
        I(f's_add_u32 m0, s{S_WK}, {b*8192}')
        I(f's_add_u32 s47, s46, {b*64*128}')
        xt = k.vm(f'buffer_load_dwordx4 v{V_T0}, {sr(S_WS,4)}, s47 offen nt lds')
    I(f'v_lshlrev_b32 v{t}, 4, v0')
    I(f's_mov_b32 s46, {OFF_MODF + 4*2304}')
    pa = k.vm(f'buffer_load_dwordx4 {vr(V_G,4)}, v{t}, {sr(S_WS,4)}, s46 offen')
    I(f'v_subrev_u32 v{t+1}, 288, v0\nv_lshlrev_b32 v{t+1}, 3, v{t+1}')
    I(f's_mul_i32 s46, s{S_P}, 1152')
    I(f'v_cmp_gt_u32 vcc, 288, v0')
    I(f'v_add_u32 v{t+1}, s46, v{t+1}\ns_nop 0')
    I(f'v_cndmask_b32 v{t+1}, v{t+1}, -16, vcc')
    pb = k.vm(f'buffer_load_dwordx2 {vr(V_G+4,2)}, v{t+1}, {sr(S_B1,4)}, 0 offen')
    def do_prefetch():
        G = 32 // nF; per = 5184 // G; rows = 576 // G
        I(f's_and_b32 s60, s{S_M}, {G - 1}')
        for rep in range((per + 511) // 512):
            I(f'v_add_u32 v{t+4}, {rep*512}, v0')
            I(f'v_mul_u32_u24 v{t+2}, 7282, v{t+4}\nv_lshrrev_b32 v{t+2}, 16, v{t+2}')
            I(f'v_mul_u32_u24 v{t+3}, 9, v{t+2}\nv_sub_u32 v{t+3}, v{t+4}, v{t+3}')
            I(f's_mul_i32 s61, s60, {rows}\nv_add_u32 v{t+2}, s61, v{t+2}')
            I(f'v_mul_u32_u24 v{t+2}, 9216, v{t+2}\nv_lshlrev_b32 v{t+3}, 7, v{t+3}')
            I(f'v_add_u32 v{t+2}, v{t+2}, v{t+3}')
            I(f's_mul_i32 s61, s{S_P}, 1152\nv_add_u32 v{t+2}, s61, v{t+2}')
            I(f'v_cmp_gt_u32 vcc, {per}, v{t+4}\ns_nop 1\nv_cndmask_b32 v{t+2}, -16, v{t+2}, vcc')
            k.vm(f'buffer_load_dword v{V_H-4}, v{t+2}, {sr(S_W1,4)}, 0 offen')
            I(f'v_lshlrev_b32 v{t+2}, 7, v{t+4}')
            I(f's_mul_i32 s61, s{S_P}, 663552\ns_mul_i32 s62, s60, {per*128}\ns_add_u32 s61, s61, s62')
            I(f'v_add_u32 v{t+2}, s61, v{t+2}')
            I(f'v_cndmask_b32 v{t+2}, -16, v{t+2}, vcc')
            k.vm(f'buffer_load_dword v{V_H-3}, v{t+2}, {sr(S_W2,4)}, 0 offen')
    if prefetch and not pf_late: do_prefetch()
    D1, D2 = 192 * 9216, 192 * 1152
    I(f's_mul_i32 s{S_OFF}, s{S_P}, 1152\ns_mov_b32 s{S_D}, {D1}\ns_mov_b32 s{S_G2}, {(128 - 2*D1) & 0xffffffff}\ns_mov_b32 s{S_B}, {64*9216}')
    I(f's_mov_b32 s63, 0\ns_mov_b32 s60, 0\ns_mov_b32 s61, 15\ns_mov_b32 s62, s{S_OFF}')
    VD = (V_DMA, 22, 23)
    I(f'v_add_u32 v{VD[1]}, {64*9216}, v{V_DMA}\nv_add_u32 v{VD[2]}, {128*9216}, v{V_DMA}')
    def dma_m0(slot, b): I(f's_add_u32 m0, s{S_WK}, {slot*SLOT + b*8192}')
    def dma_go(b, kc):
        tok = k.vm(f'buffer_load_dwordx4 v{VD[b]}, {sr(S_CUR,4)}, s{S_OFF} offen {dmaf} lds')
        if b == 2:
            if kc == 2:
                I(f's_add_u32 s63, s63, 1\ns_add_u32 s{S_T}, s63, s60\ns_and_b32 s{S_T}, s{S_T}, s61\ns_lshl_b32 s{S_T}, s{S_T}, 7\ns_add_u32 s{S_OFF}, s62, s{S_T}')
            else: I(f's_add_u32 s{S_OFF}, s{S_OFF}, s{S_D}')
        dma_go.last = tok
        return tok
    def dma_chunk(slot, kc):
        tok = None
        for b in range(3):
            dma_m0(slot, b); I('s_nop 0'); tok = dma_go(b, kc)
        return tok
    if not wlate: c0 = dma_chunk(3, 0); c1 = dma_chunk(4, 1); c2 = dma_chunk(5, 2)
    I(f'v_lshrrev_b32 v{t}, 2, v{V_TL}')
    I(f'v_and_b32 v{t+1}, 3, v{V_LANE}')
    I(f'v_lshlrev_b32 v{t+2}, 3, v{V_Q}\nv_add_u32 v{t+2}, v{t+2}, v{t}\nv_lshlrev_b32 v{t+2}, 7, v{t+2}')
    I(f'v_and_b32 v{t+3}, 2, v{t}')
    I(f'v_and_b32 v{t+4}, 1, v{V_Q}\nv_lshlrev_b32 v{t+4}, 2, v{t+4}\nv_or_b32 v{t+3}, v{t+3}, v{t+4}')
    I(f's_and_b32 s46, s{S_W}, 3\ns_lshl_b32 s46, s46, 1')
    I(f'v_lshrrev_b32 v{t+4}, 1, v{t+1}\nv_add_u32 v{t+4}, s46, v{t+4}\nv_xor_b32 v{t+4}, v{t+4}, v{t+3}\nv_lshlrev_b32 v{t+4}, 4, v{t+4}')
    I(f'v_and_b32 v{t+1}, 1, v{t+1}\nv_lshlrev_b32 v{t+1}, 3, v{t+1}')
    I(f'v_add_u32 v{t+2}, v{t+2}, v{t+4}\nv_add_u32 v{V_RD[0]}, v{t+2}, v{t+1}')
    I(f'v_add_u32 v{V_RD[1]}, {2*SLOT}, v{V_RD[0]}\nv_add_u32 v{V_RD[2]}, {4*SLOT}, v{V_RD[0]}')
    k.wait(pb)
    I(f'v_lshlrev_b32 v{V_G+8}, 16, v{V_G+4}\nv_and_b32 v{V_G+9}, 0xffff0000, v{V_G+4}\nv_lshlrev_b32 v{V_G+10}, 16, v{V_G+5}\nv_and_b32 v{V_G+11}, 0xffff0000, v{V_G+5}')
    I(f'v_cmp_gt_u32 vcc, 288, v0\ns_nop 1')
    for r in range(4): I(f'v_cndmask_b32 v{V_G+r}, v{V_G+8+r}, v{V_G+r}, vcc')
    I(f'v_lshlrev_b32 v{t}, 4, v0\nv_add_u32 v{t}, {PAR_G2}, v{t}')
    I(f'v_cmp_gt_u32 vcc, 432, v0\ns_nop 1\ns_and_saveexec_b64 s[50:51], vcc')
    k.ds(f'ds_write_b128 v{t}, {vr(V_G,4)}')
    I('s_mov_b64 exec, s[50:51]')
    c1v = -2.0 * math.sqrt(2.0 / math.pi) * math.log2(math.e); c2v = c1v * 0.044715
    import struct
    f2u = lambda x: struct.unpack('<I', struct.pack('<f', x))[0]
    global V_C2
    V_C2 = 18 if pk else 11
    I(f'v_mov_b32 v{V_C1}, {f2u(c1v):#x}')
    I(f's_and_b32 s46, s{S_W}, 3\ns_lshr_b32 s47, s{S_W}, 2')
    I(f's_lshl_b32 s48, s46, 6\ns_add_u32 s48, s48, {PAR_B1}')
    I(f'v_lshlrev_b32 v{V_BIAS}, 4, v{V_Q}\nv_add_u32 v{V_BIAS}, s48, v{V_BIAS}')
    I(f's_mul_i32 s48, s47, 36864\nv_lshlrev_b32 v{V_FR}, 4, v{V_LANE}\nv_add_u32 v{V_FR}, s48, v{V_FR}')
    I(f's_lshr_b32 s48, s46, 1\ns_lshl_b32 s48, s48, 10\ns_mul_i32 s49, s47, 36864\ns_add_u32 s48, s48, s49')
    I(f's_and_b32 s49, s46, 1\ns_lshl_b32 s49, s49, 9\ns_add_u32 s48, s48, s49\ns_add_u32 s48, s48, {3*SLOT}')
    I(f'v_lshrrev_b32 v{t}, 1, v{V_Q}\nv_lshlrev_b32 v{t}, 8, v{t}\nv_lshlrev_b32 v{t+1}, 4, v{V_TL}\nv_add_u32 v{t}, v{t}, v{t+1}')
    I(f'v_and_b32 v{t+1}, 1, v{V_Q}\nv_lshlrev_b32 v{t+1}, 3, v{t+1}\nv_add_u32 v{t}, v{t}, v{t+1}\nv_add_u32 v{V_HW}, s48, v{t}')
    I(f'v_lshlrev_b32 v{V_ST}, 4, v{V_LANE}\nv_add_u32 v{V_ST}, s{S_WK}, v{V_ST}')
    I(f's_lshl_b32 s48, s{S_M}, 3\ns_add_u32 s48, s48, s{S_P}\ns_mul_i32 s{S_STN}, s48, 73728\ns_add_u32 s{S_STN}, s{S_STN}, {OFF_PART}\ns_mov_b32 s{S_ST}, 0x7ff00000')
    X, H2, PG = V_BF, V_BF + 36, V_BF + 108
    ONES, A1, A2 = V_A, V_ACC[0], V_ACC[0] + 4
    for r in range(4): I(f'v_mov_b32 v{ONES+r}, 0x3f803f80')
    I(f's_mul_i32 s48, s47, {9*4096}\nv_add_u32 v{t}, s48, v{V_RD[0]}')
    I(f'v_and_b32 v{t+1}, 3, v{V_TL}')
    I(f'v_cmp_eq_u32 s[52:53], 1, v{t+1}\nv_cmp_eq_u32 s[54:55], 2, v{t+1}\nv_cmp_eq_u32 s[56:57], 3, v{t+1}')
    I(f'v_lshrrev_b32 v{t+1}, 2, v{V_TL}\nv_cmp_eq_u32 s[58:59], v{t+1}, v{V_Q}')
    I(f's_lshl_b32 s48, s46, 8\nv_lshlrev_b32 v{t+2}, 4, v{V_TL}\nv_add_u32 v{t+2}, s48, v{t+2}\nv_add_u32 v{t+2}, {STATS1}, v{t+2}')
    I(f's_lshl_b32 s48, s47, 3\nv_add_u32 v{t+3}, s48, v{t+2}')
    k.wait(xt)
    k.waitall(vm=False)
    I('s_barrier')
    stamp()
    if prefetch and pf_late:
        save_t = [V_TMP + 2, V_TMP + 3]
        I(f'v_mov_b32 v{V_PK}, v{t+2}\nv_mov_b32 v{V_PK+1}, v{t+3}')
        do_prefetch()
        I(f'v_mov_b32 v{t+2}, v{V_PK}\nv_mov_b32 v{t+3}, v{V_PK+1}')
    if wlate and not wspread: c0 = dma_chunk(3, 0); c1 = dma_chunk(4, 1); c2 = dma_chunk(5, 2)
    def sentinels():
        for r in range(4): I(f'v_mov_b32 v{V_PK+r}, -1')
        I(f's_lshl_b32 s48, s{S_M}, 3\ns_add_u32 s48, s48, s{S_P}\ns_mul_i32 s48, s48, 73728\ns_add_u32 s48, s48, {OFF_PART}\nv_lshlrev_b32 v{V_G+10}, 4, v0')
        for st_ in (6, 7):
            I(f's_add_u32 s49, s{S_P}, {st_}\ns_and_b32 s49, s49, 7\ns_lshl_b32 s49, s49, 13\ns_add_u32 s49, s49, s48')
            k.vm(f'buffer_store_dwordx4 {vr(V_PK,4)}, v{V_G+10}, {sr(S_WS,4)}, s49 offen sc1')
    if rot and not wspread: sentinels()
    toks = []
    for u in range(9):
        k.ds(f'ds_read_b64_tr_b16 {vr(X+4*u,2)}, v{t} offset:{u*4096}')
        toks.append(k.ds(f'ds_read_b64_tr_b16 {vr(X+4*u+2,2)}, v{t} offset:{u*4096+512}'))
    def stats(src, area_off):
        for u in range(9):
            if src == X and area_off == 0: k.wait(toks[u])
            I(f'v_mfma_f32_16x16x32_bf16 {vr(A1,4)}, {vr(ONES,4)}, {vr(src+4*u,4)}, {"0" if u == 0 else vr(A1,4)}')
            I(f'v_mfma_f32_16x16x32_bf16 {vr(A2,4)}, {vr(src+4*u,4)}, {vr(src+4*u,4)}, {"0" if u == 0 else vr(A2,4)}')
    stats(X, 0)
    if not ikr:
        I(f's_cmp_eq_u32 s{S_W}, s{S_P}\ns_cbranch_scc0 L_mlp_nox1')
        I(f's_lshl_b32 s48, s{S_M}, 6\ns_lshl_b32 s49, s46, 4\ns_add_u32 s48, s48, s49')
        I(f'v_add_u32 v{t+4}, s48, v{V_TL}\nv_mul_u32_u24 v{t+4}, 1152, v{t+4}\nv_lshlrev_b32 v{t+5}, 4, v{V_Q}\nv_add_u32 v{t+4}, v{t+4}, v{t+5}')
        I(f's_mul_i32 s48, s47, 576\ns_add_u32 s48, s48, {OFF_X1R}')
        for u in range(9):
            I(f'buffer_store_dwordx4 {vr(X+4*u,4)}, v{t+4}, {sr(S_WS,4)}, s48 offen offset:{u*64}')
        k.label('L_mlp_nox1')
    def finish_stats(area):
        k.nop(8)
        I(f'v_cndmask_b32 v{V_G}, v{A2}, v{A2+1}, s[52:53]\nv_cndmask_b32 v{V_G}, v{V_G}, v{A2+2}, s[54:55]\nv_cndmask_b32 v{V_G+1}, v{V_G}, v{A2+3}, s[56:57]')
        I(f'v_mov_b32 v{V_G}, v{A1}')
        I('s_mov_b64 s[50:51], exec\ns_mov_b64 exec, s[58:59]')
        k.ds(f'ds_write_b64 v{t+3}, {vr(V_G,2)} offset:{area}')
        I('s_mov_b64 exec, s[50:51]')
        k.waitall(vm=False)
        I('s_barrier')
        if (fine and not ikr) or lnfine: stamp()
        tk = k.ds(f'ds_read_b128 {vr(V_G+4,4)}, v{t+2} offset:{area}')
        return tk
    def stats_to_rm(tk):
        k.wait(tk)
        inv = f2u(1.0 / 576.0)
        I(f'v_add_f32 v{V_G}, v{V_G+4}, v{V_G+6}\nv_add_f32 v{V_G+1}, v{V_G+5}, v{V_G+7}')
        I(f'v_mul_f32 v{V_G}, {inv:#x}, v{V_G}\nv_mul_f32 v{V_G+1}, {inv:#x}, v{V_G+1}')
        I(f'v_fma_f32 v{V_G+1}, -v{V_G}, v{V_G}, v{V_G+1}')
        I(f'v_max_f32 v{V_G+1}, 0, v{V_G+1}\nv_add_f32 v{V_G+1}, {f2u(1e-5):#x}, v{V_G+1}')
        I(f'v_rsq_f32 v{V_G+2}, v{V_G+1}\ns_nop 0')
        I(f'v_mul_f32 v{V_G+3}, v{V_G}, v{V_G+2}\nv_sub_f32 v{V_G+3}, 0, v{V_G+3}')
    tk = finish_stats(0)
    I(f's_mul_i32 s48, s47, {9*128}\ns_add_u32 s48, s48, {PAR_G2}\nv_lshlrev_b32 v{t+4}, 5, v{V_Q}\nv_add_u32 v{t+4}, s48, v{t+4}')
    def par_reads(u):
        b = PG + (u & 1) * 16
        k.ds(f'ds_read_b128 {vr(b,4)}, v{t+4} offset:{u*128}')
        k.ds(f'ds_read_b128 {vr(b+4,4)}, v{t+4} offset:{u*128+16}')
        k.ds(f'ds_read_b128 {vr(b+8,4)}, v{t+4} offset:{2304+u*128}')
        return k.ds(f'ds_read_b128 {vr(b+12,4)}, v{t+4} offset:{2304+u*128+16}')
    ptk = [par_reads(0)]
    stats_to_rm(tk)
    R, NMR = V_G + 2, V_G + 3
    def stat_step(u):
        I(f'v_mfma_f32_16x16x32_bf16 {vr(A1,4)}, {vr(ONES,4)}, {vr(X+4*u,4)}, {"0" if u == 0 else vr(A1,4)}')
        I(f'v_mfma_f32_16x16x32_bf16 {vr(A2,4)}, {vr(X+4*u,4)}, {vr(X+4*u,4)}, {"0" if u == 0 else vr(A2,4)}')
    for u in range(9):
        if u + 1 < 9: ptk.append(par_reads(u + 1))
        if wlate and wspread:
            dma_m0(3 + u // 3, u % 3); I('s_nop 0'); tok_ = dma_go(u % 3, u // 3)
            if u == 2: c0 = tok_
        b = PG + (u & 1) * 16
        for d in range(4):
            I(f'v_lshlrev_b32 v{H2+8*u+2*d}, 16, v{X+4*u+d}\nv_and_b32 v{H2+8*u+2*d+1}, 0xffff0000, v{X+4*u+d}')
        if u > 0 and statmode:
            stat_step(u - 1)
            if statmode == 2: k.nop(8)
            if statmode == 3: I('s_nop 0')
            if statmode == 5: k.nop(3)
            if statmode == 6: k.nop(5)
        for e in range(8): I(f'v_fma_f32 v{H2+8*u+e}, v{H2+8*u+e}, v{R}, v{NMR}')
        k.wait(ptk[u])
        for e in range(8): I(f'v_fma_f32 v{H2+8*u+e}, v{H2+8*u+e}, v{b+e}, v{b+8+e}')
        for d in range(4): I(f'v_cvt_pk_bf16_f32 v{X+4*u+d}, v{H2+8*u+2*d}, v{H2+8*u+2*d+1}')
    I('s_nop 1')
    if statmode: stat_step(8)
    else:
        for u in range(9): stat_step(u)
    if lnfine: stamp()
    if rot and wspread: sentinels()
    tk = finish_stats(1024)
    stats_to_rm(tk)
    I(f's_mul_i32 s48, s46, 18432\ns_mul_i32 s49, s47, 9216\ns_add_u32 s48, s48, s49\nv_lshlrev_b32 v{t+4}, 4, v{V_LANE}\nv_add_u32 v{t+4}, s48, v{t+4}')
    for u in range(9):
        for e in range(8): I(f'v_fma_f32 v{H2+8*u+e}, v{H2+8*u+e}, v{R}, v{NMR}')
        for d in range(4): I(f'v_cvt_pk_bf16_f32 v{X+4*u+d}, v{H2+8*u+2*d}, v{H2+8*u+2*d+1}')
        k.ds(f'ds_write_b128 v{t+4}, {vr(X+4*u,4)} offset:{u*1024}')
    k.waitall(vm=False)
    I('s_barrier')
    if (fine and not ikr) or lnfine: stamp()
    def load_bfrags(base_off):
        tk = None
        for n in range(36):
            tk = k.ds(f'ds_read_b128 {vr(V_BF+4*n,4)}, v{V_FR} offset:{base_off + n*1024}') if base_off + n*1024 < 65536 else None
        return tk
    load_bfrags(0)
    btk = k.ds(f'ds_read_b128 {vr(V_B4,4)}, v{V_BIAS}')
    I(f'v_add_u32 v{V_BIAS}, 256, v{V_BIAS}')
    k.wait(c0)
    if ikr: I('s_load_dwordx2 s[8:9], s[0:1], 88\ns_load_dwordx2 s[28:29], s[0:1], 112')
    k.waitall(vm=False)
    if ikr: I('s_mov_b32 s10, 1152\ns_mov_b32 s11, 0x20000\ns_mov_b32 s30, 2359296\ns_mov_b32 s31, 0x20000')
    I('s_barrier')
    dma_chunk(0, 0); dma_chunk(1, 1)
    stamp()

    I(f'v_mov_b32 v{V_C2}, {f2u(c2v):#x}')
    NB = LA + 1
    ABUF = [V_A, V_A + 4, V_A + 8, V_TMP, V_TMP + 4][:NB]
    atok = {}
    ctr = [0]
    def a_read_parts(cnt, slot, u):
        buf = ABUF[cnt % NB]
        off = (slot & 1) * SLOT + u * 4096
        def r0(): k.ds(f'ds_read_b64_tr_b16 {vr(buf,2)}, v{V_RD[slot>>1]} offset:{off}')
        def r1(): atok[cnt % NB] = k.ds(f'ds_read_b64_tr_b16 {vr(buf+2,2)}, v{V_RD[slot>>1]} offset:{off+512}')
        return r0, r1
    def a_reads(cnt, slot, u):
        r0, r1 = a_read_parts(cnt, slot, u); r0(); r1()
    def gelu_ops(acc, dst):
        ops = []
        for h in range(2):
            x = [acc + 4*h + r for r in range(4)]; g = [V_G + 4*h + r for r in range(4)]
            if pk:
                P = (0, 2)
                ops += [f'v_pk_mul_f32 {vr(g[r],2)}, {vr(x[r],2)}, {vr(x[r],2)}' for r in P]
                ops += [f'v_pk_fma_f32 {vr(g[r],2)}, {vr(g[r],2)}, {vr(V_C2,2)}, {vr(V_C1,2)} op_sel_hi:[1,0,0]' for r in P]
                ops += [f'v_pk_mul_f32 {vr(g[r],2)}, {vr(x[r],2)}, {vr(g[r],2)}' for r in P]
                ops += [f'v_exp_f32 v{g[r]}, v{g[r]}' for r in range(4)]
                ops += [f'v_pk_add_f32 {vr(g[r],2)}, {vr(g[r],2)}, 1.0 op_sel_hi:[1,0]' for r in P]
                ops += [f'v_rcp_f32 v{g[r]}, v{g[r]}' for r in range(4)]
                ops += [f'v_pk_mul_f32 {vr(g[r],2)}, {vr(x[r],2)}, {vr(g[r],2)}' for r in P]
            else:
                ops += [f'v_mul_f32 v{g[r]}, v{x[r]}, v{x[r]}' for r in range(4)]
                ops += [f'v_fma_f32 v{g[r]}, v{g[r]}, v{V_C2}, v{V_C1}' for r in range(4)]
                ops += [f'v_mul_f32 v{g[r]}, v{x[r]}, v{g[r]}' for r in range(4)]
                ops += [f'v_exp_f32 v{g[r]}, v{g[r]}' for r in range(4)]
                ops += [f'v_add_f32 v{g[r]}, 1.0, v{g[r]}' for r in range(4)]
                ops += [f'v_rcp_f32 v{g[r]}, v{g[r]}' for r in range(4)]
                ops += [f'v_mul_f32 v{g[r]}, v{x[r]}, v{g[r]}' for r in range(4)]
            ops += dst(h, g)
        return ops
    lab = [0]
    cur = dict(cls=0)
    def group(phase, par, slots, issue, extra, last=False, vmw=(9, 9, 9), pre=None, early=False, hooks=None, prebar=None):
        acc = V_ACC[par]
        extra = list(extra)
        if no_gelu and phase == 1: extra = []
        nfill = len(extra)
        cls = cur['cls']
        dma_steps = (0, 2, 4) if cls == 0 else (1, 3, 5)
        wt = []
        for n in range(18):
            w_ = 0.0 if n == 0 else (wts[0] if (n % 6) in dma_steps else wts[1])
            if early: w_ = 1.0 if 1 <= n <= (1 if early == 1 else 3) else 0.0
            wt += [w_ / 2, w_ / 2]
        tot = sum(wt); cum = []; a_ = 0.0
        for w_ in wt:
            a_ += w_; cum.append(int(round(nfill * a_ / tot)))
        cum[-1] = nfill
        st = dict(done=0)
        def fill(upto):
            while st['done'] < min(upto, nfill):
                x_ = extra[st['done']]
                if callable(x_): x_()
                else: I(x_)
                st['done'] += 1
        for kc in range(3):
            if vmw[kc] is not None:
                if prebar and kc in prebar: prebar[kc]()
                if vmw[kc] != 'b': k.raw_wait(vm=vmw[kc])
                if not no_bar: I('s_barrier')
            if pre and kc in pre: pre[kc]()
            for u in range(6):
                n = kc * 6 + u
                cnt = ctr[0]; ctr[0] += 1
                buf = ABUF[cnt % NB]
                k.wait(atok[cnt % NB])
                nn = n + LA
                if nn < 18: rd = a_read_parts(cnt + LA, slots[nn // 6], nn % 6)
                elif not last: rd = a_read_parts(cnt + LA, slots[3], nn - 18)
                else: rd = (lambda: None, lambda: None)
                def mfma(h):
                    if n == 0: c = vr(V_B4, 4) if phase == 1 else '0'
                    else: c = vr(acc + 4*h, 4)
                    if not no_mfma: I(f'v_mfma_f32_16x16x32_bf16 {vr(acc+4*h,4)}, {vr(buf,4)}, {vr(V_BF+(h*18+n)*4,4)}, {c}')
                dma = issue[kc] is not None and not no_dma and u in dma_steps
                b = dma_steps.index(u) if dma else None
                mfma(0)
                rd[0](); fill(cum[2*n])
                mfma(1)
                if dma: dma_m0(issue[kc][0], b)
                rd[1]()
                if dma:
                    if nn >= 18 and last: I('s_nop 0')
                    dma_go(b, issue[kc][1])
                if phase == 1 and n == 8:
                    group.btk = k.ds(f'ds_read_b128 {vr(V_B4,4)}, v{V_BIAS}')
                    I(f'v_add_u32 v{V_BIAS}, 256, v{V_BIAS}')
                fill(cum[2*n+1])
                if hooks and n in hooks: hooks[n]()
                if phase == 1 and n == 17: k.wait(group.btk)
    group.btk = btk
    def h_dst_indexed(delta):
        def f(h, g):
            return [f'v_cvt_pk_bf16_f32 v{V_PK}, v{g[0]}, v{g[1]}', f'v_cvt_pk_bf16_f32 v{V_PK+1}, v{g[2]}, v{g[3]}',
                    f's_set_gpr_idx_on s{S_IDX}, gpr_idx(DST)', f'v_mov_b32 v{V_H+delta+2*h}, v{V_PK}', f'v_mov_b32 v{V_H+delta+2*h+1}, v{V_PK+1}', 's_set_gpr_idx_off']
        return f
    def h_dst_static(G):
        def f(h, g):
            return [f'v_cvt_pk_bf16_f32 v{V_H+4*G+2*h}, v{g[0]}, v{g[1]}', f'v_cvt_pk_bf16_f32 v{V_H+4*G+2*h+1}, v{g[2]}, v{g[3]}']
        return f
    def merge_idx(ops):
        out = []; i = 0
        while i < len(ops):
            if ops[i].startswith('s_set_gpr_idx_on'):
                out.append('\n'.join(ops[i:i+4])); i += 4
            else:
                out.append(ops[i]); i += 1
        return out
    def switch_src(to):
        def f():
            lab = f'L_sw_{to}_{cur["cls"]}'
            I(f's_cmp_eq_u32 s{S_IT}, 3\ns_cbranch_scc0 {lab}')
            if to == 'w2':
                I(f's_mov_b32 s{S_CUR}, s{S_W2}\ns_mov_b32 s{S_CUR+1}, s{S_W2+1}')
                I(f'v_mov_b32 v{VD[0]}, v{V_DMA2}\nv_add_u32 v{VD[1]}, {64*1152}, v{V_DMA2}\nv_add_u32 v{VD[2]}, {128*1152}, v{V_DMA2}')
                I(f's_mul_i32 s62, s{S_P}, 663552\ns_mov_b32 s{S_D}, {D2}\ns_mov_b32 s63, 0')
                if rot: I(f's_add_u32 s{S_OFF}, s62, {8*128}\ns_mov_b32 s60, s{S_P}\ns_mov_b32 s61, 7')
                else: I(f's_mov_b32 s{S_OFF}, s62')
            else:
                I(f's_mov_b32 s{S_OFF}, 0x7ff00000\ns_mov_b32 s62, 0x7ff00000\ns_mov_b32 s{S_D}, 0')
            k.label(lab)
        return f
    def main(cls):
        cur['cls'] = cls
        for n in range(LA): a_reads(n, 3, n)
        k.wait(btk)
        I(f's_mov_b32 s{S_IT}, 0\ns_mov_b32 s{S_IDX}, 0')
        def body1():
            group(1, 0, (3, 4, 5, 0), ((2, 2), (3, 0), (4, 1)), merge_idx(gelu_ops(V_ACC[1], h_dst_indexed(-4))))
            group(1, 1, (0, 1, 2, 3), ((5, 2), (0, 0), (1, 1)), merge_idx(gelu_ops(V_ACC[0], h_dst_indexed(0))), pre={1: switch_src('w2')})
        def loop(label, body, n):
            save = len(k.lines); l0 = lab[0]
            body(); first = k.lines[save:]; del k.lines[save:]; lab[0] = l0
            body(); second = k.lines[save:]; del k.lines[save:]; lab[0] = l0
            start = len(k.lines)
            k.label(label)
            body()
            third = k.lines[start+1:]
            assert second == third, 'loop body not a fixed point'
            strip = lambda L: [x for x in L]
            def split(L):
                body_, waits = [], {}
                for x in L:
                    if x.startswith('    s_waitcnt'): waits.setdefault(len(body_), []).append(x.strip())
                    else: body_.append(x)
                return body_, waits
            fb, fw = split(first); sb_, sw_ = split(second)
            assert fb == sb_, 'loop body differs between entry and steady state'
            import re as _re
            def cnts(ws):
                d = {}
                for w_ in ws:
                    for nm, v in _re.findall(r'(vmcnt|lgkmcnt)\((\d+)\)', w_): d[nm] = min(d.get(nm, 99), int(v))
                return d
            for pos, ws in fw.items():
                a = cnts(ws); b = cnts(sw_.get(pos, []))
                for nm, v in a.items():
                    assert nm in b and b[nm] <= v, ('steady-state wait too lax for loop entry', label, pos, ws, sw_.get(pos))
            errs = hazards(third + third, label)
            for e in errs: print('HAZARD', e)
            I(f's_add_u32 s{S_IDX}, s{S_IDX}, 8\ns_add_u32 s{S_IT}, s{S_IT}, 1\ns_cmp_lt_u32 s{S_IT}, {n}\ns_cbranch_scc1 {label}')
        loop(f'L_p1_{cls}', body1, 4)
        stamp()
        group(1, 0, (3, 4, 5, 0), ((2, 2), None, None), gelu_ops(V_ACC[1], h_dst_static(7)), vmw=(9, 9, 6))
        k.raw_wait(vm=3)
        I('s_barrier')
        k.nop(4)
        g8 = gelu_ops(V_ACC[0], h_dst_static(8))
        wr = [(G, h) for G in range(8) for h in range(2)]
        gi = 0
        for n_, (G, h) in enumerate(wr):
            k.ds(f'ds_write_b64 v{V_HW}, {vr(V_H+4*G+2*h,2)} offset:{G*2048 + h*18432}')
            upto = len(g8) * (n_ + 1) // len(wr)
            while gi < upto:
                I(g8[gi]); gi += 1
        for h in range(2):
            k.ds(f'ds_write_b64 v{V_HW}, {vr(V_H+32+2*h,2)} offset:{8*2048 + h*18432}')
        k.waitall(vm=False)
        I('s_barrier')
        I(f'v_add_u32 v{V_FR}, {3*SLOT}, v{V_FR}')
        load_bfrags(0)
        k.waitall(vm=False)
        I('s_barrier')
        dma_chunk(3, 0); dma_chunk(4, 1)
        stamp()
        stok = {}
        def store_ops(acc):
            ops = [f'v_cvt_pk_bf16_f32 v{V_PK+2*h+d}, v{acc+4*h+2*d}, v{acc+4*h+2*d+1}' for h in range(2) for d in range(2)]
            def st_():
                stok['last'] = k.vm(f'buffer_store_dwordx4 {vr(V_PK,4)}, v{V_ST}, {sr(S_WS,4)}, s{S_ST} offen {store_flags}')
                if not rot: I(f's_mov_b32 s{S_ST}, s{S_STN}\ns_add_u32 s{S_STN}, s{S_STN}, 8192')
                else: I(f's_mov_b32 s{S_ST}, s{S_STN}\ns_add_u32 s59, s59, 1\ns_add_u32 s{S_STN}, s59, s{S_P}\ns_and_b32 s{S_STN}, s{S_STN}, 7\ns_lshl_b32 s{S_STN}, s{S_STN}, 13\ns_add_u32 s{S_STN}, s{S_STN}, s32')
            ops.append(st_)
            return ops
        def run(ops):
            for op in ops:
                if callable(op): op()
                else: I(op)
        I(f's_mov_b32 s{S_IT}, 0')
        if rot: I(f's_mov_b32 s32, s{S_STN}\ns_add_u32 s{S_STN}, s{S_STN}, {8*8192}\ns_mov_b32 s59, 0')
        if not ikr:
            def body2():
                group(2, 0, (0, 1, 2, 3), ((5, 2), (0, 0), (1, 1)), store_ops(V_ACC[1]), vmw=(9, 9, 9))
                group(2, 1, (3, 4, 5, 0), ((2, 2), (3, 0), (4, 1)), store_ops(V_ACC[0]), vmw=(9, 9, 9), pre={1: switch_src('oob')})
            loop(f'L_p2_{cls}', body2, 4)
            group(2, 0, (0, 1, 2, 3), (None, None, None), store_ops(V_ACC[1]), last=True, vmw=(9, 6, None))
            k.nop(8)
            run(store_ops(V_ACC[0]))
            return
        S_FL, S_G, S_CNT = 46, 50, 51
        VF, VFA, VL16, VO, VTR, VP4 = 2, 12, 13, 8, 20, 21
        I(f's_lshl_b32 s{S_FL}, s{S_M}, 7\ns_add_u32 s{S_FL}, s{S_FL}, {OFF_FLAG}')
        I(f'v_and_b32 v{VFA}, 7, v{V_LANE}\nv_lshlrev_b32 v{VFA}, 2, v{VFA}\nv_lshlrev_b32 v{VL16}, 4, v{V_LANE}')
        I(f's_lshr_b32 s52, s{S_P}, 2\ns_and_b32 s53, s{S_P}, 3')
        I(f's_lshl_b32 s54, s{S_M}, 6\ns_lshl_b32 s55, s52, 5\ns_add_u32 s54, s54, s55\nv_add_u32 v{VO}, s54, v{V_TL}\nv_mul_u32_u24 v{VO}, 1152, v{VO}')
        I(f's_lshl_b32 s55, s53, 4\nv_lshlrev_b32 v{VP4}, 2, v{V_Q}\nv_add_u32 v{VP4}, s55, v{VP4}')
        I(f'v_lshlrev_b32 v16, 1, v{VP4}\nv_add_u32 v{VO}, v{VO}, v16')
        I(f'v_lshrrev_b32 v{VTR}, 2, v{V_TL}\nv_lshlrev_b32 v16, 2, v{V_Q}\nv_add_u32 v{VTR}, v{VTR}, v16\nv_lshlrev_b32 v{VTR}, 6, v{VTR}')
        I(f'v_and_b32 v16, 3, v{V_LANE}\nv_lshlrev_b32 v16, 3, v16\nv_add_u32 v{VTR}, v{VTR}, v16\nv_add_u32 v{VTR}, {XS}, v{VTR}')
        VXG = 19
        I(f'v_lshrrev_b32 v{VXG}, 2, v{V_LANE}\nv_lshlrev_b32 v{VXG}, 7, v{VXG}\nv_and_b32 v16, 3, v{V_LANE}\nv_lshlrev_b32 v16, 4, v16\nv_add_u32 v{VXG}, v{VXG}, v16\ns_lshl_b32 s55, s52, 6\nv_add_u32 v{VXG}, s55, v{VXG}')
        def signal(val, name, cond_it=None):
            lb = f'L_sig{name}'
            if cond_it is not None: I(f's_cmp_eq_u32 s{S_IT}, {cond_it}\ns_cbranch_scc0 {lb}')
            I(f's_cmp_eq_u32 s{S_W}, 0\ns_cbranch_scc0 {lb}')
            I(f's_lshl_b32 s52, s{S_P}, 2\ns_add_u32 s52, s52, s{S_FL}\nv_mov_b32 v16, {val}\nv_mov_b32 v17, 0\ns_mov_b64 exec, 1')
            I(f'buffer_store_dword v16, v17, {sr(S_WS,4)}, s52 offen sc1')
            I('s_mov_b64 exec, -1')
            k.label(lb)
        ftok = {}
        def flag_load(): ftok['t'] = k.vm(f'buffer_load_dword v{VF}, v{VFA}, {sr(S_WS,4)}, s{S_FL} offen sc1')
        def spin(val, name):
            I(f's_mov_b32 s{S_CNT}, 0x40000')
            k.label(f'L_spin{name}')
            I(f'v_cmp_gt_u32 vcc, {val}, v{VF}\ns_nop 4\ns_cbranch_vccz L_spun{name}')
            I(f's_sub_u32 s{S_CNT}, s{S_CNT}, 1\ns_cmp_eq_u32 s{S_CNT}, 0\ns_cbranch_scc1 L_spun{name}')
            I(f's_sleep 1\nbuffer_load_dword v{VF}, v{VFA}, {sr(S_WS,4)}, s{S_FL} offen sc1\ns_waitcnt vmcnt(0)\ns_branch L_spin{name}')
            k.label(f'L_spun{name}')
        PR = V_H
        R0, R1 = V_G, V_BF
        def statics(R, slotidx, tracked=False):
            V = k.vm if tracked else I
            I(f's_mul_i32 s52, s{S_M}, 73728\ns_lshl_b32 s54, s{S_G}, 13\ns_add_u32 s52, s52, s54\ns_lshl_b32 s54, s53, 11\ns_add_u32 s52, s52, s54\ns_add_u32 s52, s52, {OFF_X1T}')
            I(f's_lshl_b32 s54, {slotidx}, 10\ns_add_u32 m0, s54, {XS}\ns_nop 0')
            V(f'buffer_load_dwordx4 v{VXG}, {sr(S_WS,4)}, s52 offen lds')
            I(f's_lshl_b32 s54, s{S_G}, 8\ns_add_u32 s52, s54, {OFF_MODF + 3*2304}\nv_lshlrev_b32 v16, 2, v{VP4}')
            V(f'buffer_load_dwordx4 {vr(R,4)}, v16, {sr(S_WS,4)}, s52 offen')
            I(f's_lshl_b32 s54, s{S_G}, 7\nv_lshlrev_b32 v17, 1, v{VP4}')
            V(f'buffer_load_dwordx2 {vr(R+4,2)}, v17, s[8:11], s54 offen')
        def partials():
            I(f's_mul_i32 s52, s{S_M}, {8*73728}\ns_lshl_b32 s54, s{S_G}, 13\ns_add_u32 s52, s52, s54\ns_lshl_b32 s54, s{S_P}, 10\ns_add_u32 s52, s52, s54\ns_add_u32 s52, s52, {OFF_PART}')
            for p_ in range(8):
                I(f'buffer_load_dwordx4 {vr(PR+4*p_,4)}, v{VL16}, {sr(S_WS,4)}, s52 offen sc1')
                if p_ < 7: I(f's_add_u32 s52, s52, 73728')
        def finish(R, slotidx, own=None, prb=None, b2raw=None, vo=None, first=0):
            prb = PR if prb is None else prb; b2raw = R + 4 if b2raw is None else b2raw; vo = VO if vo is None else vo
            I(f's_lshl_b32 s54, {slotidx}, 10\nv_add_u32 v16, s54, v{VTR}')
            I(f'ds_read_b64_tr_b16 v[36:37], v16\nds_read_b64_tr_b16 v[38:39], v16 offset:32')
            acc = [72, 73, 74, 75, 108, 109, 110, 111]
            t0, t1 = 22, 23
            if own is not None: acc = [own + e for e in range(8)]
            for p_ in range(first, 8 if own is None else 7):
                for d in range(4):
                    lo, hi = acc[2*d], acc[2*d+1]
                    b = prb + 4*p_ + d
                    if p_ == 0 and own is None: I(f'v_lshlrev_b32 v{lo}, 16, v{b}\nv_and_b32 v{hi}, 0xffff0000, v{b}')
                    else: I(f'v_lshlrev_b32 v{t0}, 16, v{b}\nv_and_b32 v{t1}, 0xffff0000, v{b}\nv_add_f32 v{lo}, v{lo}, v{t0}\nv_add_f32 v{hi}, v{hi}, v{t1}')
            b2 = [30, 31, 32, 33]; xx = [16, 17, 18, 4]; pk = (34, 10)
            I(f'v_lshlrev_b32 v{b2[0]}, 16, v{b2raw}\nv_and_b32 v{b2[1]}, 0xffff0000, v{b2raw}\nv_lshlrev_b32 v{b2[2]}, 16, v{b2raw+1}\nv_and_b32 v{b2[3]}, 0xffff0000, v{b2raw+1}')
            finish.n += 1
            I(f's_waitcnt lgkmcnt({finish.lg})')
            I(f's_lshl_b32 s54, s{S_G}, 7')
            for h in range(2):
                x = 36 + 2*h
                I(f'v_lshlrev_b32 v{xx[0]}, 16, v{x}\nv_and_b32 v{xx[1]}, 0xffff0000, v{x}\nv_lshlrev_b32 v{xx[2]}, 16, v{x+1}\nv_and_b32 v{xx[3]}, 0xffff0000, v{x+1}')
                for r in range(4):
                    a = acc[4*h + r]
                    I(f'v_add_f32 v{a}, v{a}, v{b2[r]}\nv_fma_f32 v{a}, v{a}, v{R+r}, v{xx[r]}')
                I(f'v_cvt_pk_bf16_f32 v{pk[h]}, v{acc[4*h]}, v{acc[4*h+1]}\nv_cvt_pk_bf16_f32 v{pk[h]+1}, v{acc[4*h+2]}, v{acc[4*h+3]}')
            I(f'buffer_store_dwordx2 {vr(pk[0],2)}, v{vo}, s[28:31], s54 offen')
            I(f's_add_u32 s54, s54, {16*1152}')
            I(f'buffer_store_dwordx2 {vr(pk[1],2)}, v{vo}, s[28:31], s54 offen')
        finish.n = 0; finish.lg = 0
        if rot:
            S_PB = 56
            def body2r():
                group(2, 0, (0, 1, 2, 3), ((5, 2), (0, 0), (1, 1)), store_ops(V_ACC[1]), vmw=(9, 9, 9), early=3,
                      pre={1: lambda: signal(1, 'a', cond_it=2)})
                group(2, 1, (3, 4, 5, 0), ((2, 2), (3, 0), (4, 1)), store_ops(V_ACC[0]), vmw=(9, 9, 9), early=3)
            loop(f'L_p2_{cls}', body2r, 3)
            GB8, B28, P8 = PR + 28, 10, PR + 24
            def statics8():
                I(f's_mul_i32 s52, s{S_M}, 73728\ns_lshl_b32 s54, s53, 11\ns_add_u32 s52, s52, s54\ns_add_u32 s52, s52, {OFF_X1T + 8*8192}')
                I(f's_mov_b32 m0, {XS + 8*1024}\ns_nop 0')
                k.vm(f'buffer_load_dwordx4 v{VXG}, {sr(S_WS,4)}, s52 offen lds')
                I(f's_mov_b32 s52, {OFF_MODF + 3*2304 + 8*256}\nv_lshlrev_b32 v16, 2, v{VP4}')
                k.vm(f'buffer_load_dwordx4 {vr(GB8,4)}, v16, {sr(S_WS,4)}, s52 offen')
                I(f's_mov_b32 s54, {8*128}\nv_lshlrev_b32 v17, 1, v{VP4}')
                k.vm(f'buffer_load_dwordx2 {vr(B28,2)}, v17, s[8:11], s54 offen')
            group(2, 0, (0, 1, 2, 3), ((5, 2), (0, 0), (1, 1)), store_ops(V_ACC[1]), vmw=(9, 9, 9), early=3,
                  hooks={9: flag_load, 14: statics8})
            if fine: stamp()
            ptok = {}
            def fetch8():
                k.wait(ftok['t'])
                spin(1, 'a')
                I(f's_mul_i32 s52, s{S_M}, {8*73728}\ns_mul_i32 s54, s{S_W}, 73728\ns_add_u32 s52, s52, s54\ns_lshl_b32 s54, s{S_P}, 10\ns_add_u32 s52, s52, s54\ns_add_u32 s52, s52, {OFF_PART + 8*8192}')
                ptok['t'] = k.vm(f'buffer_load_dwordx4 {vr(P8,4)}, v{VL16}, {sr(S_WS,4)}, s52 offen sc1')
            group(2, 1, (3, 4, 5, 0), ((2, 2), None, None), store_ops(V_ACC[0]), vmw=(9, 9, 9), early=3,
                  pre={0: lambda: signal(2, 'b')}, hooks={6: fetch8, 10: flag_load})
            ftok2 = dict(ftok)
            if fine: stamp()
            k.wait(dma_go.last)
            S_PB = 56
            def own_load(s_):
                I(f's_sub_u32 s54, s{S_P}, {s_}\ns_and_b32 s54, s54, 7\ns_mul_i32 s54, s54, 73728\ns_add_u32 s54, s54, s{S_PB}')
                return k.vm(f'buffer_load_dwordx4 {vr(PR+4*(s_-1),4)}, v{VL16}, {sr(S_WS,4)}, s54 offen sc1')
            wtok = {}
            def stage8():
                k.wait(ptok['t'])
                I(f's_lshl_b32 s54, s{S_W}, 10\ns_add_u32 s54, s54, {3*SLOT}\nv_add_u32 v16, s54, v{VL16}')
                wtok['t'] = k.ds(f'ds_write_b128 v16, {vr(P8,4)}')
            vo8 = {}
            def mid8():
                if fine: stamp()
                k.wait(ftok2['t'])
                spin(2, 'b')
                I(f'v_mov_b32 v3, v{VO}')
                I(f's_lshr_b32 s52, s{S_W}, 2\ns_and_b32 s53, s{S_W}, 3\ns_mov_b32 s{S_G}, s{S_P}')
                I(f's_lshl_b32 s54, s{S_M}, 6\ns_lshl_b32 s55, s52, 5\ns_add_u32 s54, s54, s55\nv_add_u32 v{VO}, s54, v{V_TL}\nv_mul_u32_u24 v{VO}, 1152, v{VO}')
                I(f's_lshl_b32 s55, s53, 4\nv_lshlrev_b32 v{VP4}, 2, v{V_Q}\nv_add_u32 v{VP4}, s55, v{VP4}')
                I(f'v_lshlrev_b32 v16, 1, v{VP4}\nv_add_u32 v{VO}, v{VO}, v16')
                I(f'v_lshrrev_b32 v{VXG}, 2, v{V_LANE}\nv_lshlrev_b32 v{VXG}, 7, v{VXG}\nv_and_b32 v16, 3, v{V_LANE}\nv_lshlrev_b32 v16, 4, v16\nv_add_u32 v{VXG}, v{VXG}, v16\ns_lshl_b32 s55, s52, 6\nv_add_u32 v{VXG}, s55, v{VXG}')
                if fine: stamp()
                statics(R0, f's{S_W}', True)
                I(f's_mul_i32 s{S_PB}, s{S_M}, {8*73728}\ns_lshl_b32 s54, s{S_P}, 13\ns_add_u32 s{S_PB}, s{S_PB}, s54\ns_lshl_b32 s54, s{S_W}, 10\ns_add_u32 s{S_PB}, s{S_PB}, s54\ns_add_u32 s{S_PB}, s{S_PB}, {OFF_PART}')
            hooks = {1: stage8, 2: mid8}
            for s_, n_ in zip(range(1, 6), (3, 4, 6, 7, 8)): hooks[n_] = (lambda q_: (lambda: own_load(q_)))(s_)
            group(2, 0, (0, 1, 2, 3), (None, None, None), store_ops(V_ACC[1]), last=True, vmw=('b', 'b', None), early=1, hooks=hooks,
                  prebar={1: lambda: k.wait(wtok['t'])})
            if fine: stamp()
            I(f's_cmp_eq_u32 s{S_W}, 0\ns_cbranch_scc0 L_nofin8')
            I(f'v_add_u32 v16, {3*SLOT}, v{VL16}')
            for p_ in range(8): I(f'ds_read_b128 {vr(V_BF+4*p_,4)}, v16 offset:{p_*1024}')
            I(f's_waitcnt lgkmcnt(0)\ns_mov_b32 s{S_G}, 8')
            finish(GB8, '8', prb=V_BF, b2raw=B28, vo=3)
            I(f's_mov_b32 s{S_G}, s{S_P}')
            k.label('L_nofin8')
            if fine: stamp()
            I(f's_waitcnt vmcnt(0)\ns_mov_b32 s{S_CNT}, 0x40000')
            if fine: stamp()
            own_load(6); own_load(7)
            for p_ in range(5):
                for d in range(4):
                    b = PR + 4*p_ + d; lo, hi = V_ACC[0] + 2*d, V_ACC[0] + 2*d + 1
                    I(f'v_lshlrev_b32 v22, 16, v{b}\nv_and_b32 v23, 0xffff0000, v{b}\nv_add_f32 v{lo}, v{lo}, v22\nv_add_f32 v{hi}, v{hi}, v23')
            k.label('L_retry')
            I('s_waitcnt vmcnt(0)')
            a_, b_ = PR + 20, PR + 24
            I(f'v_max3_u32 v22, v{a_}, v{a_+1}, v{a_+2}\nv_max3_u32 v22, v22, v{a_+3}, v{b_}\nv_max3_u32 v22, v22, v{b_+1}, v{b_+2}\nv_max_u32 v22, v22, v{b_+3}')
            I(f'v_cmp_eq_u32 vcc, -1, v22\ns_sub_u32 s{S_CNT}, s{S_CNT}, 1\ns_cmp_eq_u32 s{S_CNT}, 0\ns_cbranch_scc1 L_got\ns_nop 1\ns_cbranch_vccz L_got')
            own_load(6); own_load(7)
            I('s_branch L_retry')
            k.label('L_got')
            if fine: stamp()
            finish(R0, f's{S_W}', own=V_ACC[0], first=5)
            return
        def body2():
            group(2, 0, (0, 1, 2, 3), ((5, 2), (0, 0), (1, 1)), store_ops(V_ACC[1]), vmw=(9, 9, 9), early=3)
            group(2, 1, (3, 4, 5, 0), ((2, 2), (3, 0), (4, 1)), store_ops(V_ACC[0]), vmw=(9, 9, 9), early=3)
        loop(f'L_p2_{cls}', body2, 3)
        S_PB = 56
        def batch_setup(lo, hi, lvl, name):
            k.wait(ftok['t'])
            I(f's_sub_u32 s52, s{S_W}, {lo}\ns_cmp_lt_u32 s52, {hi - lo}\ns_cbranch_scc0 L_nob{name}')
            spin(lvl, name)
            k.label(f'L_nob{name}')
            I(f's_mul_i32 s{S_PB}, s{S_M}, {8*73728}\ns_lshl_b32 s54, s{S_W}, 13\ns_add_u32 s{S_PB}, s{S_PB}, s54\ns_lshl_b32 s54, s{S_P}, 10\ns_add_u32 s{S_PB}, s{S_PB}, s54\ns_add_u32 s{S_PB}, s{S_PB}, {OFF_PART}')
            I(f's_sub_u32 s52, s{S_W}, {lo}\ns_cmp_lt_u32 s52, {hi - lo}\ns_cselect_b32 s{S_PB}, s{S_PB}, 0x7ff00000\ns_cselect_b32 s58, 73728, 0')
        ptok = {}
        def pload(p_):
            def f():
                ptok['t'] = k.vm(f'buffer_load_dwordx4 {vr(PR+4*p_,4)}, v{VL16}, {sr(S_WS,4)}, s{S_PB} offen sc1')
                I(f's_add_u32 s{S_PB}, s{S_PB}, s58')
            return f
        I(f's_mov_b32 s{S_G}, s{S_W}')
        group(2, 0, (0, 1, 2, 3), ((5, 2), (0, 0), (1, 1)), store_ops(V_ACC[1]), vmw=(9, 9, 9), early=3,
              pre={1: lambda: signal(1, 'a')}, hooks={14: lambda: statics(R0, f's{S_W}', True)})
        if fine: stamp()
        hooks = {1: flag_load, 9: lambda: batch_setup(0, 5, 1, 'a')}
        for p_ in range(8): hooks[10 + p_] = pload(p_)
        group(2, 1, (3, 4, 5, 0), ((2, 2), None, None), store_ops(V_ACC[0]), vmw=(9, 9, 9), early=3, hooks=hooks)
        tok26 = dma_go.last
        k.wait(tok26)
        group(2, 0, (0, 1, 2, 3), (None, None, None), store_ops(V_ACC[1]), last=True, vmw=('b', 'b', None), early=3,
              pre={0: lambda: signal(2, 'b')}, hooks={12: flag_load})
        if fine: stamp()
        I(f's_cmp_eq_u32 s{S_W}, 0\ns_cbranch_scc0 L_nost8\ns_mov_b32 s{S_G}, 8')
        statics(R1, '8')
        I(f's_mov_b32 s{S_G}, 0')
        k.label('L_nost8')
        k.nop(7)
        run(store_ops(V_ACC[0]))
        I(f's_sub_u32 s52, s{S_W}, 5\ns_cmp_lt_u32 s52, 2\ns_cbranch_scc0 L_no6')
        I('s_waitcnt vmcnt(1)')
        spin(2, 'c')
        partials()
        I('s_waitcnt vmcnt(8)\ns_branch L_st8' if not sent else 's_branch L_st8')
        k.label('L_no6')
        if not sent:
            I('s_waitcnt vmcnt(0)')
            k.label('L_st8')
            if fine: stamp()
            I('s_barrier')
            if fine: stamp()
            signal(3, 'd')
            I(f's_cmp_eq_u32 s{S_W}, 7\ns_cbranch_scc1 L_late7')
            I(f's_cmp_ge_u32 s{S_W}, 5\ns_cbranch_scc0 L_have\ns_waitcnt vmcnt(0)')
            k.label('L_have')
            finish(R0, f's{S_W}')
            I(f's_cmp_eq_u32 s{S_W}, 0\ns_cbranch_scc0 L_ikr_done\ns_mov_b32 s{S_G}, 8')
            for e in range(6): I(f'v_mov_b32 v{R0+e}, v{R1+e}')
            I(f's_mov_b32 s57, 8\ns_branch L_late2')
            k.label('L_late7')
            I(f's_mov_b32 s57, 7')
            k.label('L_late2')
            I(f'buffer_load_dword v{VF}, v{VFA}, {sr(S_WS,4)}, s{S_FL} offen sc1\ns_waitcnt vmcnt(0)')
            spin(3, 'b')
            partials()
            I('s_waitcnt vmcnt(0)')
            finish(R0, 's57')
        else:
            k.label('L_st8')
            if fine: stamp(); stamp()
            I(f's_cmp_eq_u32 s{S_W}, 7\ns_cbranch_scc1 L_late7')
            I(f's_cmp_ge_u32 s{S_W}, 5\ns_cbranch_scc1 L_w56\ns_waitcnt vmcnt(1)\ns_branch L_have')
            k.label('L_w56')
            I('s_waitcnt vmcnt(0)')
            k.label('L_have')
            finish(R0, f's{S_W}')
            I(f's_cmp_eq_u32 s{S_W}, 0\ns_cbranch_scc0 L_ikr_done\ns_mov_b32 s{S_G}, 8')
            for e in range(6): I(f'v_mov_b32 v{R0+e}, v{R1+e}')
            I(f's_mov_b32 s57, 8\ns_branch L_late2')
            k.label('L_late7')
            I(f's_mov_b32 s57, 7')
            k.label('L_late2')
            I(f's_waitcnt vmcnt(0)\ns_mov_b32 s{S_CNT}, 0x40000')
            k.label('L_retry')
            partials()
            I('s_waitcnt vmcnt(0)')
            I(f'v_max3_u32 v22, v{PR}, v{PR+1}, v{PR+2}')
            for e in range(3, 31, 2): I(f'v_max3_u32 v22, v22, v{PR+e}, v{PR+e+1}')
            I(f'v_max_u32 v22, v22, v{PR+31}')
            I(f'v_cmp_eq_u32 vcc, -1, v22\ns_sub_u32 s{S_CNT}, s{S_CNT}, 1\ns_cmp_eq_u32 s{S_CNT}, 0\ns_cbranch_scc1 L_got\ns_nop 1\ns_cbranch_vccnz L_retry')
            k.label('L_got')
            finish(R0, 's57')
        k.label('L_ikr_done')
    if classes:
        import copy
        st0 = (dict(k.cnt), dict(k.done), dict(atok), ctr[0], nst[0], group.btk)
        I(f's_cmp_ge_u32 s{S_W}, 4\ns_cbranch_scc1 L_main1')
        if cls_prio == 0: I('s_setprio 1')
        main(0)
        I('s_branch L_main_done')
        k.label('L_main1')
        k.cnt, k.done = dict(st0[0]), dict(st0[1]); atok.clear(); atok.update(st0[2]); ctr[0] = st0[3]; nst[0] = st0[4]; group.btk = st0[5]
        if cls_prio == 1: I('s_setprio 1')
        main(1)
        k.label('L_main_done')
    else:
        main(0)
    stamp()
    I('s_waitcnt vmcnt(0)')
    stamp()
    if stamps:
        I('s_waitcnt lgkmcnt(0)')
        I(f's_lshl_b32 s46, s2, 6\ns_add_u32 s46, s46, {OFF_DBG}')
        for i in range(nst[0]):
            I(f'v_mov_b32 v2, s{64+2*i}\nv_mov_b32 v3, 0')
            I(f'buffer_store_dword v2, v3, {sr(S_WS,4)}, s46 offen offset:{4*i}')
            if not fine and not lnfine:
                I(f'v_mov_b32 v2, s{80+2*i}')
                I(f'buffer_store_dword v2, v3, {sr(S_WS,4)}, s46 offen offset:{32+4*i}')
        I('s_waitcnt vmcnt(0)')
    if dbgout:
        I(f's_cmp_eq_u32 s2, 0\ns_cbranch_scc0 L_mlp_end\ns_cmp_eq_u32 s{S_W}, 0\ns_cbranch_scc0 L_mlp_end')
        I('s_load_dwordx2 s[20:21], s[0:1], 120\ns_mov_b64 exec, -1\ns_waitcnt vmcnt(0) lgkmcnt(0)')
        I('s_sub_u32 s20, s20, 1024\ns_subb_u32 s21, s21, 0\ns_mov_b32 s22, 1280\ns_mov_b32 s23, 0x20000')
        I(f'v_and_b32 v2, 63, v0\nv_lshlrev_b32 v3, 2, v2')
        srcs = [OFF_DBG + 0x20000 + 4*4, OFF_DBG + 0x10000, OFF_DBG + 0x10000 + 4*5, OFF_DBG + 0x10000 + 4*6, OFF_DBG + 0x10000 + 4*9] + [OFF_DBG + 4*i for i in range(11)]
        I('v_mov_b32 v4, 0')
        for i, o in enumerate(srcs):
            I(f'v_cmp_eq_u32 vcc, {i}, v2\nv_mov_b32 v5, {o}\ns_nop 0\nv_cndmask_b32 v4, v4, v5, vcc')
        I(f'buffer_load_dword v6, v4, {sr(S_WS,4)}, 0 offen sc1')
        I(f'v_mov_b32 v7, {OFF_DBG + 0x20000}\nbuffer_load_dword v8, v7, {sr(S_WS,4)}, 0 offen sc1\ns_waitcnt vmcnt(0)')
        I('v_sub_u32 v6, v6, v8\nv_cmp_gt_u32 vcc, 16, v2\ns_nop 1\ns_and_saveexec_b64 s[50:51], vcc')
        I('buffer_store_dword v6, v3, s[20:23], 0 offen\nbuffer_store_dword v6, v3, s[20:23], 0 offen offset:1024\ns_waitcnt vmcnt(0)')
    k.label('L_mlp_end')
    I('s_endpgm')
    errs = hazards(k.lines, 'mlp')
    for e in errs: print('HAZARD', e)
    return k, LDS_BYTES

if __name__ == '__main__':
    k, lds = build()
    print(len(k.lines), 'lines; lds', lds)
```

```python
from asmlib import Kern, hazards
from layout import *
import math

SLOT = 24576
PAR_G2 = 6 * SLOT
PAR_B1 = PAR_G2 + 4608
STATS1 = PAR_G2 + 6912
STATS2 = STATS1 + 1024
XS = PAR_G2
LDS_BYTES = max(STATS2 + 1024, XS + 9216)


V_TID, V_LANE = 0, 1
V_T0 = 2
V_DMA, V_DMA2 = 3, 4
V_RD = (5, 6, 7)
V_BIAS, V_ST, V_C1, V_C2, V_FR, V_HW = 8, 9, 10, 11, 12, 13
V_TL, V_Q = 14, 15
V_TMP = 16
V_G = 24
V_B4 = 36
V_PK = 40
V_A = 44
V_ACC = (56, 64)
V_H = 76
V_BF = 112
S_WS, S_W1, S_W2, S_CUR, S_B1 = 4, 8, 12, 16, 28
S_W, S_M, S_P, S_IT, S_OFF, S_D, S_G2, S_B, S_WK, S_T, S_ST, S_STN, S_IDX = 33, 34, 35, 36, 37, 38, 39, 40, 41, 42, 43, 44, 45

def vr(a, n): return f'v[{a}:{a+n-1}]'
def sr(a, n): return f's[{a}:{a+n-1}]'

def build(store_flags='', prefetch=True, stamps=False, no_gelu=False, no_dma=False, no_bar=False, no_mfma=False, no_tr=False, prio=None, nF=2, LA=2, inter=False, stagger=False, pf_late=True, fine=False, classes=False, lean=True, wts=(1.0, 1.0), cls_prio=None, ikr=False, pk=False, dmaf='', dbgout=False, sent=False, rot=False, wlate=True, wspread=True, lnfine=False, statmode=4, tailv=1):
    k = Kern('mlp_kernel', 256, 96)
    I = k.I
    nst = [0]
    def stamp():
        if stamps:
            I(f's_memrealtime s[{64+2*nst[0]}:{65+2*nst[0]}]')
            if not fine and not lnfine: I(f's_memtime s[{80+2*nst[0]}:{81+2*nst[0]}]')
            nst[0] += 1
    I('s_cmp_ge_u32 s2, 256\ns_cbranch_scc1 L_mlp_end')
    I('s_load_dwordx2 s[20:21], s[0:1], 64\ns_load_dwordx2 s[22:23], s[0:1], 72\ns_load_dwordx2 s[24:25], s[0:1], 80\ns_load_dwordx2 s[26:27], s[0:1], 128')
    if ikr:
        store_flags = 'sc1'
        pass
    stamp()
    I(f'v_and_b32 v{V_LANE}, 63, v0\nv_lshrrev_b32 v{V_T0}, 6, v0')
    lg = {1: 0, 2: 1, 4: 2, 8: 3}[nF]
    I(f's_and_b32 s46, s2, 7\ns_lshr_b32 s47, s2, 3')
    I(f's_and_b32 s{S_P}, s46, {8//nF - 1}\ns_lshl_b32 s{S_P}, s{S_P}, {lg}\ns_and_b32 s48, s47, {nF - 1}\ns_add_u32 s{S_P}, s{S_P}, s48')
    I(f's_lshr_b32 s{S_M}, s46, {3 - lg}\ns_mul_i32 s{S_M}, s{S_M}, {32//nF}\ns_lshr_b32 s48, s47, {lg}\ns_add_u32 s{S_M}, s{S_M}, s48')
    I(f'v_readfirstlane_b32 s{S_W}, v{V_T0}')
    I(f'v_and_b32 v{V_TL}, 15, v{V_LANE}\nv_lshrrev_b32 v{V_Q}, 4, v{V_LANE}')
    t = V_TMP
    I(f'v_lshrrev_b32 v{t}, 3, v{V_LANE}')
    I(f'v_and_b32 v{t+1}, 7, v{V_LANE}')
    I(f'v_and_b32 v{t+2}, 2, v{t}')
    I(f's_and_b32 s46, s{S_W}, 1\ns_lshl_b32 s46, s46, 2')
    I(f'v_or_b32 v{t+2}, s46, v{t+2}')
    I(f'v_xor_b32 v{t+1}, v{t+1}, v{t+2}')
    I(f'v_lshlrev_b32 v{t+1}, 4, v{t+1}')
    I(f's_lshl_b32 s47, s{S_W}, 3')
    I(f'v_add_u32 v{t}, s47, v{t}')
    I(f'v_lshlrev_b32 v{t+3}, 7, v{t}\nv_add_u32 v{V_T0}, v{t+3}, v{t+1}')
    I(f'v_mul_u32_u24 v{t+3}, 9216, v{t}\nv_add_u32 v{V_DMA}, v{t+3}, v{t+1}')
    I(f'v_mul_u32_u24 v{t+3}, 1152, v{t}\nv_add_u32 v{V_DMA2}, v{t+3}, v{t+1}')
    I(f's_lshl_b32 s{S_WK}, s{S_W}, 10')
    I('s_waitcnt lgkmcnt(0)')
    for base, ptr, size in ((S_WS, 26, WS_BYTES), (S_W1, 20, 5308416), (S_W2, 24, 5308416), (S_CUR, 20, 5308416), (S_B1, 22, 9216)):
        I(f's_mov_b32 s{base}, s{ptr}\ns_mov_b32 s{base+1}, s{ptr+1}\ns_mov_b32 s{base+2}, {size}\ns_mov_b32 s{base+3}, 0x20000')
    I(f's_mul_i32 s46, s{S_M}, 73728\ns_add_u32 s46, s46, {OFF_X1T}')
    xt = None
    for b in range(9):
        I(f's_add_u32 m0, s{S_WK}, {b*8192}')
        I(f's_add_u32 s47, s46, {b*64*128}')
        xt = k.vm(f'buffer_load_dwordx4 v{V_T0}, {sr(S_WS,4)}, s47 offen nt lds')
    I(f'v_lshlrev_b32 v{t}, 4, v0')
    I(f's_mov_b32 s46, {OFF_MODF + 4*2304}')
    pa = k.vm(f'buffer_load_dwordx4 {vr(V_G,4)}, v{t}, {sr(S_WS,4)}, s46 offen')
    I(f'v_subrev_u32 v{t+1}, 288, v0\nv_lshlrev_b32 v{t+1}, 3, v{t+1}')
    I(f's_mul_i32 s46, s{S_P}, 1152')
    I(f'v_cmp_gt_u32 vcc, 288, v0')
    I(f'v_add_u32 v{t+1}, s46, v{t+1}\ns_nop 0')
    I(f'v_cndmask_b32 v{t+1}, v{t+1}, -16, vcc')
    pb = k.vm(f'buffer_load_dwordx2 {vr(V_G+4,2)}, v{t+1}, {sr(S_B1,4)}, 0 offen')
    def do_prefetch():
        G = 32 // nF; per = 5184 // G; rows = 576 // G
        I(f's_and_b32 s60, s{S_M}, {G - 1}')
        for rep in range((per + 511) // 512):
            I(f'v_add_u32 v{t+4}, {rep*512}, v0')
            I(f'v_mul_u32_u24 v{t+2}, 7282, v{t+4}\nv_lshrrev_b32 v{t+2}, 16, v{t+2}')
            I(f'v_mul_u32_u24 v{t+3}, 9, v{t+2}\nv_sub_u32 v{t+3}, v{t+4}, v{t+3}')
            I(f's_mul_i32 s61, s60, {rows}\nv_add_u32 v{t+2}, s61, v{t+2}')
            I(f'v_mul_u32_u24 v{t+2}, 9216, v{t+2}\nv_lshlrev_b32 v{t+3}, 7, v{t+3}')
            I(f'v_add_u32 v{t+2}, v{t+2}, v{t+3}')
            I(f's_mul_i32 s61, s{S_P}, 1152\nv_add_u32 v{t+2}, s61, v{t+2}')
            I(f'v_cmp_gt_u32 vcc, {per}, v{t+4}\ns_nop 1\nv_cndmask_b32 v{t+2}, -16, v{t+2}, vcc')
            k.vm(f'buffer_load_dword v{V_H-4}, v{t+2}, {sr(S_W1,4)}, 0 offen')
            I(f'v_lshlrev_b32 v{t+2}, 7, v{t+4}')
            I(f's_mul_i32 s61, s{S_P}, 663552\ns_mul_i32 s62, s60, {per*128}\ns_add_u32 s61, s61, s62')
            I(f'v_add_u32 v{t+2}, s61, v{t+2}')
            I(f'v_cndmask_b32 v{t+2}, -16, v{t+2}, vcc')
            k.vm(f'buffer_load_dword v{V_H-3}, v{t+2}, {sr(S_W2,4)}, 0 offen')
    if prefetch and not pf_late: do_prefetch()
    D1, D2 = 192 * 9216, 192 * 1152
    I(f's_mul_i32 s{S_OFF}, s{S_P}, 1152\ns_mov_b32 s{S_D}, {D1}\ns_mov_b32 s{S_G2}, {(128 - 2*D1) & 0xffffffff}\ns_mov_b32 s{S_B}, {64*9216}')
    I(f's_mov_b32 s63, 0\ns_mov_b32 s60, 0\ns_mov_b32 s61, 15\ns_mov_b32 s62, s{S_OFF}')
    VD = (V_DMA, 22, 23)
    I(f'v_add_u32 v{VD[1]}, {64*9216}, v{V_DMA}\nv_add_u32 v{VD[2]}, {128*9216}, v{V_DMA}')
    def dma_m0(slot, b): I(f's_add_u32 m0, s{S_WK}, {slot*SLOT + b*8192}')
    def dma_go(b, kc):
        tok = k.vm(f'buffer_load_dwordx4 v{VD[b]}, {sr(S_CUR,4)}, s{S_OFF} offen {dmaf} lds')
        if b == 2:
            if kc == 2:
                I(f's_add_u32 s63, s63, 1\ns_add_u32 s{S_T}, s63, s60\ns_and_b32 s{S_T}, s{S_T}, s61\ns_lshl_b32 s{S_T}, s{S_T}, 7\ns_add_u32 s{S_OFF}, s62, s{S_T}')
            else: I(f's_add_u32 s{S_OFF}, s{S_OFF}, s{S_D}')
        dma_go.last = tok
        return tok
    def dma_chunk(slot, kc):
        tok = None
        for b in range(3):
            dma_m0(slot, b); I('s_nop 0'); tok = dma_go(b, kc)
        return tok
    if not wlate: c0 = dma_chunk(3, 0); c1 = dma_chunk(4, 1); c2 = dma_chunk(5, 2)
    I(f'v_lshrrev_b32 v{t}, 2, v{V_TL}')
    I(f'v_and_b32 v{t+1}, 3, v{V_LANE}')
    I(f'v_lshlrev_b32 v{t+2}, 3, v{V_Q}\nv_add_u32 v{t+2}, v{t+2}, v{t}\nv_lshlrev_b32 v{t+2}, 7, v{t+2}')
    I(f'v_and_b32 v{t+3}, 2, v{t}')
    I(f'v_and_b32 v{t+4}, 1, v{V_Q}\nv_lshlrev_b32 v{t+4}, 2, v{t+4}\nv_or_b32 v{t+3}, v{t+3}, v{t+4}')
    I(f's_and_b32 s46, s{S_W}, 3\ns_lshl_b32 s46, s46, 1')
    I(f'v_lshrrev_b32 v{t+4}, 1, v{t+1}\nv_add_u32 v{t+4}, s46, v{t+4}\nv_xor_b32 v{t+4}, v{t+4}, v{t+3}\nv_lshlrev_b32 v{t+4}, 4, v{t+4}')
    I(f'v_and_b32 v{t+1}, 1, v{t+1}\nv_lshlrev_b32 v{t+1}, 3, v{t+1}')
    I(f'v_add_u32 v{t+2}, v{t+2}, v{t+4}\nv_add_u32 v{V_RD[0]}, v{t+2}, v{t+1}')
    I(f'v_add_u32 v{V_RD[1]}, {2*SLOT}, v{V_RD[0]}\nv_add_u32 v{V_RD[2]}, {4*SLOT}, v{V_RD[0]}')
    k.wait(pb)
    I(f'v_lshlrev_b32 v{V_G+8}, 16, v{V_G+4}\nv_and_b32 v{V_G+9}, 0xffff0000, v{V_G+4}\nv_lshlrev_b32 v{V_G+10}, 16, v{V_G+5}\nv_and_b32 v{V_G+11}, 0xffff0000, v{V_G+5}')
    I(f'v_cmp_gt_u32 vcc, 288, v0\ns_nop 1')
    for r in range(4): I(f'v_cndmask_b32 v{V_G+r}, v{V_G+8+r}, v{V_G+r}, vcc')
    I(f'v_lshlrev_b32 v{t}, 4, v0\nv_add_u32 v{t}, {PAR_G2}, v{t}')
    I(f'v_cmp_gt_u32 vcc, 432, v0\ns_nop 1\ns_and_saveexec_b64 s[50:51], vcc')
    k.ds(f'ds_write_b128 v{t}, {vr(V_G,4)}')
    I('s_mov_b64 exec, s[50:51]')
    c1v = -2.0 * math.sqrt(2.0 / math.pi) * math.log2(math.e); c2v = c1v * 0.044715
    import struct
    f2u = lambda x: struct.unpack('<I', struct.pack('<f', x))[0]
    global V_C2
    V_C2 = 18 if pk else 11
    I(f'v_mov_b32 v{V_C1}, {f2u(c1v):#x}')
    I(f's_and_b32 s46, s{S_W}, 3\ns_lshr_b32 s47, s{S_W}, 2')
    I(f's_lshl_b32 s48, s46, 6\ns_add_u32 s48, s48, {PAR_B1}')
    I(f'v_lshlrev_b32 v{V_BIAS}, 4, v{V_Q}\nv_add_u32 v{V_BIAS}, s48, v{V_BIAS}')
    I(f's_mul_i32 s48, s47, 36864\nv_lshlrev_b32 v{V_FR}, 4, v{V_LANE}\nv_add_u32 v{V_FR}, s48, v{V_FR}')
    I(f's_lshr_b32 s48, s46, 1\ns_lshl_b32 s48, s48, 10\ns_mul_i32 s49, s47, 36864\ns_add_u32 s48, s48, s49')
    I(f's_and_b32 s49, s46, 1\ns_lshl_b32 s49, s49, 9\ns_add_u32 s48, s48, s49\ns_add_u32 s48, s48, {3*SLOT}')
    I(f'v_lshrrev_b32 v{t}, 1, v{V_Q}\nv_lshlrev_b32 v{t}, 8, v{t}\nv_lshlrev_b32 v{t+1}, 4, v{V_TL}\nv_add_u32 v{t}, v{t}, v{t+1}')
    I(f'v_and_b32 v{t+1}, 1, v{V_Q}\nv_lshlrev_b32 v{t+1}, 3, v{t+1}\nv_add_u32 v{t}, v{t}, v{t+1}\nv_add_u32 v{V_HW}, s48, v{t}')
    I(f'v_lshlrev_b32 v{V_ST}, 4, v{V_LANE}\nv_add_u32 v{V_ST}, s{S_WK}, v{V_ST}')
    I(f's_lshl_b32 s48, s{S_M}, 3\ns_add_u32 s48, s48, s{S_P}\ns_mul_i32 s{S_STN}, s48, 73728\ns_add_u32 s{S_STN}, s{S_STN}, {OFF_PART}\ns_mov_b32 s{S_ST}, 0x7ff00000')
    X, H2, PG = V_BF, V_BF + 36, V_BF + 108
    ONES, A1, A2 = V_A, V_ACC[0], V_ACC[0] + 4
    for r in range(4): I(f'v_mov_b32 v{ONES+r}, 0x3f803f80')
    I(f's_mul_i32 s48, s47, {9*4096}\nv_add_u32 v{t}, s48, v{V_RD[0]}')
    I(f'v_and_b32 v{t+1}, 3, v{V_TL}')
    I(f'v_cmp_eq_u32 s[52:53], 1, v{t+1}\nv_cmp_eq_u32 s[54:55], 2, v{t+1}\nv_cmp_eq_u32 s[56:57], 3, v{t+1}')
    I(f'v_lshrrev_b32 v{t+1}, 2, v{V_TL}\nv_cmp_eq_u32 s[58:59], v{t+1}, v{V_Q}')
    I(f's_lshl_b32 s48, s46, 8\nv_lshlrev_b32 v{t+2}, 4, v{V_TL}\nv_add_u32 v{t+2}, s48, v{t+2}\nv_add_u32 v{t+2}, {STATS1}, v{t+2}')
    I(f's_lshl_b32 s48, s47, 3\nv_add_u32 v{t+3}, s48, v{t+2}')
    k.wait(xt)
    k.waitall(vm=False)
    I('s_barrier')
    stamp()
    if prefetch and pf_late:
        save_t = [V_TMP + 2, V_TMP + 3]
        I(f'v_mov_b32 v{V_PK}, v{t+2}\nv_mov_b32 v{V_PK+1}, v{t+3}')
        do_prefetch()
        I(f'v_mov_b32 v{t+2}, v{V_PK}\nv_mov_b32 v{t+3}, v{V_PK+1}')
    if wlate and not wspread: c0 = dma_chunk(3, 0); c1 = dma_chunk(4, 1); c2 = dma_chunk(5, 2)
    def sentinels():
        for r in range(4): I(f'v_mov_b32 v{V_PK+r}, -1')
        I(f's_lshl_b32 s48, s{S_M}, 3\ns_add_u32 s48, s48, s{S_P}\ns_mul_i32 s48, s48, 73728\ns_add_u32 s48, s48, {OFF_PART}\nv_lshlrev_b32 v{V_G+10}, 4, v0')
        for st_ in (6, 7):
            I(f's_add_u32 s49, s{S_P}, {st_}\ns_and_b32 s49, s49, 7\ns_lshl_b32 s49, s49, 13\ns_add_u32 s49, s49, s48')
            k.vm(f'buffer_store_dwordx4 {vr(V_PK,4)}, v{V_G+10}, {sr(S_WS,4)}, s49 offen sc1')
    if rot and not wspread: sentinels()
    toks = []
    for u in range(9):
        k.ds(f'ds_read_b64_tr_b16 {vr(X+4*u,2)}, v{t} offset:{u*4096}')
        toks.append(k.ds(f'ds_read_b64_tr_b16 {vr(X+4*u+2,2)}, v{t} offset:{u*4096+512}'))
    def stats(src, area_off):
        for u in range(9):
            if src == X and area_off == 0: k.wait(toks[u])
            I(f'v_mfma_f32_16x16x32_bf16 {vr(A1,4)}, {vr(ONES,4)}, {vr(src+4*u,4)}, {"0" if u == 0 else vr(A1,4)}')
            I(f'v_mfma_f32_16x16x32_bf16 {vr(A2,4)}, {vr(src+4*u,4)}, {vr(src+4*u,4)}, {"0" if u == 0 else vr(A2,4)}')
    stats(X, 0)
    if not ikr:
        I(f's_cmp_eq_u32 s{S_W}, s{S_P}\ns_cbranch_scc0 L_mlp_nox1')
        I(f's_lshl_b32 s48, s{S_M}, 6\ns_lshl_b32 s49, s46, 4\ns_add_u32 s48, s48, s49')
        I(f'v_add_u32 v{t+4}, s48, v{V_TL}\nv_mul_u32_u24 v{t+4}, 1152, v{t+4}\nv_lshlrev_b32 v{t+5}, 4, v{V_Q}\nv_add_u32 v{t+4}, v{t+4}, v{t+5}')
        I(f's_mul_i32 s48, s47, 576\ns_add_u32 s48, s48, {OFF_X1R}')
        for u in range(9):
            I(f'buffer_store_dwordx4 {vr(X+4*u,4)}, v{t+4}, {sr(S_WS,4)}, s48 offen offset:{u*64}')
        k.label('L_mlp_nox1')
    def finish_stats(area):
        k.nop(8)
        I(f'v_cndmask_b32 v{V_G}, v{A2}, v{A2+1}, s[52:53]\nv_cndmask_b32 v{V_G}, v{V_G}, v{A2+2}, s[54:55]\nv_cndmask_b32 v{V_G+1}, v{V_G}, v{A2+3}, s[56:57]')
        I(f'v_mov_b32 v{V_G}, v{A1}')
        I('s_mov_b64 s[50:51], exec\ns_mov_b64 exec, s[58:59]')
        k.ds(f'ds_write_b64 v{t+3}, {vr(V_G,2)} offset:{area}')
        I('s_mov_b64 exec, s[50:51]')
        k.waitall(vm=False)
        I('s_barrier')
        if (fine and not ikr) or lnfine: stamp()
        tk = k.ds(f'ds_read_b128 {vr(V_G+4,4)}, v{t+2} offset:{area}')
        return tk
    def stats_to_rm(tk):
        k.wait(tk)
        inv = f2u(1.0 / 576.0)
        I(f'v_add_f32 v{V_G}, v{V_G+4}, v{V_G+6}\nv_add_f32 v{V_G+1}, v{V_G+5}, v{V_G+7}')
        I(f'v_mul_f32 v{V_G}, {inv:#x}, v{V_G}\nv_mul_f32 v{V_G+1}, {inv:#x}, v{V_G+1}')
        I(f'v_fma_f32 v{V_G+1}, -v{V_G}, v{V_G}, v{V_G+1}')
        I(f'v_max_f32 v{V_G+1}, 0, v{V_G+1}\nv_add_f32 v{V_G+1}, {f2u(1e-5):#x}, v{V_G+1}')
        I(f'v_rsq_f32 v{V_G+2}, v{V_G+1}\ns_nop 0')
        I(f'v_mul_f32 v{V_G+3}, v{V_G}, v{V_G+2}\nv_sub_f32 v{V_G+3}, 0, v{V_G+3}')
    tk = finish_stats(0)
    I(f's_mul_i32 s48, s47, {9*128}\ns_add_u32 s48, s48, {PAR_G2}\nv_lshlrev_b32 v{t+4}, 5, v{V_Q}\nv_add_u32 v{t+4}, s48, v{t+4}')
    def par_reads(u):
        b = PG + (u & 1) * 16
        k.ds(f'ds_read_b128 {vr(b,4)}, v{t+4} offset:{u*128}')
        k.ds(f'ds_read_b128 {vr(b+4,4)}, v{t+4} offset:{u*128+16}')
        k.ds(f'ds_read_b128 {vr(b+8,4)}, v{t+4} offset:{2304+u*128}')
        return k.ds(f'ds_read_b128 {vr(b+12,4)}, v{t+4} offset:{2304+u*128+16}')
    ptk = [par_reads(0)]
    stats_to_rm(tk)
    R, NMR = V_G + 2, V_G + 3
    def stat_step(u):
        I(f'v_mfma_f32_16x16x32_bf16 {vr(A1,4)}, {vr(ONES,4)}, {vr(X+4*u,4)}, {"0" if u == 0 else vr(A1,4)}')
        I(f'v_mfma_f32_16x16x32_bf16 {vr(A2,4)}, {vr(X+4*u,4)}, {vr(X+4*u,4)}, {"0" if u == 0 else vr(A2,4)}')
    for u in range(9):
        if u + 1 < 9: ptk.append(par_reads(u + 1))
        if wlate and wspread:
            dma_m0(3 + u // 3, u % 3); I('s_nop 0'); tok_ = dma_go(u % 3, u // 3)
            if u == 2: c0 = tok_
        b = PG + (u & 1) * 16
        for d in range(4):
            I(f'v_lshlrev_b32 v{H2+8*u+2*d}, 16, v{X+4*u+d}\nv_and_b32 v{H2+8*u+2*d+1}, 0xffff0000, v{X+4*u+d}')
        if u > 0 and statmode:
            stat_step(u - 1)
            if statmode == 2: k.nop(8)
            if statmode == 3: I('s_nop 0')
            if statmode == 5: k.nop(3)
            if statmode == 6: k.nop(5)
        for e in range(8): I(f'v_fma_f32 v{H2+8*u+e}, v{H2+8*u+e}, v{R}, v{NMR}')
        k.wait(ptk[u])
        for e in range(8): I(f'v_fma_f32 v{H2+8*u+e}, v{H2+8*u+e}, v{b+e}, v{b+8+e}')
        for d in range(4): I(f'v_cvt_pk_bf16_f32 v{X+4*u+d}, v{H2+8*u+2*d}, v{H2+8*u+2*d+1}')
    I('s_nop 1')
    if statmode: stat_step(8)
    else:
        for u in range(9): stat_step(u)
    if lnfine: stamp()
    if rot and wspread: sentinels()
    tk = finish_stats(1024)
    stats_to_rm(tk)
    I(f's_mul_i32 s48, s46, 18432\ns_mul_i32 s49, s47, 9216\ns_add_u32 s48, s48, s49\nv_lshlrev_b32 v{t+4}, 4, v{V_LANE}\nv_add_u32 v{t+4}, s48, v{t+4}')
    for u in range(9):
        for e in range(8): I(f'v_fma_f32 v{H2+8*u+e}, v{H2+8*u+e}, v{R}, v{NMR}')
        for d in range(4): I(f'v_cvt_pk_bf16_f32 v{X+4*u+d}, v{H2+8*u+2*d}, v{H2+8*u+2*d+1}')
        k.ds(f'ds_write_b128 v{t+4}, {vr(X+4*u,4)} offset:{u*1024}')
    k.waitall(vm=False)
    I('s_barrier')
    if (fine and not ikr) or lnfine: stamp()
    def load_bfrags(base_off):
        tk = None
        for n in range(36):
            tk = k.ds(f'ds_read_b128 {vr(V_BF+4*n,4)}, v{V_FR} offset:{base_off + n*1024}') if base_off + n*1024 < 65536 else None
        return tk
    load_bfrags(0)
    btk = k.ds(f'ds_read_b128 {vr(V_B4,4)}, v{V_BIAS}')
    I(f'v_add_u32 v{V_BIAS}, 256, v{V_BIAS}')
    k.wait(c0)
    if ikr: I('s_load_dwordx2 s[8:9], s[0:1], 88\ns_load_dwordx2 s[28:29], s[0:1], 112')
    k.waitall(vm=False)
    if ikr: I('s_mov_b32 s10, 1152\ns_mov_b32 s11, 0x20000\ns_mov_b32 s30, 2359296\ns_mov_b32 s31, 0x20000')
    I('s_barrier')
    dma_chunk(0, 0); dma_chunk(1, 1)
    stamp()

    I(f'v_mov_b32 v{V_C2}, {f2u(c2v):#x}')
    NB = LA + 1
    ABUF = [V_A, V_A + 4, V_A + 8, V_TMP, V_TMP + 4][:NB]
    atok = {}
    ctr = [0]
    def a_read_parts(cnt, slot, u):
        buf = ABUF[cnt % NB]
        off = (slot & 1) * SLOT + u * 4096
        def r0(): k.ds(f'ds_read_b64_tr_b16 {vr(buf,2)}, v{V_RD[slot>>1]} offset:{off}')
        def r1(): atok[cnt % NB] = k.ds(f'ds_read_b64_tr_b16 {vr(buf+2,2)}, v{V_RD[slot>>1]} offset:{off+512}')
        return r0, r1
    def a_reads(cnt, slot, u):
        r0, r1 = a_read_parts(cnt, slot, u); r0(); r1()
    def gelu_ops(acc, dst):
        ops = []
        for h in range(2):
            x = [acc + 4*h + r for r in range(4)]; g = [V_G + 4*h + r for r in range(4)]
            if pk:
                P = (0, 2)
                ops += [f'v_pk_mul_f32 {vr(g[r],2)}, {vr(x[r],2)}, {vr(x[r],2)}' for r in P]
                ops += [f'v_pk_fma_f32 {vr(g[r],2)}, {vr(g[r],2)}, {vr(V_C2,2)}, {vr(V_C1,2)} op_sel_hi:[1,0,0]' for r in P]
                ops += [f'v_pk_mul_f32 {vr(g[r],2)}, {vr(x[r],2)}, {vr(g[r],2)}' for r in P]
                ops += [f'v_exp_f32 v{g[r]}, v{g[r]}' for r in range(4)]
                ops += [f'v_pk_add_f32 {vr(g[r],2)}, {vr(g[r],2)}, 1.0 op_sel_hi:[1,0]' for r in P]
                ops += [f'v_rcp_f32 v{g[r]}, v{g[r]}' for r in range(4)]
                ops += [f'v_pk_mul_f32 {vr(g[r],2)}, {vr(x[r],2)}, {vr(g[r],2)}' for r in P]
            else:
                ops += [f'v_mul_f32 v{g[r]}, v{x[r]}, v{x[r]}' for r in range(4)]
                ops += [f'v_fma_f32 v{g[r]}, v{g[r]}, v{V_C2}, v{V_C1}' for r in range(4)]
                ops += [f'v_mul_f32 v{g[r]}, v{x[r]}, v{g[r]}' for r in range(4)]
                ops += [f'v_exp_f32 v{g[r]}, v{g[r]}' for r in range(4)]
                ops += [f'v_add_f32 v{g[r]}, 1.0, v{g[r]}' for r in range(4)]
                ops += [f'v_rcp_f32 v{g[r]}, v{g[r]}' for r in range(4)]
                ops += [f'v_mul_f32 v{g[r]}, v{x[r]}, v{g[r]}' for r in range(4)]
            ops += dst(h, g)
        return ops
    lab = [0]
    cur = dict(cls=0)
    def group(phase, par, slots, issue, extra, last=False, vmw=(9, 9, 9), pre=None, early=False, hooks=None, prebar=None):
        acc = V_ACC[par]
        extra = list(extra)
        if no_gelu and phase == 1: extra = []
        nfill = len(extra)
        cls = cur['cls']
        dma_steps = (0, 2, 4) if cls == 0 else (1, 3, 5)
        wt = []
        for n in range(18):
            w_ = 0.0 if n == 0 else (wts[0] if (n % 6) in dma_steps else wts[1])
            if early: w_ = 1.0 if 1 <= n <= (1 if early == 1 else 3) else 0.0
            wt += [w_ / 2, w_ / 2]
        tot = sum(wt); cum = []; a_ = 0.0
        for w_ in wt:
            a_ += w_; cum.append(int(round(nfill * a_ / tot)))
        cum[-1] = nfill
        st = dict(done=0)
        def fill(upto):
            while st['done'] < min(upto, nfill):
                x_ = extra[st['done']]
                if callable(x_): x_()
                else: I(x_)
                st['done'] += 1
        for kc in range(3):
            if vmw[kc] is not None:
                if prebar and kc in prebar: prebar[kc]()
                if vmw[kc] != 'b': k.raw_wait(vm=vmw[kc])
                if not no_bar: I('s_barrier')
            if pre and kc in pre: pre[kc]()
            for u in range(6):
                n = kc * 6 + u
                cnt = ctr[0]; ctr[0] += 1
                buf = ABUF[cnt % NB]
                k.wait(atok[cnt % NB])
                nn = n + LA
                if nn < 18: rd = a_read_parts(cnt + LA, slots[nn // 6], nn % 6)
                elif not last: rd = a_read_parts(cnt + LA, slots[3], nn - 18)
                else: rd = (lambda: None, lambda: None)
                def mfma(h):
                    if n == 0: c = vr(V_B4, 4) if phase == 1 else '0'
                    else: c = vr(acc + 4*h, 4)
                    if not no_mfma: I(f'v_mfma_f32_16x16x32_bf16 {vr(acc+4*h,4)}, {vr(buf,4)}, {vr(V_BF+(h*18+n)*4,4)}, {c}')
                dma = issue[kc] is not None and not no_dma and u in dma_steps
                b = dma_steps.index(u) if dma else None
                mfma(0)
                rd[0](); fill(cum[2*n])
                mfma(1)
                if dma: dma_m0(issue[kc][0], b)
                rd[1]()
                if dma:
                    if nn >= 18 and last: I('s_nop 0')
                    dma_go(b, issue[kc][1])
                if phase == 1 and n == 8:
                    group.btk = k.ds(f'ds_read_b128 {vr(V_B4,4)}, v{V_BIAS}')
                    I(f'v_add_u32 v{V_BIAS}, 256, v{V_BIAS}')
                fill(cum[2*n+1])
                if hooks and n in hooks: hooks[n]()
                if phase == 1 and n == 17: k.wait(group.btk)
    group.btk = btk
    def h_dst_indexed(delta):
        def f(h, g):
            return [f'v_cvt_pk_bf16_f32 v{V_PK}, v{g[0]}, v{g[1]}', f'v_cvt_pk_bf16_f32 v{V_PK+1}, v{g[2]}, v{g[3]}',
                    f's_set_gpr_idx_on s{S_IDX}, gpr_idx(DST)', f'v_mov_b32 v{V_H+delta+2*h}, v{V_PK}', f'v_mov_b32 v{V_H+delta+2*h+1}, v{V_PK+1}', 's_set_gpr_idx_off']
        return f
    def h_dst_static(G):
        def f(h, g):
            return [f'v_cvt_pk_bf16_f32 v{V_H+4*G+2*h}, v{g[0]}, v{g[1]}', f'v_cvt_pk_bf16_f32 v{V_H+4*G+2*h+1}, v{g[2]}, v{g[3]}']
        return f
    def merge_idx(ops):
        out = []; i = 0
        while i < len(ops):
            if ops[i].startswith('s_set_gpr_idx_on'):
                out.append('\n'.join(ops[i:i+4])); i += 4
            else:
                out.append(ops[i]); i += 1
        return out
    def switch_src(to):
        def f():
            lab = f'L_sw_{to}_{cur["cls"]}'
            I(f's_cmp_eq_u32 s{S_IT}, 3\ns_cbranch_scc0 {lab}')
            if to == 'w2':
                I(f's_mov_b32 s{S_CUR}, s{S_W2}\ns_mov_b32 s{S_CUR+1}, s{S_W2+1}')
                I(f'v_mov_b32 v{VD[0]}, v{V_DMA2}\nv_add_u32 v{VD[1]}, {64*1152}, v{V_DMA2}\nv_add_u32 v{VD[2]}, {128*1152}, v{V_DMA2}')
                I(f's_mul_i32 s62, s{S_P}, 663552\ns_mov_b32 s{S_D}, {D2}\ns_mov_b32 s63, 0')
                if rot: I(f's_add_u32 s{S_OFF}, s62, {8*128}\ns_mov_b32 s60, s{S_P}\ns_mov_b32 s61, 7')
                else: I(f's_mov_b32 s{S_OFF}, s62')
            else:
                I(f's_mov_b32 s{S_OFF}, 0x7ff00000\ns_mov_b32 s62, 0x7ff00000\ns_mov_b32 s{S_D}, 0')
            k.label(lab)
        return f
    def main(cls):
        cur['cls'] = cls
        for n in range(LA): a_reads(n, 3, n)
        k.wait(btk)
        I(f's_mov_b32 s{S_IT}, 0\ns_mov_b32 s{S_IDX}, 0')
        def body1():
            group(1, 0, (3, 4, 5, 0), ((2, 2), (3, 0), (4, 1)), merge_idx(gelu_ops(V_ACC[1], h_dst_indexed(-4))))
            group(1, 1, (0, 1, 2, 3), ((5, 2), (0, 0), (1, 1)), merge_idx(gelu_ops(V_ACC[0], h_dst_indexed(0))), pre={1: switch_src('w2')})
        def loop(label, body, n):
            save = len(k.lines); l0 = lab[0]
            body(); first = k.lines[save:]; del k.lines[save:]; lab[0] = l0
            body(); second = k.lines[save:]; del k.lines[save:]; lab[0] = l0
            start = len(k.lines)
            k.label(label)
            body()
            third = k.lines[start+1:]
            assert second == third, 'loop body not a fixed point'
            strip = lambda L: [x for x in L]
            def split(L):
                body_, waits = [], {}
                for x in L:
                    if x.startswith('    s_waitcnt'): waits.setdefault(len(body_), []).append(x.strip())
                    else: body_.append(x)
                return body_, waits
            fb, fw = split(first); sb_, sw_ = split(second)
            assert fb == sb_, 'loop body differs between entry and steady state'
            import re as _re
            def cnts(ws):
                d = {}
                for w_ in ws:
                    for nm, v in _re.findall(r'(vmcnt|lgkmcnt)\((\d+)\)', w_): d[nm] = min(d.get(nm, 99), int(v))
                return d
            for pos, ws in fw.items():
                a = cnts(ws); b = cnts(sw_.get(pos, []))
                for nm, v in a.items():
                    assert nm in b and b[nm] <= v, ('steady-state wait too lax for loop entry', label, pos, ws, sw_.get(pos))
            errs = hazards(third + third, label)
            for e in errs: print('HAZARD', e)
            I(f's_add_u32 s{S_IDX}, s{S_IDX}, 8\ns_add_u32 s{S_IT}, s{S_IT}, 1\ns_cmp_lt_u32 s{S_IT}, {n}\ns_cbranch_scc1 {label}')
        loop(f'L_p1_{cls}', body1, 4)
        stamp()
        group(1, 0, (3, 4, 5, 0), ((2, 2), None, None), gelu_ops(V_ACC[1], h_dst_static(7)), vmw=(9, 9, 6))
        k.raw_wait(vm=3)
        I('s_barrier')
        k.nop(4)
        g8 = gelu_ops(V_ACC[0], h_dst_static(8))
        wr = [(G, h) for G in range(8) for h in range(2)]
        gi = 0
        for n_, (G, h) in enumerate(wr):
            k.ds(f'ds_write_b64 v{V_HW}, {vr(V_H+4*G+2*h,2)} offset:{G*2048 + h*18432}')
            upto = len(g8) * (n_ + 1) // len(wr)
            while gi < upto:
                I(g8[gi]); gi += 1
        for h in range(2):
            k.ds(f'ds_write_b64 v{V_HW}, {vr(V_H+32+2*h,2)} offset:{8*2048 + h*18432}')
        k.waitall(vm=False)
        I('s_barrier')
        I(f'v_add_u32 v{V_FR}, {3*SLOT}, v{V_FR}')
        load_bfrags(0)
        k.waitall(vm=False)
        I('s_barrier')
        dma_chunk(3, 0); dma_chunk(4, 1)
        stamp()
        stok = {}
        def store_ops(acc):
            ops = [f'v_cvt_pk_bf16_f32 v{V_PK+2*h+d}, v{acc+4*h+2*d}, v{acc+4*h+2*d+1}' for h in range(2) for d in range(2)]
            def st_():
                stok['last'] = k.vm(f'buffer_store_dwordx4 {vr(V_PK,4)}, v{V_ST}, {sr(S_WS,4)}, s{S_ST} offen {store_flags}')
                if not rot: I(f's_mov_b32 s{S_ST}, s{S_STN}\ns_add_u32 s{S_STN}, s{S_STN}, 8192')
                else: I(f's_mov_b32 s{S_ST}, s{S_STN}\ns_add_u32 s59, s59, 1\ns_add_u32 s{S_STN}, s59, s{S_P}\ns_and_b32 s{S_STN}, s{S_STN}, 7\ns_lshl_b32 s{S_STN}, s{S_STN}, 13\ns_add_u32 s{S_STN}, s{S_STN}, s32')
            ops.append(st_)
            return ops
        def run(ops):
            for op in ops:
                if callable(op): op()
                else: I(op)
        I(f's_mov_b32 s{S_IT}, 0')
        if rot: I(f's_mov_b32 s32, s{S_STN}\ns_add_u32 s{S_STN}, s{S_STN}, {8*8192}\ns_mov_b32 s59, 0')
        if not ikr:
            def body2():
                group(2, 0, (0, 1, 2, 3), ((5, 2), (0, 0), (1, 1)), store_ops(V_ACC[1]), vmw=(9, 9, 9))
                group(2, 1, (3, 4, 5, 0), ((2, 2), (3, 0), (4, 1)), store_ops(V_ACC[0]), vmw=(9, 9, 9), pre={1: switch_src('oob')})
            loop(f'L_p2_{cls}', body2, 4)
            group(2, 0, (0, 1, 2, 3), (None, None, None), store_ops(V_ACC[1]), last=True, vmw=(9, 6, None))
            k.nop(8)
            run(store_ops(V_ACC[0]))
            return
        S_FL, S_G, S_CNT = 46, 50, 51
        VF, VFA, VL16, VO, VTR, VP4 = 2, 12, 13, 8, 20, 21
        I(f's_lshl_b32 s{S_FL}, s{S_M}, 7\ns_add_u32 s{S_FL}, s{S_FL}, {OFF_FLAG}')
        I(f'v_and_b32 v{VFA}, 7, v{V_LANE}\nv_lshlrev_b32 v{VFA}, 2, v{VFA}\nv_lshlrev_b32 v{VL16}, 4, v{V_LANE}')
        I(f's_lshr_b32 s52, s{S_P}, 2\ns_and_b32 s53, s{S_P}, 3')
        I(f's_lshl_b32 s54, s{S_M}, 6\ns_lshl_b32 s55, s52, 5\ns_add_u32 s54, s54, s55\nv_add_u32 v{VO}, s54, v{V_TL}\nv_mul_u32_u24 v{VO}, 1152, v{VO}')
        I(f's_lshl_b32 s55, s53, 4\nv_lshlrev_b32 v{VP4}, 2, v{V_Q}\nv_add_u32 v{VP4}, s55, v{VP4}')
        I(f'v_lshlrev_b32 v16, 1, v{VP4}\nv_add_u32 v{VO}, v{VO}, v16')
        I(f'v_lshrrev_b32 v{VTR}, 2, v{V_TL}\nv_lshlrev_b32 v16, 2, v{V_Q}\nv_add_u32 v{VTR}, v{VTR}, v16\nv_lshlrev_b32 v{VTR}, 6, v{VTR}')
        I(f'v_and_b32 v16, 3, v{V_LANE}\nv_lshlrev_b32 v16, 3, v16\nv_add_u32 v{VTR}, v{VTR}, v16\nv_add_u32 v{VTR}, {XS}, v{VTR}')
        VXG = 19
        I(f'v_lshrrev_b32 v{VXG}, 2, v{V_LANE}\nv_lshlrev_b32 v{VXG}, 7, v{VXG}\nv_and_b32 v16, 3, v{V_LANE}\nv_lshlrev_b32 v16, 4, v16\nv_add_u32 v{VXG}, v{VXG}, v16\ns_lshl_b32 s55, s52, 6\nv_add_u32 v{VXG}, s55, v{VXG}')
        def signal(val, name, cond_it=None):
            lb = f'L_sig{name}'
            if cond_it is not None: I(f's_cmp_eq_u32 s{S_IT}, {cond_it}\ns_cbranch_scc0 {lb}')
            I(f's_cmp_eq_u32 s{S_W}, 0\ns_cbranch_scc0 {lb}')
            I(f's_lshl_b32 s52, s{S_P}, 2\ns_add_u32 s52, s52, s{S_FL}\nv_mov_b32 v16, {val}\nv_mov_b32 v17, 0\ns_mov_b64 exec, 1')
            I(f'buffer_store_dword v16, v17, {sr(S_WS,4)}, s52 offen sc1')
            I('s_mov_b64 exec, -1')
            k.label(lb)
        ftok = {}
        def flag_load(): ftok['t'] = k.vm(f'buffer_load_dword v{VF}, v{VFA}, {sr(S_WS,4)}, s{S_FL} offen sc1')
        def spin(val, name):
            I(f's_mov_b32 s{S_CNT}, 0x40000')
            k.label(f'L_spin{name}')
            I(f'v_cmp_gt_u32 vcc, {val}, v{VF}\ns_nop 4\ns_cbranch_vccz L_spun{name}')
            I(f's_sub_u32 s{S_CNT}, s{S_CNT}, 1\ns_cmp_eq_u32 s{S_CNT}, 0\ns_cbranch_scc1 L_spun{name}')
            I(f's_sleep 1\nbuffer_load_dword v{VF}, v{VFA}, {sr(S_WS,4)}, s{S_FL} offen sc1\ns_waitcnt vmcnt(0)\ns_branch L_spin{name}')
            k.label(f'L_spun{name}')
        PR = V_H
        R0, R1 = V_G, V_BF
        def statics(R, slotidx, tracked=False):
            V = k.vm if tracked else I
            I(f's_mul_i32 s52, s{S_M}, 73728\ns_lshl_b32 s54, s{S_G}, 13\ns_add_u32 s52, s52, s54\ns_lshl_b32 s54, s53, 11\ns_add_u32 s52, s52, s54\ns_add_u32 s52, s52, {OFF_X1T}')
            I(f's_lshl_b32 s54, {slotidx}, 10\ns_add_u32 m0, s54, {XS}\ns_nop 0')
            V(f'buffer_load_dwordx4 v{VXG}, {sr(S_WS,4)}, s52 offen lds')
            I(f's_lshl_b32 s54, s{S_G}, 8\ns_add_u32 s52, s54, {OFF_MODF + 3*2304}\nv_lshlrev_b32 v16, 2, v{VP4}')
            V(f'buffer_load_dwordx4 {vr(R,4)}, v16, {sr(S_WS,4)}, s52 offen')
            I(f's_lshl_b32 s54, s{S_G}, 7\nv_lshlrev_b32 v17, 1, v{VP4}')
            V(f'buffer_load_dwordx2 {vr(R+4,2)}, v17, s[8:11], s54 offen')
        def partials():
            I(f's_mul_i32 s52, s{S_M}, {8*73728}\ns_lshl_b32 s54, s{S_G}, 13\ns_add_u32 s52, s52, s54\ns_lshl_b32 s54, s{S_P}, 10\ns_add_u32 s52, s52, s54\ns_add_u32 s52, s52, {OFF_PART}')
            for p_ in range(8):
                I(f'buffer_load_dwordx4 {vr(PR+4*p_,4)}, v{VL16}, {sr(S_WS,4)}, s52 offen sc1')
                if p_ < 7: I(f's_add_u32 s52, s52, 73728')
        def finish(R, slotidx, own=None, prb=None, b2raw=None, vo=None, first=0):
            prb = PR if prb is None else prb; b2raw = R + 4 if b2raw is None else b2raw; vo = VO if vo is None else vo
            I(f's_lshl_b32 s54, {slotidx}, 10\nv_add_u32 v16, s54, v{VTR}')
            I(f'ds_read_b64_tr_b16 v[36:37], v16\nds_read_b64_tr_b16 v[38:39], v16 offset:32')
            acc = [72, 73, 74, 75, 108, 109, 110, 111]
            t0, t1 = 22, 23
            if own is not None: acc = [own + e for e in range(8)]
            for p_ in range(first, 8 if own is None else 7):
                for d in range(4):
                    lo, hi = acc[2*d], acc[2*d+1]
                    b = prb + 4*p_ + d
                    if p_ == 0 and own is None: I(f'v_lshlrev_b32 v{lo}, 16, v{b}\nv_and_b32 v{hi}, 0xffff0000, v{b}')
                    else: I(f'v_lshlrev_b32 v{t0}, 16, v{b}\nv_and_b32 v{t1}, 0xffff0000, v{b}\nv_add_f32 v{lo}, v{lo}, v{t0}\nv_add_f32 v{hi}, v{hi}, v{t1}')
            b2 = [30, 31, 32, 33]; xx = [16, 17, 18, 4]; pk = (34, 10)
            I(f'v_lshlrev_b32 v{b2[0]}, 16, v{b2raw}\nv_and_b32 v{b2[1]}, 0xffff0000, v{b2raw}\nv_lshlrev_b32 v{b2[2]}, 16, v{b2raw+1}\nv_and_b32 v{b2[3]}, 0xffff0000, v{b2raw+1}')
            finish.n += 1
            I(f's_waitcnt lgkmcnt({finish.lg})')
            I(f's_lshl_b32 s54, s{S_G}, 7')
            for h in range(2):
                x = 36 + 2*h
                I(f'v_lshlrev_b32 v{xx[0]}, 16, v{x}\nv_and_b32 v{xx[1]}, 0xffff0000, v{x}\nv_lshlrev_b32 v{xx[2]}, 16, v{x+1}\nv_and_b32 v{xx[3]}, 0xffff0000, v{x+1}')
                for r in range(4):
                    a = acc[4*h + r]
                    I(f'v_add_f32 v{a}, v{a}, v{b2[r]}\nv_fma_f32 v{a}, v{a}, v{R+r}, v{xx[r]}')
                I(f'v_cvt_pk_bf16_f32 v{pk[h]}, v{acc[4*h]}, v{acc[4*h+1]}\nv_cvt_pk_bf16_f32 v{pk[h]+1}, v{acc[4*h+2]}, v{acc[4*h+3]}')
            I(f'buffer_store_dwordx2 {vr(pk[0],2)}, v{vo}, s[28:31], s54 offen')
            I(f's_add_u32 s54, s54, {16*1152}')
            I(f'buffer_store_dwordx2 {vr(pk[1],2)}, v{vo}, s[28:31], s54 offen')
        finish.n = 0; finish.lg = 0
        if rot:
            S_PB = 56
            def body2r():
                group(2, 0, (0, 1, 2, 3), ((5, 2), (0, 0), (1, 1)), store_ops(V_ACC[1]), vmw=(9, 9, 9), early=3,
                      pre={1: lambda: signal(1, 'a', cond_it=2)})
                group(2, 1, (3, 4, 5, 0), ((2, 2), (3, 0), (4, 1)), store_ops(V_ACC[0]), vmw=(9, 9, 9), early=3)
            loop(f'L_p2_{cls}', body2r, 3)
            GB8, B28, P8 = PR + 28, 10, PR + 24
            def statics8():
                I(f's_mul_i32 s52, s{S_M}, 73728\ns_lshl_b32 s54, s53, 11\ns_add_u32 s52, s52, s54\ns_add_u32 s52, s52, {OFF_X1T + 8*8192}')
                I(f's_mov_b32 m0, {XS + 8*1024}\ns_nop 0')
                k.vm(f'buffer_load_dwordx4 v{VXG}, {sr(S_WS,4)}, s52 offen lds')
                I(f's_mov_b32 s52, {OFF_MODF + 3*2304 + 8*256}\nv_lshlrev_b32 v16, 2, v{VP4}')
                k.vm(f'buffer_load_dwordx4 {vr(GB8,4)}, v16, {sr(S_WS,4)}, s52 offen')
                I(f's_mov_b32 s54, {8*128}\nv_lshlrev_b32 v17, 1, v{VP4}')
                k.vm(f'buffer_load_dwordx2 {vr(B28,2)}, v17, s[8:11], s54 offen')
            group(2, 0, (0, 1, 2, 3), ((5, 2), (0, 0), (1, 1)), store_ops(V_ACC[1]), vmw=(9, 9, 9), early=3,
                  hooks={9: flag_load, 14: statics8})
            if fine: stamp()
            ptok = {}
            def fetch8():
                k.wait(ftok['t'])
                spin(1, 'a')
                I(f's_mul_i32 s52, s{S_M}, {8*73728}\ns_mul_i32 s54, s{S_W}, 73728\ns_add_u32 s52, s52, s54\ns_lshl_b32 s54, s{S_P}, 10\ns_add_u32 s52, s52, s54\ns_add_u32 s52, s52, {OFF_PART + 8*8192}')
                ptok['t'] = k.vm(f'buffer_load_dwordx4 {vr(P8,4)}, v{VL16}, {sr(S_WS,4)}, s52 offen sc1')
            group(2, 1, (3, 4, 5, 0), ((2, 2), None, None), store_ops(V_ACC[0]), vmw=(9, 9, 9), early=3,
                  pre={0: lambda: signal(2, 'b')}, hooks={6: fetch8, (12, 12, 10)[tailv]: flag_load})
            ftok2 = dict(ftok)
            if fine: stamp()
            k.wait(dma_go.last)
            S_PB = 56
            def own_load(s_):
                I(f's_sub_u32 s54, s{S_P}, {s_}\ns_and_b32 s54, s54, 7\ns_mul_i32 s54, s54, 73728\ns_add_u32 s54, s54, s{S_PB}')
                return k.vm(f'buffer_load_dwordx4 {vr(PR+4*(s_-1),4)}, v{VL16}, {sr(S_WS,4)}, s54 offen sc1')
            wtok = {}
            def stage8():
                k.wait(ptok['t'])
                I(f's_lshl_b32 s54, s{S_W}, 10\ns_add_u32 s54, s54, {3*SLOT}\nv_add_u32 v16, s54, v{VL16}')
                wtok['t'] = k.ds(f'ds_write_b128 v16, {vr(P8,4)}')
            vo8 = {}
            def mid8():
                if fine: stamp()
                k.wait(ftok2['t'])
                spin(2, 'b')
                I(f'v_mov_b32 v3, v{VO}')
                I(f's_lshr_b32 s52, s{S_W}, 2\ns_and_b32 s53, s{S_W}, 3\ns_mov_b32 s{S_G}, s{S_P}')
                I(f's_lshl_b32 s54, s{S_M}, 6\ns_lshl_b32 s55, s52, 5\ns_add_u32 s54, s54, s55\nv_add_u32 v{VO}, s54, v{V_TL}\nv_mul_u32_u24 v{VO}, 1152, v{VO}')
                I(f's_lshl_b32 s55, s53, 4\nv_lshlrev_b32 v{VP4}, 2, v{V_Q}\nv_add_u32 v{VP4}, s55, v{VP4}')
                I(f'v_lshlrev_b32 v16, 1, v{VP4}\nv_add_u32 v{VO}, v{VO}, v16')
                I(f'v_lshrrev_b32 v{VXG}, 2, v{V_LANE}\nv_lshlrev_b32 v{VXG}, 7, v{VXG}\nv_and_b32 v16, 3, v{V_LANE}\nv_lshlrev_b32 v16, 4, v16\nv_add_u32 v{VXG}, v{VXG}, v16\ns_lshl_b32 s55, s52, 6\nv_add_u32 v{VXG}, s55, v{VXG}')
                if fine: stamp()
                statics(R0, f's{S_W}', True)
                I(f's_mul_i32 s{S_PB}, s{S_M}, {8*73728}\ns_lshl_b32 s54, s{S_P}, 13\ns_add_u32 s{S_PB}, s{S_PB}, s54\ns_lshl_b32 s54, s{S_W}, 10\ns_add_u32 s{S_PB}, s{S_PB}, s54\ns_add_u32 s{S_PB}, s{S_PB}, {OFF_PART}')
            hooks = {1: stage8, (6, 4, 2)[tailv]: mid8}
            for s_, n_ in zip(range(1, 6), ((7, 9, 11, 13, 15), (5, 6, 7, 9, 10), (3, 4, 6, 7, 8))[tailv]): hooks[n_] = (lambda q_: (lambda: own_load(q_)))(s_)
            group(2, 0, (0, 1, 2, 3), (None, None, None), store_ops(V_ACC[1]), last=True, vmw=('b', 'b', None), early=1, hooks=hooks,
                  prebar={1: lambda: k.wait(wtok['t'])})
            if fine: stamp()
            I(f's_cmp_eq_u32 s{S_W}, 0\ns_cbranch_scc0 L_nofin8')
            I(f'v_add_u32 v16, {3*SLOT}, v{VL16}')
            for p_ in range(8): I(f'ds_read_b128 {vr(V_BF+4*p_,4)}, v16 offset:{p_*1024}')
            I(f's_waitcnt lgkmcnt(0)\ns_mov_b32 s{S_G}, 8')
            finish(GB8, '8', prb=V_BF, b2raw=B28, vo=3)
            I(f's_mov_b32 s{S_G}, s{S_P}')
            k.label('L_nofin8')
            if fine: stamp()
            I(f's_waitcnt vmcnt(0)\ns_mov_b32 s{S_CNT}, 0x40000')
            if fine: stamp()
            own_load(6); own_load(7)
            for p_ in range(5):
                for d in range(4):
                    b = PR + 4*p_ + d; lo, hi = V_ACC[0] + 2*d, V_ACC[0] + 2*d + 1
                    I(f'v_lshlrev_b32 v22, 16, v{b}\nv_and_b32 v23, 0xffff0000, v{b}\nv_add_f32 v{lo}, v{lo}, v22\nv_add_f32 v{hi}, v{hi}, v23')
            k.label('L_retry')
            I('s_waitcnt vmcnt(0)')
            a_, b_ = PR + 20, PR + 24
            I(f'v_max3_u32 v22, v{a_}, v{a_+1}, v{a_+2}\nv_max3_u32 v22, v22, v{a_+3}, v{b_}\nv_max3_u32 v22, v22, v{b_+1}, v{b_+2}\nv_max_u32 v22, v22, v{b_+3}')
            I(f'v_cmp_eq_u32 vcc, -1, v22\ns_sub_u32 s{S_CNT}, s{S_CNT}, 1\ns_cmp_eq_u32 s{S_CNT}, 0\ns_cbranch_scc1 L_got\ns_nop 1\ns_cbranch_vccz L_got')
            own_load(6); own_load(7)
            I('s_branch L_retry')
            k.label('L_got')
            if fine: stamp()
            finish(R0, f's{S_W}', own=V_ACC[0], first=5)
            return
        def body2():
            group(2, 0, (0, 1, 2, 3), ((5, 2), (0, 0), (1, 1)), store_ops(V_ACC[1]), vmw=(9, 9, 9), early=3)
            group(2, 1, (3, 4, 5, 0), ((2, 2), (3, 0), (4, 1)), store_ops(V_ACC[0]), vmw=(9, 9, 9), early=3)
        loop(f'L_p2_{cls}', body2, 3)
        S_PB = 56
        def batch_setup(lo, hi, lvl, name):
            k.wait(ftok['t'])
            I(f's_sub_u32 s52, s{S_W}, {lo}\ns_cmp_lt_u32 s52, {hi - lo}\ns_cbranch_scc0 L_nob{name}')
            spin(lvl, name)
            k.label(f'L_nob{name}')
            I(f's_mul_i32 s{S_PB}, s{S_M}, {8*73728}\ns_lshl_b32 s54, s{S_W}, 13\ns_add_u32 s{S_PB}, s{S_PB}, s54\ns_lshl_b32 s54, s{S_P}, 10\ns_add_u32 s{S_PB}, s{S_PB}, s54\ns_add_u32 s{S_PB}, s{S_PB}, {OFF_PART}')
            I(f's_sub_u32 s52, s{S_W}, {lo}\ns_cmp_lt_u32 s52, {hi - lo}\ns_cselect_b32 s{S_PB}, s{S_PB}, 0x7ff00000\ns_cselect_b32 s58, 73728, 0')
        ptok = {}
        def pload(p_):
            def f():
                ptok['t'] = k.vm(f'buffer_load_dwordx4 {vr(PR+4*p_,4)}, v{VL16}, {sr(S_WS,4)}, s{S_PB} offen sc1')
                I(f's_add_u32 s{S_PB}, s{S_PB}, s58')
            return f
        I(f's_mov_b32 s{S_G}, s{S_W}')
        group(2, 0, (0, 1, 2, 3), ((5, 2), (0, 0), (1, 1)), store_ops(V_ACC[1]), vmw=(9, 9, 9), early=3,
              pre={1: lambda: signal(1, 'a')}, hooks={14: lambda: statics(R0, f's{S_W}', True)})
        if fine: stamp()
        hooks = {1: flag_load, 9: lambda: batch_setup(0, 5, 1, 'a')}
        for p_ in range(8): hooks[10 + p_] = pload(p_)
        group(2, 1, (3, 4, 5, 0), ((2, 2), None, None), store_ops(V_ACC[0]), vmw=(9, 9, 9), early=3, hooks=hooks)
        tok26 = dma_go.last
        k.wait(tok26)
        group(2, 0, (0, 1, 2, 3), (None, None, None), store_ops(V_ACC[1]), last=True, vmw=('b', 'b', None), early=3,
              pre={0: lambda: signal(2, 'b')}, hooks={12: flag_load})
        if fine: stamp()
        I(f's_cmp_eq_u32 s{S_W}, 0\ns_cbranch_scc0 L_nost8\ns_mov_b32 s{S_G}, 8')
        statics(R1, '8')
        I(f's_mov_b32 s{S_G}, 0')
        k.label('L_nost8')
        k.nop(7)
        run(store_ops(V_ACC[0]))
        I(f's_sub_u32 s52, s{S_W}, 5\ns_cmp_lt_u32 s52, 2\ns_cbranch_scc0 L_no6')
        I('s_waitcnt vmcnt(1)')
        spin(2, 'c')
        partials()
        I('s_waitcnt vmcnt(8)\ns_branch L_st8' if not sent else 's_branch L_st8')
        k.label('L_no6')
        if not sent:
            I('s_waitcnt vmcnt(0)')
            k.label('L_st8')
            if fine: stamp()
            I('s_barrier')
            if fine: stamp()
            signal(3, 'd')
            I(f's_cmp_eq_u32 s{S_W}, 7\ns_cbranch_scc1 L_late7')
            I(f's_cmp_ge_u32 s{S_W}, 5\ns_cbranch_scc0 L_have\ns_waitcnt vmcnt(0)')
            k.label('L_have')
            finish(R0, f's{S_W}')
            I(f's_cmp_eq_u32 s{S_W}, 0\ns_cbranch_scc0 L_ikr_done\ns_mov_b32 s{S_G}, 8')
            for e in range(6): I(f'v_mov_b32 v{R0+e}, v{R1+e}')
            I(f's_mov_b32 s57, 8\ns_branch L_late2')
            k.label('L_late7')
            I(f's_mov_b32 s57, 7')
            k.label('L_late2')
            I(f'buffer_load_dword v{VF}, v{VFA}, {sr(S_WS,4)}, s{S_FL} offen sc1\ns_waitcnt vmcnt(0)')
            spin(3, 'b')
            partials()
            I('s_waitcnt vmcnt(0)')
            finish(R0, 's57')
        else:
            k.label('L_st8')
            if fine: stamp(); stamp()
            I(f's_cmp_eq_u32 s{S_W}, 7\ns_cbranch_scc1 L_late7')
            I(f's_cmp_ge_u32 s{S_W}, 5\ns_cbranch_scc1 L_w56\ns_waitcnt vmcnt(1)\ns_branch L_have')
            k.label('L_w56')
            I('s_waitcnt vmcnt(0)')
            k.label('L_have')
            finish(R0, f's{S_W}')
            I(f's_cmp_eq_u32 s{S_W}, 0\ns_cbranch_scc0 L_ikr_done\ns_mov_b32 s{S_G}, 8')
            for e in range(6): I(f'v_mov_b32 v{R0+e}, v{R1+e}')
            I(f's_mov_b32 s57, 8\ns_branch L_late2')
            k.label('L_late7')
            I(f's_mov_b32 s57, 7')
            k.label('L_late2')
            I(f's_waitcnt vmcnt(0)\ns_mov_b32 s{S_CNT}, 0x40000')
            k.label('L_retry')
            partials()
            I('s_waitcnt vmcnt(0)')
            I(f'v_max3_u32 v22, v{PR}, v{PR+1}, v{PR+2}')
            for e in range(3, 31, 2): I(f'v_max3_u32 v22, v22, v{PR+e}, v{PR+e+1}')
            I(f'v_max_u32 v22, v22, v{PR+31}')
            I(f'v_cmp_eq_u32 vcc, -1, v22\ns_sub_u32 s{S_CNT}, s{S_CNT}, 1\ns_cmp_eq_u32 s{S_CNT}, 0\ns_cbranch_scc1 L_got\ns_nop 1\ns_cbranch_vccnz L_retry')
            k.label('L_got')
            finish(R0, 's57')
        k.label('L_ikr_done')
    if classes:
        import copy
        st0 = (dict(k.cnt), dict(k.done), dict(atok), ctr[0], nst[0], group.btk)
        I(f's_cmp_ge_u32 s{S_W}, 4\ns_cbranch_scc1 L_main1')
        if cls_prio == 0: I('s_setprio 1')
        main(0)
        I('s_branch L_main_done')
        k.label('L_main1')
        k.cnt, k.done = dict(st0[0]), dict(st0[1]); atok.clear(); atok.update(st0[2]); ctr[0] = st0[3]; nst[0] = st0[4]; group.btk = st0[5]
        if cls_prio == 1: I('s_setprio 1')
        main(1)
        k.label('L_main_done')
    else:
        main(0)
    stamp()
    I('s_waitcnt vmcnt(0)')
    stamp()
    if stamps:
        I('s_waitcnt lgkmcnt(0)')
        I(f's_lshl_b32 s46, s2, 6\ns_add_u32 s46, s46, {OFF_DBG}')
        for i in range(nst[0]):
            I(f'v_mov_b32 v2, s{64+2*i}\nv_mov_b32 v3, 0')
            I(f'buffer_store_dword v2, v3, {sr(S_WS,4)}, s46 offen offset:{4*i}')
            if not fine and not lnfine:
                I(f'v_mov_b32 v2, s{80+2*i}')
                I(f'buffer_store_dword v2, v3, {sr(S_WS,4)}, s46 offen offset:{32+4*i}')
        I('s_waitcnt vmcnt(0)')
    if dbgout:
        I(f's_cmp_eq_u32 s2, 0\ns_cbranch_scc0 L_mlp_end\ns_cmp_eq_u32 s{S_W}, 0\ns_cbranch_scc0 L_mlp_end')
        I('s_load_dwordx2 s[20:21], s[0:1], 120\ns_mov_b64 exec, -1\ns_waitcnt vmcnt(0) lgkmcnt(0)')
        I('s_sub_u32 s20, s20, 1024\ns_subb_u32 s21, s21, 0\ns_mov_b32 s22, 1280\ns_mov_b32 s23, 0x20000')
        I(f'v_and_b32 v2, 63, v0\nv_lshlrev_b32 v3, 2, v2')
        srcs = [OFF_DBG + 0x20000 + 4*4, OFF_DBG + 0x10000, OFF_DBG + 0x10000 + 4*5, OFF_DBG + 0x10000 + 4*6, OFF_DBG + 0x10000 + 4*9] + [OFF_DBG + 4*i for i in range(11)]
        I('v_mov_b32 v4, 0')
        for i, o in enumerate(srcs):
            I(f'v_cmp_eq_u32 vcc, {i}, v2\nv_mov_b32 v5, {o}\ns_nop 0\nv_cndmask_b32 v4, v4, v5, vcc')
        I(f'buffer_load_dword v6, v4, {sr(S_WS,4)}, 0 offen sc1')
        I(f'v_mov_b32 v7, {OFF_DBG + 0x20000}\nbuffer_load_dword v8, v7, {sr(S_WS,4)}, 0 offen sc1\ns_waitcnt vmcnt(0)')
        I('v_sub_u32 v6, v6, v8\nv_cmp_gt_u32 vcc, 16, v2\ns_nop 1\ns_and_saveexec_b64 s[50:51], vcc')
        I('buffer_store_dword v6, v3, s[20:23], 0 offen\nbuffer_store_dword v6, v3, s[20:23], 0 offen offset:1024\ns_waitcnt vmcnt(0)')
    k.label('L_mlp_end')
    I('s_endpgm')
    errs = hazards(k.lines, 'mlp')
    for e in errs: print('HAZARD', e)
    return k, LDS_BYTES

if __name__ == '__main__':
    k, lds = build()
    print(len(k.lines), 'lines; lds', lds)
```

```python
from asmlib import Kern, hazards
from layout import *
import struct, math
def vr(a, n): return f'v[{a}:{a+n-1}]'
f2u = lambda x: struct.unpack('<I', struct.pack('<f', x))[0]
N_LN, N_KG, N_MOD = 64, 576, 243
GRID = N_LN + N_KG + N_MOD
L_F = 0
L_G = 16 * 528
TB = L_F + 8
TP = 1184
T_BYTES = 32 * TP + 384
LDS_BYTES = max(T_BYTES, 64 * 528, 8192)

def build(stamps=False, prio=True, xmap='split', sent=False, stf='', mlate=True, bal=True, trsplit=True):
    global GRID
    N_TR = 64 if trsplit else 0
    GRID = N_LN + N_TR + N_KG + N_MOD
    k = Kern('prep_kernel', 128, 96)
    I = k.I
    k.stamp_init(stamps, 64, OFF_DBG + 0x20000)
    I(f's_cmp_ge_u32 s2, {GRID}\ns_cbranch_scc1 L_prep_end')
    I('s_load_dwordx2 s[26:27], s[0:1], 128')
    k.stamp()
    if stamps: I('s_mov_b32 s59, s2')
    I('v_and_b32 v1, 63, v0\nv_lshrrev_b32 v2, 6, v0')
    I('s_nop 0\nv_readfirstlane_b32 s33, v2')
    if not bal:
        I(f's_cmp_ge_u32 s2, {N_LN + N_KG}\ns_cbranch_scc1 L_mod')
        I(f's_cmp_ge_u32 s2, {N_LN}\ns_cbranch_scc1 L_kgen')
    else:
        I('s_lshr_b32 s34, s2, 3\ns_and_b32 s35, s2, 7\ns_mov_b32 s38, 0')
        I('s_cmp_lt_u32 s34, 8\ns_cbranch_scc1 L_ln')
        if trsplit:
            I('s_cmp_lt_u32 s34, 16\ns_cbranch_scc0 L_notr\ns_sub_u32 s2, s2, 64\ns_mov_b32 s38, 1\ns_branch L_ln')
            k.label('L_notr')
            a0, b0, b1, c1 = 16, 72, 96, 88
        else:
            a0, b0, b1, c1 = 8, 72, 88, 80
        I(f's_sub_u32 s36, s34, {a0}\ns_cmp_lt_u32 s34, 64\ns_cbranch_scc1 L_kmap')
        I(f's_sub_u32 s36, s34, {a0 + 8}\ns_sub_u32 s37, s34, {b0}\ns_cmp_lt_u32 s37, {b1 - b0}\ns_cbranch_scc1 L_kmap')
        I(f's_sub_u32 s36, s34, 64\ns_sub_u32 s37, s34, {c1}\ns_cmp_lt_u32 s34, 72\ns_cselect_b32 s36, s36, s37')
        I(f's_lshl_b32 s36, s36, 3\ns_add_u32 s36, s36, s35\ns_add_u32 s2, s36, {N_LN + N_KG}\ns_branch L_mod')
        k.label('L_kmap')
        I(f's_lshl_b32 s36, s36, 3\ns_add_u32 s36, s36, s35\ns_add_u32 s2, s36, {N_LN}\ns_branch L_kgen')
        k.label('L_ln')
    I('s_load_dwordx2 s[20:21], s[0:1], 0')
    if prio: I('s_setprio 3')
    I('v_lshrrev_b32 v3, 3, v0\nv_and_b32 v4, 7, v0')
    I('s_lshl_b32 s34, s2, 5\nv_add_u32 v5, s34, v3\nv_mul_u32_u24 v5, 1152, v5\nv_lshlrev_b32 v6, 4, v4\nv_add_u32 v5, v5, v6')
    I('s_waitcnt lgkmcnt(0)')
    I(f's_mov_b32 s4, s26\ns_mov_b32 s5, s27\ns_mov_b32 s6, {WS_BYTES}\ns_mov_b32 s7, 0x20000')
    I('s_mov_b32 s8, s20\ns_mov_b32 s9, s21\ns_mov_b32 s10, 2359296\ns_mov_b32 s11, 0x20000')
    U, X = 16, 52
    tk = [k.vm(f'buffer_load_dwordx4 {vr(U+4*m,4)}, v5, s[8:11], 0 offen offset:{m*128}') for m in range(9)]
    I(f'v_mul_u32_u24 v7, {TP}, v3\nv_lshrrev_b32 v8, 3, v3\nv_lshlrev_b32 v8, 7, v8\nv_add_u32 v7, v7, v8\nv_add_u32 v7, v7, v6')
    I('v_lshrrev_b32 v3, 4, v1\nv_and_b32 v4, 15, v1\nv_lshrrev_b32 v5, 2, v4\nv_and_b32 v6, 3, v1')
    I(f'v_lshlrev_b32 v14, 3, v3\nv_add_u32 v14, v14, v5\nv_mul_u32_u24 v14, {TP}, v14\nv_lshlrev_b32 v8, 7, v3\nv_add_u32 v14, v14, v8')
    I('v_lshlrev_b32 v8, 3, v6\nv_add_u32 v14, v14, v8\ns_mul_i32 s35, s33, 288\nv_add_u32 v14, s35, v14')
    I('s_mul_i32 s35, s33, 144\nv_add_u32 v8, s35, v4\nv_lshlrev_b32 v8, 6, v8\nv_lshlrev_b32 v9, 4, v3\nv_add_u32 v8, v8, v9\ns_mul_i32 s35, s2, 36864\nv_add_u32 v8, s35, v8')
    def transposed(rb):
        tks = []
        for i in range(9):
            k.ds(f'ds_read_b64_tr_b16 {vr(rb+4*i,2)}, v14 offset:{i*32}')
            tks.append(k.ds(f'ds_read_b64_tr_b16 {vr(rb+4*i+2,2)}, v14 offset:{i*32 + 4*TP}'))
        return tks
    def stores(tks, off, rb):
        for i in range(9):
            k.wait(tks[i])
            I(f's_mov_b32 s36, {off + i*1024}')
            k.vm(f'buffer_store_dwordx4 {vr(rb+4*i,4)}, v8, s[4:7], s36 offen {stf}')
    def red8(reg):
        I(f's_nop 1\nv_add_f32_dpp v{reg}, v{reg}, v{reg} quad_perm:[1,0,3,2] row_mask:0xf bank_mask:0xf')
        I(f's_nop 1\nv_add_f32_dpp v{reg}, v{reg}, v{reg} quad_perm:[2,3,0,1] row_mask:0xf bank_mask:0xf')
        I(f's_nop 1\nv_add_f32_dpp v{reg}, v{reg}, v{reg} row_half_mirror row_mask:0xf bank_mask:0xf')
    assert trsplit
    I('s_cmp_eq_u32 s38, 0\ns_cbranch_scc1 L_ln_norm')
    st0 = (dict(k.cnt), dict(k.done))
    for m in range(9):
        k.wait(tk[m])
        k.ds(f'ds_write_b128 v7, {vr(U+4*m,4)} offset:{m*128}')
    k.stamp()
    k.waitall(vm=False)
    I('s_barrier')
    k.stamp()
    stores(transposed(X), OFF_UT, X)
    k.stamp()
    I('s_branch L_prep_fin')
    k.label('L_ln_norm')
    k.cnt, k.done = dict(st0[0]), dict(st0[1]); k.st_n = 1
    I('v_mov_b32 v10, 0\nv_mov_b32 v11, 0')
    for m in range(9):
        k.wait(tk[m])
        for d in range(4):
            I(f'v_lshlrev_b32 v{X+8*m+2*d}, 16, v{U+4*m+d}\nv_and_b32 v{X+8*m+2*d+1}, 0xffff0000, v{U+4*m+d}')
        for d in range(4): I(f'v_pk_add_f32 v[10:11], v[10:11], {vr(X+8*m+2*d,2)}')
    k.stamp()
    I('v_add_f32 v10, v10, v11')
    red8(10)
    I(f'v_mul_f32 v10, {f2u(-1.0/576):#x}, v10\nv_mov_b32 v12, 0\nv_mov_b32 v11, v10\nv_mov_b32 v13, 0')
    for e in range(36): I(f'v_pk_add_f32 {vr(X+2*e,2)}, {vr(X+2*e,2)}, v[10:11]')
    for e in range(36): I(f'v_pk_fma_f32 v[12:13], {vr(X+2*e,2)}, {vr(X+2*e,2)}, v[12:13]')
    I('v_add_f32 v12, v12, v13')
    red8(12)
    I(f'v_mul_f32 v12, {f2u(1.0/576):#x}, v12\nv_add_f32 v12, {f2u(1e-5):#x}, v12\nv_rsq_f32 v12, v12\ns_nop 0\nv_mov_b32 v13, v12')
    for e in range(36):
        I(f'v_pk_mul_f32 {vr(X+2*e,2)}, {vr(X+2*e,2)}, v[12:13]')
        I(f'v_cvt_pk_bf16_f32 v{U+e}, v{X+2*e}, v{X+2*e+1}')
    for m in range(9): k.ds(f'ds_write_b128 v7, {vr(U+4*m,4)} offset:{m*128}')
    k.waitall(vm=False)
    I('s_barrier')
    k.stamp()
    stores(transposed(X), OFF_NT, X)
    k.stamp()
    I('s_branch L_prep_fin')
    k.st_n = 1
    k.label('L_mod')
    I('s_load_dwordx2 s[20:21], s[0:1], 96\ns_load_dwordx2 s[22:23], s[0:1], 104')
    I(f's_sub_u32 s34, s2, {N_LN + N_KG}\ns_mul_i32 s35, s34, 2428\ns_lshr_b32 s35, s35, 16\ns_mul_i32 s36, s35, 27\ns_sub_u32 s36, s34, s36')
    I('v_and_b32 v3, 15, v0\nv_lshrrev_b32 v4, 4, v0')
    I('s_lshl_b32 s37, s35, 6\nv_add_u32 v5, s37, v4')
    I('v_mul_u32_u24 v6, 6912, v5\nv_lshlrev_b32 v7, 4, v3\nv_add_u32 v6, v6, v7\ns_lshl_b32 s37, s36, 8\nv_add_u32 v6, s37, v6')
    I('v_lshlrev_b32 v5, 1, v5')
    I('s_waitcnt lgkmcnt(0)')
    I(f's_mov_b32 s4, s26\ns_mov_b32 s5, s27\ns_mov_b32 s6, {WS_BYTES}\ns_mov_b32 s7, 0x20000')
    I('s_mov_b32 s8, s20\ns_mov_b32 s9, s21\ns_mov_b32 s10, 1152\ns_mov_b32 s11, 0x20000')
    I('s_mov_b32 s12, s22\ns_mov_b32 s13, s23\ns_mov_b32 s14, 3981312\ns_mov_b32 s15, 0x20000')
    def wloads():
        for i in range(4):
            I(f's_mov_b32 s38, {i*16*6912}')
            k.vm(f'buffer_load_dwordx4 {vr(16+4*i,4)}, v6, s[12:15], s38 offen')
    if not mlate: wloads()
    tc = None
    for i in range(4): tc = k.vm(f'buffer_load_ushort v{32+i}, v5, s[8:11], 0 offen offset:{i*32}')
    k.wait(tc)
    if mlate: wloads()
    k.stamp()
    for i in range(4): I(f'v_lshlrev_b32 v{32+i}, 16, v{32+i}')
    for i in range(4): I(f'v_mul_f32 v{36+i}, {f2u(-math.log2(math.e)):#x}, v{32+i}')
    for i in range(4): I(f'v_exp_f32 v{36+i}, v{36+i}')
    for i in range(4): I(f'v_add_f32 v{36+i}, 1.0, v{36+i}')
    for i in range(4): I(f'v_rcp_f32 v{36+i}, v{36+i}')
    for i in range(4): I(f'v_mul_f32 v{32+i}, v{32+i}, v{36+i}')
    for i in range(4): I(f'v_cvt_pk_bf16_f32 v{32+i}, v{32+i}, v{32+i}\nv_and_b32 v{32+i}, 0xffff0000, v{32+i}')
    for e in range(8): I(f'v_mov_b32 v{40+e}, 0')
    k.waitall(lg=False)
    for i in range(4):
        for d in range(4):
            I(f'v_lshlrev_b32 v48, 16, v{16+4*i+d}\nv_and_b32 v49, 0xffff0000, v{16+4*i+d}')
            I(f'v_fmac_f32 v{40+2*d}, v48, v{32+i}\nv_fmac_f32 v{40+2*d+1}, v49, v{32+i}')
    I('v_lshlrev_b32 v6, 9, v4\nv_lshlrev_b32 v7, 5, v3\nv_add_u32 v6, v6, v7')
    I('ds_write_b128 v6, v[40:43]\nds_write_b128 v6, v[44:47] offset:16')
    I('s_waitcnt lgkmcnt(0)\ns_barrier')
    I('v_cmp_gt_u32 vcc, 128, v0\nv_lshlrev_b32 v6, 2, v0\ns_nop 0\ns_and_saveexec_b64 s[42:43], vcc\ns_cbranch_execz L_prep_fin')
    for g in range(16): I(f'ds_read_b32 v{16+g}, v6 offset:{g*512}')
    I('s_waitcnt lgkmcnt(0)')
    for g in range(1, 16): I(f'v_add_f32 v16, v16, v{16+g}')
    I(f's_mul_i32 s37, s35, 13824\ns_lshl_b32 s38, s36, 9\ns_add_u32 s37, s37, s38\ns_add_u32 s37, s37, {OFF_MODP}')
    I('buffer_store_dword v16, v6, s[4:7], s37 offen')
    k.stamp(); k.stamp()
    I('s_branch L_prep_fin')
    k.label('L_kgen')
    k.st_n = 1
    k.cnt['vm'] = k.done['vm'] = 0; k.cnt['lg'] = k.done['lg'] = 0
    I(f's_sub_u32 s2, s2, {N_LN}')
    if xmap == 'split':
        I('s_and_b32 s34, s2, 7\ns_lshr_b32 s2, s2, 3\ns_lshl_b32 s35, s34, 6\ns_add_u32 s35, s35, s2\ns_lshl_b32 s34, s34, 3\ns_add_u32 s34, s34, s2\ns_add_u32 s34, s34, 448\ns_cmp_lt_u32 s2, 64\ns_cselect_b32 s2, s35, s34')
    elif xmap: I('s_and_b32 s34, s2, 7\ns_mul_i32 s34, s34, 72\ns_lshr_b32 s2, s2, 3\ns_add_u32 s2, s2, s34')
    I('s_load_dwordx2 s[8:9], s[0:1], 8\ns_load_dwordx2 s[12:13], s[0:1], 16\ns_load_dwordx2 s[16:17], s[0:1], 24\ns_load_dwordx2 s[28:29], s[0:1], 32\ns_load_dwordx2 s[20:21], s[0:1], 40')
    I('v_and_b32 v3, 15, v1\nv_lshrrev_b32 v4, 4, v1')
    I('v_and_b32 v6, 127, v0\nv_lshlrev_b32 v7, 1, v6\ns_lshl_b32 s35, s2, 8\nv_add_u32 v7, s35, v7')
    I('s_and_b32 s34, s2, 0xfffffffe\ns_lshl_b32 s34, s34, 1')
    I('s_waitcnt lgkmcnt(0)')
    I('s_load_dword s36, s[20:21], s34')
    I(f's_mov_b32 s4, s26\ns_mov_b32 s5, s27\ns_mov_b32 s6, {WS_BYTES}\ns_mov_b32 s7, 0x20000')
    for b in (8, 12, 16, 28): I(f's_mov_b32 s{b+2}, 147456\ns_mov_b32 s{b+3}, 0x20000')
    tp = None
    for a, b in enumerate((8, 12, 16, 28)): tp = k.vm(f'buffer_load_ushort v{16+a}, v7, s[{b}:{b+3}], 0 offen')
    if sent:
        for r in range(4): I(f'v_mov_b32 v{60+r}, -1')
        for rnd in range(2):
            I(f's_lshl_b32 s40, s2, 8\ns_add_u32 s40, s40, {rnd*147456}\nv_add_u32 v64, s40, v0')
            I('v_lshrrev_b32 v65, 10, v64\nv_bfe_u32 v66, v64, 9, 1\nv_add_u32 v66, v66, v65\nv_add_u32 v66, 6, v66\nv_and_b32 v66, 7, v66\nv_lshlrev_b32 v66, 13, v66')
            I('v_mul_u32_u24 v65, 73728, v65\nv_and_b32 v67, 511, v64\nv_lshlrev_b32 v67, 4, v67\nv_add_u32 v65, v65, v66\nv_add_u32 v65, v65, v67')
            I('s_mov_b32 s41, 262144\nv_cmp_gt_u32 vcc, s41, v64\ns_nop 1\nv_cndmask_b32 v65, -16, v65, vcc')
            I(f's_mov_b32 s41, {OFF_PART}\nbuffer_store_dwordx4 v[60:63], v65, s[4:7], s41 offen sc1')
    if sent: k.cnt['vm'] += 2
    L2E = f2u(math.log2(math.e))
    I('s_waitcnt lgkmcnt(0)')
    k.done['lg'] = k.cnt['lg']
    I('s_bitcmp1_b32 s2, 0\ns_cselect_b32 s53, 0, 16\ns_lshl_b32 s36, s36, s53\ns_and_b32 s36, s36, 0xffff0000')
    I(f'v_mov_b32 v10, s36\nv_mul_f32 v10, {L2E:#x}, v10\nv_exp_f32 v10, v10\ns_nop 0\nv_cvt_pk_bf16_f32 v10, v10, v10\nv_and_b32 v10, 0xffff0000, v10')
    I('v_lshlrev_b32 v11, 2, v6')
    k.wait(tp)
    k.stamp()
    AR, AI, CC, T0 = 20, 21, 22, 24
    for r in range(16, 20): I(f'v_lshlrev_b32 v{r}, 16, v{r}')
    I(f'v_mul_f32 v16, {L2E:#x}, v16\nv_exp_f32 v16, v16\ns_nop 0\nv_cvt_pk_bf16_f32 v16, v16, v16\nv_and_b32 v16, 0xffff0000, v16')
    I(f'v_mul_f32 v16, v16, v10\nv_mul_f32 v{AR}, {f2u(-math.log2(math.e)):#x}, v16')
    I(f'v_mul_f32 v17, v17, v10\nv_mul_f32 v{AI}, {f2u(1.0/(2*math.pi)):#x}, v17')
    I(f'v_mul_f32 v18, v18, v10\nv_mul_f32 v19, v19, v10\nv_add_f32 v{CC}, v18, v18\nv_add_f32 v{CC+1}, v19, v19')
    def direct(dst, p):
        I(f'v_mul_f32 v{T0}, {f2u(float(p)):#x}, v{AR}\nv_mul_f32 v{T0+1}, {f2u(float(p)):#x}, v{AI}')
        I(f'v_exp_f32 v{T0}, v{T0}\nv_fract_f32 v{T0+1}, v{T0+1}\ns_nop 0\nv_cos_f32 v{T0+2}, v{T0+1}\nv_sin_f32 v{T0+3}, v{T0+1}\ns_nop 0')
        I(f'v_mul_f32 v{dst}, v{T0}, v{T0+2}\nv_mul_f32 v{dst+1}, v{T0}, v{T0+3}')
    def cmul(dst, a, b):
        I(f'v_pk_mul_f32 {vr(dst,2)}, {vr(a,2)}, {vr(b,2)} op_sel:[0,0] op_sel_hi:[1,0]')
        I(f'v_pk_fma_f32 {vr(dst,2)}, {vr(a,2)}, {vr(b,2)}, {vr(dst,2)} op_sel:[1,1,0] op_sel_hi:[0,1,1] neg_lo:[1,0,0]')
    pp = [0]
    def put(base, row, src, neg):
        t = T0 + 4 + (pp[0] & 1); pp[0] += 1
        I(f'v_cvt_pk_bf16_f32 v{t}, v{src}, {"-" if neg else ""}v{src+1}')
        k.ds(f'ds_write_b32 v11, v{t} offset:{base + row*528}')
    Z, Z8, Z128, P0, P1, U0, U1 = 32, 46, 48, 50, 52, 54, 56
    I('s_cmp_ge_u32 s33, 2\ns_cbranch_scc1 L_kg_b')
    direct(Z, 1); direct(Z8, 8); direct(Z128, 128)
    I(f'v_mov_b32 v{P0}, 1.0\nv_mov_b32 v{P0+1}, 0')
    put(L_F, 0, P0, False); put(L_F, 1, Z8, False)
    cur = Z8
    for beta in range(2, 16):
        dst = P0 if cur != P0 else P1
        cmul(dst, cur, Z8); cur = dst
        put(L_F, beta, dst, False)
        if beta - 2 < 6: cmul(Z + 2*(beta-1), Z + 2*(beta-2), Z)
    cmul(U1, CC, Z128)
    for al, U in ((0, CC), (1, U1)):
        put(L_G, 8*al, U, True)
        for e in range(1, 8):
            dst = (P0, P1)[e & 1]
            cmul(dst, U, Z + 2*(e-1)); put(L_G, 8*al + e, dst, True)
    I('s_branch L_kg_done')
    k.label('L_kg_b')
    Z2, Z4, Z6 = Z, Z + 2, Z + 4
    direct(Z2, 2); direct(Z128, 128); direct(P0, 256)
    cmul(Z4, Z2, Z2); cmul(U0, CC, P0); cmul(Z6, Z4, Z2)
    Uc = U0; row = 16
    for al in range(2, 17):
        if al > 2:
            dst = U1 if Uc == U0 else U0
            cmul(dst, Uc, Z128); Uc = dst
        eps = (0, 2, 4, 6) if al < 4 else ((0, 4) if al < 8 else (0,))
        for e in eps:
            if e == 0: put(L_G, row, Uc, True)
            else:
                dst = (P0, P1)[row & 1]
                cmul(dst, Uc, {2: Z2, 4: Z4, 6: Z6}[e]); put(L_G, row, dst, True)
            row += 1
    k.label('L_kg_done')
    k.waitall(vm=False)
    I('s_barrier')
    k.stamp()
    I(f'v_mul_u32_u24 v12, 528, v3\nv_lshlrev_b32 v13, 4, v4\nv_add_u32 v12, v12, v13')
    I(f's_mul_i32 s52, s33, {16*528}\ns_add_u32 s52, s52, {L_G}\nv_add_u32 v13, s52, v12')
    I('s_cmp_lt_u32 s33, 3\ns_cbranch_scc0 L_nomm')
    at = []
    for s in range(8):
        I(f'ds_read_b128 {vr(32+8*s,4)}, v13 offset:{s*64}\nds_read_b128 {vr(36+8*s,4)}, v12 offset:{L_F + s*64}')
    for s in range(8):
        I(f's_waitcnt lgkmcnt({14 - 2*s})')
        I(f'v_mfma_f32_16x16x32_bf16 v[96:99], {vr(32+8*s,4)}, {vr(36+8*s,4)}, {"0" if s == 0 else "v[96:99]"}')
    k.label('L_nomm')
    I('s_barrier')
    I('v_lshlrev_b32 v9, 4, v3')
    I('s_cmp_lt_u32 s33, 3\ns_cbranch_scc0 L_notab')
    I('s_cmp_eq_u32 s33, 1\ns_cbranch_scc1 L_tab1\ns_cmp_eq_u32 s33, 2\ns_cbranch_scc1 L_tab2')
    def tput(addr, r, off):
        I(f'v_cvt_pk_bf16_f32 v{24+r}, v{96+r}, v{96+r}')
        I(f'ds_write_b16 v{addr}, v{24+r} offset:{TB + off}')
    I('v_lshrrev_b32 v14, 1, v4\nv_lshlrev_b32 v14, 8, v14\nv_and_b32 v15, 1, v4\nv_lshlrev_b32 v15, 3, v15\nv_add_u32 v14, v14, v15\nv_add_u32 v14, v14, v9')
    for r in range(4): tput(14, r, 2*r)
    I('s_branch L_notab')
    k.label('L_tab1')
    I('v_cmp_gt_u32 vcc, 2, v4\nv_lshlrev_b32 v14, 8, v4\nv_add_u32 v14, 512, v14\nv_lshlrev_b32 v15, 9, v4')
    I('v_cndmask_b32 v14, v15, v14, vcc\nv_add_u32 v14, v14, v9')
    for r in range(4):
        lo, hi = 4*r, 256*(r >> 1) + 8*(r & 1)
        I(f'v_mov_b32 v15, {hi}\nv_cndmask_b32 v15, v15, {lo}, vcc\nv_add_u32 v15, v15, v14')
        tput(15, r, 0)
    I('s_branch L_notab')
    k.label('L_tab2')
    for r in range(4):
        I(f'v_lshlrev_b32 v14, 2, v4\nv_add_u32 v14, {8 + r}, v14\nv_min_u32 v14, 17, v14\nv_lshlrev_b32 v14, 8, v14\nv_add_u32 v14, v14, v9')
        tput(14, r, 0)
    k.label('L_notab')
    I(f'v_mov_b32 v14, {L_F}\nv_mov_b32 v24, 0\nv_mov_b32 v25, 0\nv_cmp_eq_u32 vcc, 192, v0\ns_nop 1\ns_and_saveexec_b64 s[42:43], vcc')
    I('ds_write_b64 v14, v[24:25]')
    I('s_mov_b64 exec, s[42:43]')
    I('s_waitcnt lgkmcnt(0)\ns_barrier')
    k.stamp()
    I('v_lshlrev_b32 v14, 4, v0\nv_add_u32 v14, 14, v14\nv_cvt_f32_i32 v14, v14')
    I(f'v_mov_b32 v15, {TB}')
    X = 32
    for j in range(0, 8, 2):
        I(f'v_add_f32 v24, {f2u(-2.0*j):#x}, v14' if j else 'v_mov_b32 v24, v14')
        I(f'v_add_f32 v25, {f2u(-2.0*(j+1)):#x}, v14')
        I('v_cvt_pk_bf16_f32 v26, v24, v25\nv_lshlrev_b32 v24, 16, v26\nv_and_b32 v25, 0xffff0000, v26')
        I('v_cvt_i32_f32 v24, v24\nv_cvt_i32_f32 v25, v25\nv_add_u32 v24, v24, v15\nv_add_u32 v25, v25, v15')
        I(f'ds_read_u16 v{X+j}, v24')
        I(f'ds_read_u16 v{X+j+1}, v25')
    I(f's_mul_i32 s40, s2, {KG_PITCH}\ns_add_u32 s40, s40, {OFF_KG}')
    I('v_sub_u32 v9, 255, v0\nv_lshlrev_b32 v9, 4, v9')
    for r in range(4): I(f'v_mov_b32 v{44+r}, 0')
    I('v_lshlrev_b32 v12, 4, v0\nv_cmp_gt_u32 vcc, 16, v0')
    I('s_waitcnt lgkmcnt(0)')
    for d in range(4): I(f'v_lshl_or_b32 v{48+d}, v{X+2*d+1}, 16, v{X+2*d}')
    I(f'buffer_store_dwordx4 v[48:51], v9, s[4:7], s40 offen {stf}')
    I('s_and_saveexec_b64 s[42:43], vcc\ns_add_u32 s41, s40, 4096')
    I('buffer_store_dwordx4 v[44:47], v12, s[4:7], s41 offen')
    I('s_mov_b64 exec, s[42:43]')
    k.stamp()
    k.label('L_prep_fin')
    I('s_waitcnt vmcnt(0)')
    k.st_n = 4; k.stamp()
    if stamps: I('s_mov_b32 s2, s59')
    k.stamp_store('s[4:7]', nmax=5)
    k.label('L_prep_end')
    I('s_endpgm')
    for e in hazards(k.lines, 'prep'): print('HAZARD', e)
    return k, LDS_BYTES
if __name__ == '__main__':
    k, lds = build(); print(len(k.lines), lds)
```
